```python
import torch

def _softmax(x, axis=-1):
    return torch.softmax(x, dim=axis)
def _gelu(x):
    return torch.nn.functional.gelu(x, approximate="tanh")
def _silu(x):
    return torch.nn.functional.silu(x)
def _sigmoid(x):
    return torch.sigmoid(x)
def _layernorm(x, axis=-1, eps=1e-5):
    m = x.mean(dim=axis, keepdim=True)
    v = x.var(dim=axis, keepdim=True, unbiased=False)
    return (x - m) / torch.sqrt(v + eps)
def _scatter_add(tgt, idx, src, axis=0):
    return tgt.clone().index_add_(axis, idx, src)
def _segment_sum(src, seg, n):
    out = torch.zeros((n,) + src.shape[1:], dtype=src.dtype)
    return out.index_add_(0, seg, src)
def _pad(x, pw):
    flat = tuple(v for pair in reversed(pw) for v in pair)
    return torch.nn.functional.pad(x, flat)

kernel_name = 'gated_mix__mha_block_cached__dense_activation_relu__decode'

def setup_inputs():

    _w = (lambda a: (lambda t: t.to(torch.bfloat16) if t.is_floating_point() else t)(torch.as_tensor(a)))
    def _A_setup():
        B, Sq, D = 2, 1, 448
        H, Sk, Dh = 16, 4096, 256
        return {
            "x": _w((lambda *s: torch.randn(*s, dtype=torch.bfloat16) * 0.05)(B, Sq, D)),
            "k_cache": _w((lambda *s: torch.randn(*s, dtype=torch.bfloat16) * 6.4)(B, H, Sk, Dh)),
            "v_cache": _w((lambda *s: torch.randn(*s, dtype=torch.bfloat16) * 0.4)(B, H, Sk, Dh)),
            "wq": _w((lambda *s: torch.randn(*s, dtype=torch.bfloat16) * 6.4)(D, H * Dh) * (D ** -0.5)),
            "wo": _w((lambda *s: torch.randn(*s, dtype=torch.bfloat16) * 0.4)(H * Dh, D) * ((H * Dh) ** -0.5)),
        }
    _A_in = _A_setup()

    def _B_setup():
        B, S, D, Dff = 2, 1, 448, 1792
        return {
            "x": _w((lambda *s: torch.randn(*s, dtype=torch.bfloat16) * 0.05)(B, S, D)),
            "w1": _w((lambda *s: torch.randn(*s, dtype=torch.bfloat16) * 0.05)(D, Dff)),
            "w2": _w((lambda *s: torch.randn(*s, dtype=torch.bfloat16) * 0.05)(Dff, D)),
        }
    _B_in = _B_setup()

    return {
        "A_x": _A_in["x"],
        "A_k_cache": _A_in["k_cache"],
        "A_v_cache": _A_in["v_cache"],
        "A_wq": _A_in["wq"],
        "A_wo": _A_in["wo"],
        "B_x": _B_in["x"],
        "B_w1": _B_in["w1"],
        "B_w2": _B_in["w2"],
        "gate_w": _w((lambda *s: torch.randn(*s, dtype=torch.bfloat16) * 0.05)(448) * 16.0),
    }

def reference(A_x, A_k_cache, A_v_cache, A_wq, A_wo, B_x, B_w1, B_w2, gate_w):
    def _A_ref(x, k_cache, v_cache, wq, wo):
        B, Sq, D = x.shape
        H, Dh = 16, 256
        q = (lambda x, *d: x.permute(*d))((x @ wq).reshape(B, Sq, H, Dh), 0, 2, 1, 3)
        scores = torch.einsum("bhqd,bhkd->bhqk", q, k_cache) * (Dh ** -0.5)
        p = _softmax(scores, axis=-1)
        o = torch.einsum("bhqk,bhkd->bhqd", p, v_cache)
        return (lambda x, *d: x.permute(*d))(o, 0, 2, 1, 3).reshape(B, Sq, H * Dh) @ wo

    def _B_ref(x, w1, w2):
        h = torch.einsum("bsd,df->bsf", x, w1)
        zero = torch.zeros_like(h)
        h = torch.maximum(h, zero)
        return torch.einsum("bsf,fd->bsd", h, w2)

    x = A_x
    g = _sigmoid((x * gate_w).sum(-1, keepdims=True))
    a = _A_ref(x, A_k_cache, A_v_cache, A_wq, A_wo)
    b = _B_ref(x, B_w1, B_w2)
    return g * a + (1 - g) * b
```

```python
import re

TRANS = ("v_exp_f32", "v_log_f32", "v_rcp_f32", "v_rsq_f32", "v_sqrt_f32", "v_sin_f32", "v_cos_f32")

def regs_of(tok):
    tok = tok.strip()
    tok = re.sub(r"^-|^abs\(|\)$|^\|| \|$", "", tok)
    m = re.fullmatch(r"([vs])(\d+)", tok)
    if m:
        return {(m.group(1), int(m.group(2)))}
    m = re.fullmatch(r"([vs])\[(\d+):(\d+)\]", tok)
    if m:
        return {(m.group(1), i) for i in range(int(m.group(2)), int(m.group(3)) + 1)}
    if tok == "vcc":
        return {("s", 106), ("s", 107)}
    if tok == "exec":
        return {("s", 126), ("s", 127)}
    return set()

class Ins:
    def __init__(self, text):
        self.text = text
        parts = text.split(None, 1)
        self.op = parts[0]
        rest = parts[1] if len(parts) > 1 else ""
        ops = [o.strip() for o in re.split(r",(?![^\[]*\])", rest)] if rest else []
        if ops:
            last = ops[-1].split()
            ops[-1] = last[0] if last else ""
            self.mods = " ".join(last[1:])
        else:
            self.mods = ""
        self.ops = ops
        op = self.op
        self.valu = op.startswith("v_")
        self.dpp = "_dpp" in op
        self.perm = op.startswith("v_permlane")
        self.dot = op.startswith("v_dot")
        self.trans = any(op.startswith(t) for t in TRANS)
        self.rdlane = op.startswith("v_readlane") or op.startswith("v_readfirstlane")
        self.vmem = op.startswith("buffer_") or op.startswith("global_")
        self.ds = op.startswith("ds_")
        self.store = self.vmem and ("store" in op)
        self.w = set(); self.r = set()
        if self.valu:
            if self.perm and "swap" in op:
                self.w = regs_of(ops[0]) | regs_of(ops[1]); self.r = set(self.w)
            elif op.startswith("v_cmp"):
                self.w = regs_of(ops[0])
                for o in ops[1:]: self.r |= regs_of(o)
            else:
                self.w = regs_of(ops[0])
                for o in ops[1:]: self.r |= regs_of(o)
                if op.startswith("v_dot2c") or op.startswith("v_fmac") or self.dpp:
                    self.r |= self.w
                if op.startswith("v_cndmask") and len(ops) == 3:
                    self.r |= regs_of("vcc")
                if "_co_" in op:
                    self.w |= regs_of(ops[1])
        elif self.vmem:
            if "load" in op and "lds" not in self.mods:
                self.w = regs_of(ops[0])
                for o in ops[1:]: self.r |= regs_of(o)
            else:
                for o in ops: self.r |= regs_of(o)
        elif self.ds:
            if op.startswith("ds_read") or op.startswith("ds_bpermute") or op.startswith("ds_swizzle") or "rtn" in op:
                self.w = regs_of(ops[0])
                for o in ops[1:]: self.r |= regs_of(o)
            else:
                for o in ops: self.r |= regs_of(o)
        self.slots = 1
        if op == "s_nop":
            self.slots = int(ops[0], 0) + 1

def need(p, c):
    n = 0
    pv = {x for x in p.w if x[0] == "v"}
    ps = {x for x in p.w if x[0] == "s"}
    if p.valu:
        if c.dpp and pv & c.r: n = max(n, 2)
        if c.perm and pv & c.r: n = max(n, 2)
        if c.rdlane and pv & c.r: n = max(n, 1)
        if p.trans and c.valu and not c.trans and pv & c.r: n = max(n, 1)
        if p.trans and (c.vmem or c.ds) and pv & c.r: n = max(n, 1)
        if p.dot and pv & (c.r | c.w):
            same = c.op.replace("_dpp", "").replace("_e32", "") == p.op.replace("_dpp", "").replace("_e32", "")
            srcab = set()
            if c.dot:
                for o in c.ops[1:3]: srcab |= regs_of(o)
            if not (same and not (pv & srcab)):
                n = max(n, 3)
        if ps:
            if c.valu and ps & c.r: n = max(n, 2 if not c.rdlane else 4)
            if c.vmem and ps & c.r: n = max(n, 5)
            if (not c.valu and not c.vmem and not c.ds) and c.op.startswith("s_") and not c.op.startswith("s_cbranch") and not c.op.startswith("s_nop") and not c.op.startswith("s_waitcnt"):
                rr = set()
                for o in c.ops: rr |= regs_of(o)
                if ps & rr: n = max(n, 1)
            if ("s", 126) in ps and c.dpp: n = max(n, 5)
    if p.store and ("x4" in p.op or "x3" in p.op):
        data = regs_of(p.ops[0]) if p.op.startswith("buffer") else regs_of(p.ops[1])
        if data & c.w: n = max(n, 2)
    return n

class Asm:
    def __init__(self):
        self.lines = []
        self.hist = []
        self.vm = []
        self.nlabel = 0
    def raw(self, s):
        self.lines.append(s)
    def label(self, name):
        self.lines.append(name + ":")
    def newlabel(self, pfx="L"):
        self.nlabel += 1
        return f"{pfx}_{self.nlabel}"
    def __call__(self, s, tag=None, count=True):
        for l in s.strip("\n").split("\n"):
            l = l.split(";")[0].strip()
            if not l:
                continue
            if l.endswith(":"):
                self.label(l[:-1]); continue
            ins = Ins(l)
            dist = 0; pad = 0
            for p in reversed(self.hist):
                nd = need(p, ins)
                if nd > dist:
                    pad = max(pad, nd - dist)
                dist += p.slots
                if dist >= 6: break
            if pad:
                nop = Ins(f"s_nop {pad-1}")
                self.lines.append("    " + nop.text); self.hist.append(nop)
            self.lines.append("    " + l)
            self.hist.append(ins)
            self.hist = self.hist[-8:]
            if ins.vmem and count:
                self.vm.append(tag)
    def c(self, s):
        self.lines.append("    ; " + s)
    def wait_vm(self, tag):
        idx = max(i for i, t in enumerate(self.vm) if t == tag)
        n = len(self.vm) - 1 - idx
        assert n <= 63, n
        self(f"s_waitcnt vmcnt({n})")
        self.vm = self.vm[idx + 1:]
    def wait_vm_all(self):
        self("s_waitcnt vmcnt(0)")
        self.vm = []
    def text(self):
        return "\n".join(self.lines) + "\n"
```

```python
NAME = "gated_mix__mha_block_cached__dense_activation_relu__decode"
KLABEL = NAME + "_kernel"

class Asm:
    def __init__(self):
        self.lines = []
    def __call__(self, s):
        for l in s.strip("\n").split("\n"):
            self.lines.append("    " + l.strip() if not l.strip().endswith(":") else l.strip())
    def c(self, s):
        self.lines.append("    ; " + s)
    def text(self):
        return "\n".join(self.lines) + "\n"

def wrap(body, grid, block, lds, vgpr, sgpr=102, label=KLABEL, header=""):
    acc = (vgpr + 3) // 4 * 4
    return f"""{header}; @launch grid=({grid},1,1) block=({block},1,1) lds={lds}
.amdgcn_target "amdgcn-amd-amdhsa--gfx950"
.text
.globl {label}
.p2align 8
.type {label},@function
{label}:
{body}
.section .rodata,"a"
.p2align 6
.amdhsa_kernel {label}
  .amdhsa_next_free_vgpr {vgpr}
  .amdhsa_next_free_sgpr {sgpr}
  .amdhsa_accum_offset {acc}
  .amdhsa_group_segment_fixed_size 0
  .amdhsa_kernarg_size 96
  .amdhsa_user_sgpr_count 2
  .amdhsa_user_sgpr_kernarg_segment_ptr 1
  .amdhsa_system_sgpr_workgroup_id_x 1
.end_amdhsa_kernel
"""
```

```python
import sys, math, struct, argparse
from asmlib import Asm
from common import NAME, KLABEL

def f32bits(x):
    return struct.unpack("<I", struct.pack("<f", x))[0]

HEADER = open("cdna_kernels/" + NAME + ".s.ref").read().split("; Override launch")[0]

SLOT = 2048
OP, YA, YB, QS, HS, ML = 0, 1024, 1280, 1536, 1664, 1792
L_QP, L_HP, L_MW, L_LW, L_RDY, L_G, L_OP, L_YB, L_YA, L_END = 0, 1024, 1536, 1568, 1600, 1604, 2048, 10240, 12288, 14336
SK, SV, SWQ, SWO, SW1, SW2, SX, SGW, SOUT, SDBG, SWS = [f"s[{n}:{n+3}]" for n in range(28, 72, 4)]
sH, sB, sS, sW = "s72", "s73", "s74", "s75"
sT0, sT1 = "s76", "s77"
MB1, MB0 = "s[78:79]", "s[80:81]"
sOFF, sSPIN = "s82", "s83"
STAMP0 = 84
vTID, vL, vKV = "v0", "v1", "v2"
vA0, vA1, vA2, vA3, vA4 = "v3", "v4", "v5", "v6", "v7"
Q0 = 8
ACC = 12
P0 = 20
F = 24
COL = 25
T = 32
VE = 64
KR = 128

def gen(NK0=8, NVE=16, pol="nt", wpol="", stamps=False, pattern="wint4", mlpos=4, spin=200000):
    a = Asm()
    NVL = 32 - NVE
    def stamp(i):
        if stamps:
            a(f"s_memrealtime s[{STAMP0+2*i}:{STAMP0+2*i+1}]")
    def srd(dst, src, size):
        n = int(dst[2:dst.index(":")])
        a(f"s_mov_b32 s{n}, s{src}\ns_mov_b32 s{n+1}, s{src+1}\ns_mov_b32 s{n+2}, {size}\ns_mov_b32 s{n+3}, 0x20000")
    cur = [None]
    def kv_off(j):
        if pattern == "wint4":
            return (j // 4) * 32768 + (j % 4) * 1024
        if pattern == "cont":
            return j * 1024
        raise ValueError
    def kv_load(srdn, j, reg, tag):
        off = kv_off(j)
        so = off // 4096 * 4096
        if cur[0] != so:
            a(f"s_mov_b32 {sOFF}, {so}")
            cur[0] = so
        a(f"buffer_load_dwordx4 v[{reg}:{reg+3}], {vKV}, {srdn}, {sOFF} offen offset:{off % 4096} {pol}", tag=tag)
    def red8(acc, t):
        for k in range(4):
            a(f"v_permlane32_swap_b32 v{acc+k}, v{acc+k+4}")
        for k in range(4):
            a(f"v_add_f32 v{acc+k}, v{acc+k}, v{acc+k+4}")
        for k in range(2):
            a(f"v_permlane16_swap_b32 v{acc+k}, v{acc+k+2}")
        for k in range(2):
            a(f"v_add_f32 v{acc+k}, v{acc+k}, v{acc+k+2}")
        a(f"v_add_f32_dpp v{acc}, v{acc}, v{acc} row_ror:8 row_mask:0xf bank_mask:0x3")
        a(f"v_add_f32_dpp v{acc}, v{acc+1}, v{acc+1} row_ror:8 row_mask:0xf bank_mask:0xc")
    def gemv_step(acc, wreg, lo, hi, first):
        for i in range(4):
            if first:
                a(f"v_dot2_f32_bf16 v{acc+2*i}, v{wreg+i}, v{lo}, 0")
                a(f"v_dot2_f32_bf16 v{acc+2*i+1}, v{wreg+i}, v{hi}, 0")
            else:
                a(f"v_dot2_f32_bf16 v{acc+2*i}, v{wreg+i}, v{lo}, v{acc+2*i}")
                a(f"v_dot2_f32_bf16 v{acc+2*i+1}, v{wreg+i}, v{hi}, v{acc+2*i+1}")
    def allred(op, v, t, bits=6):
        a(f"{op}_dpp v{v}, v{v}, v{v} quad_perm:[1,0,3,2] row_mask:0xf bank_mask:0xf")
        a(f"{op}_dpp v{v}, v{v}, v{v} quad_perm:[2,3,0,1] row_mask:0xf bank_mask:0xf")
        a(f"{op}_dpp v{v}, v{v}, v{v} row_half_mirror row_mask:0xf bank_mask:0xf")
        if bits > 3:
            a(f"{op}_dpp v{v}, v{v}, v{v} row_ror:8 row_mask:0xf bank_mask:0xf")
            a(f"v_mov_b32 v{t}, v{v}\nv_permlane16_swap_b32 v{v}, v{t}\n{op} v{v}, v{v}, v{t}")
            a(f"v_mov_b32 v{t}, v{v}\nv_permlane32_swap_b32 v{v}, v{t}\n{op} v{v}, v{v}, v{t}")
    def poll_check(regs, reissue, t):
        lt, ld = a.newlabel("L_poll"), a.newlabel("L_pdone")
        a(f"{lt}:")
        if len(regs) == 1:
            a(f"v_cmp_eq_u32 vcc, -1, v{regs[0]}")
        else:
            rs = list(regs)
            first = True
            while len(rs) > 1 or first:
                if first:
                    if len(rs) >= 3:
                        a(f"v_max3_u32 v{t}, v{rs[0]}, v{rs[1]}, v{rs[2]}"); rs = rs[3:]
                    else:
                        a(f"v_max_u32 v{t}, v{rs[0]}, v{rs[1]}"); rs = rs[2:]
                    first = False
                    if not rs: break
                    continue
                a(f"v_max3_u32 v{t}, v{t}, v{rs[0]}, v{rs[1]}"); rs = rs[2:]
            if rs:
                a(f"v_max_u32 v{t}, v{t}, v{rs[0]}")
            a(f"v_cmp_eq_u32 vcc, -1, v{t}")
        a(f"s_cbranch_vccz {ld}")
        a(f"s_cmp_eq_u32 {sSPIN}, 0")
        a(f"s_cbranch_scc1 {ld}")
        a(f"s_sub_u32 {sSPIN}, {sSPIN}, 1")
        a(reissue, count=False)
        a("s_waitcnt vmcnt(0)")
        a(f"s_branch {lt}")
        a(f"{ld}:")

    a(f"""
    s_cmp_ge_u32 s2, 256
    s_cbranch_scc1 L_end
    s_load_dwordx16 s[4:19], s[0:1], 0
    s_load_dwordx8 s[20:27], s[0:1], 64
    """)
    stamp(0)
    a(f"""
    v_lshrrev_b32 v3, 6, v0
    v_and_b32 {vL}, 63, v0
    v_readfirstlane_b32 {sW}, v3
    s_and_b32 {sH}, s2, 7
    s_lshl_b32 {sH}, {sH}, 1
    s_bfe_u32 {sT0}, s2, 0x10003
    s_add_u32 {sH}, {sH}, {sT0}
    s_bfe_u32 {sB}, s2, 0x10004
    s_lshr_b32 {sS}, s2, 5
    s_mov_b32 {sSPIN}, {spin}
    s_mov_b32 s78, 0xcccccccc
    s_mov_b32 s79, 0xcccccccc
    s_mov_b32 s80, 0xaaaaaaaa
    s_mov_b32 s81, 0xaaaaaaaa
    ; K/V voffset
    s_lshl_b32 {sT0}, {sB}, 4
    s_add_u32 {sT0}, {sT0}, {sH}
    s_lshl_b32 {sT0}, {sT0}, 3
    s_add_u32 {sT0}, {sT0}, {sS}
    s_lshl_b32 {sT0}, {sT0}, 18
    s_lshl_b32 {sT1}, {sW}, {12 if pattern == 'wint4' else 15}
    s_add_u32 {sT0}, {sT0}, {sT1}
    v_lshlrev_b32 {vKV}, 4, {vL}
    v_add_u32 {vKV}, {sT0}, {vKV}
    v_and_b32 v{T}, 7, {vL}
    v_lshlrev_b32 v{COL}, 5, v{T}
    v_lshrrev_b32 v{T}, 5, {vL}
    v_lshl_add_u32 v{COL}, v{T}, 4, v{COL}
    v_bfe_u32 v{T}, {vL}, 4, 1
    v_lshl_add_u32 v{COL}, v{T}, 3, v{COL}
    v_bfe_u32 v{T}, {vL}, 3, 1
    v_lshl_add_u32 v{COL}, v{T}, 2, v{COL}
    s_cmp_eq_u32 {sW}, 7
    s_cbranch_scc1 L_service
    """)
    WQr, W1r, XQ, XF, AQ, AF = VE, VE + 16, VE + 24, VE + 28, VE + 32, VE + 40
    a(f"""
    ; rows 64w + ..
    s_lshl_b32 {sT0}, {sW}, 6
    v_lshrrev_b32 v{T}, 2, {vL}
    v_add_u32 v{T}, {sT0}, v{T}                 ; q row (t=0)
    v_lshrrev_b32 v{T+1}, 1, {vL}
    v_add_u32 v{T+1}, {sT0}, v{T+1}             ; f1 row (t=0)
    s_mul_i32 {sT0}, {sB}, 896
    v_lshl_add_u32 {vA0}, v{T}, 1, {sT0}
    v_lshl_add_u32 {vA1}, v{T+1}, 1, {sT0}
    s_lshl_b32 {sT0}, {sH}, 9
    s_lshl_b32 {sT1}, {sS}, 6
    s_add_u32 {sT0}, {sT0}, {sT1}
    v_lshlrev_b32 {vA2}, 13, v{T}
    v_and_b32 v{T+2}, 3, {vL}
    v_lshl_add_u32 {vA2}, v{T+2}, 4, {vA2}
    v_add_u32 {vA2}, {sT0}, {vA2}
    s_mul_i32 {sT0}, {sH}, 224
    s_lshl_b32 {sT1}, {sS}, 5
    s_add_u32 {sT0}, {sT0}, {sT1}
    v_mul_u32_u24 {vA3}, 3584, v{T+1}
    v_and_b32 v{T+2}, 1, {vL}
    v_lshl_add_u32 {vA3}, v{T+2}, 4, {vA3}
    v_add_u32 {vA3}, {sT0}, {vA3}               ; w1 addr
    s_waitcnt lgkmcnt(0)
    """)
    srd(SX, 4, 1792); srd(SWQ, 10, 448 * 8192); srd(SW1, 16, 448 * 3584); srd(SK, 6, 1 << 26)
    for t in range(4):
        a(f"buffer_load_ushort v{XQ+t}, {vA0}, {SX}, 0 offen offset:{32*t}", tag="x")
    a(f"s_cmp_eq_u32 {sS}, 7\ns_cbranch_scc1 L_nof1")
    for t in range(2):
        a(f"buffer_load_ushort v{XF+t}, {vA1}, {SX}, 0 offen offset:{64*t}", count=False)
    a(f"s_mov_b32 {sT0}, {32*3584}")
    a(f"buffer_load_dwordx4 v[{W1r}:{W1r+3}], {vA3}, {SW1}, 0 offen {wpol}", count=False)
    a(f"buffer_load_dwordx4 v[{W1r+4}:{W1r+7}], {vA3}, {SW1}, {sT0} offen {wpol}", count=False)
    a("L_nof1:")
    for t in range(4):
        if t:
            a(f"s_mov_b32 {sT0}, {t*16*8192}")
        a(f"buffer_load_dwordx4 v[{WQr+4*t}:{WQr+4*t+3}], {vA2}, {SWQ}, {sT0 if t else 0} offen {wpol}", tag="wq")
    cur[0] = None
    for j in range(NK0):
        kv_load(SK, j, KR + 4 * j, "K")
    srd(SV, 8, 1 << 26); srd(SWO, 12, 4096 * 896); srd(SW2, 18, 1792 * 896)
    srd(SOUT, 22, 1792); srd(SWS, 26, 256 * SLOT); srd(SDBG, 24, 256); srd(SGW, 20, 896)
    a.wait_vm("wq")
    for t in range(4):
        a(f"v_lshlrev_b32 v{T+t}, 16, v{XQ+t}")
    for t in range(2):
        a(f"v_lshlrev_b32 v{T+4+t}, 16, v{XF+t}")
    for t in range(4):
        gemv_step(AQ, WQr + 4 * t, XQ + t, T + t, t == 0)
    for t in range(2):
        gemv_step(AF, W1r + 4 * t, XF + t, T + 4 + t, t == 0)
    red8(AQ, T); red8(AF, T)
    a(f"v_add_f32_dpp v{AQ}, v{AQ}, v{AQ} row_shl:4 row_mask:0xf bank_mask:0x5")
    a(f"v_add_f32_dpp v{AF}, v{AF}, v{AF} row_shl:4 row_mask:0xf bank_mask:0x5")
    a(f"v_add_f32_dpp v{AF}, v{AF}, v{AF} quad_perm:[2,3,0,1] row_mask:0xf bank_mask:0xf")
    a(f"""
    v_and_b32 v{T}, 0x1c, v{COL}
    v_and_b32 v{T+1}, 3, {vL}
    v_lshl_add_u32 v{T+1}, v{T+1}, 5, v{T}
    s_lshl_b32 {sT0}, {sW}, 7
    v_add_u32 v{T+1}, {sT0}, v{T+1}
    v_and_b32 v{T+2}, 1, {vL}
    v_lshl_add_u32 v{T+2}, v{T+2}, 5, v{T}
    s_lshl_b32 {sT0}, {sW}, 6
    v_add_u32 v{T+2}, {sT0}, v{T+2}
    s_mov_b32 exec_lo, 0x0f0f0f0f
    s_mov_b32 exec_hi, 0x0f0f0f0f
    ds_write_b32 v{T+1}, v{AQ} offset:{L_QP}
    ds_write_b32 v{T+2}, v{AF} offset:{L_HP}
    s_mov_b64 exec, -1
    s_waitcnt lgkmcnt(0)
    s_barrier
    """)
    stamp(1)
    a(f"""
    s_cmp_gt_u32 {sW}, 1
    s_cbranch_scc1 L_main
    s_lshl_b32 {sT1}, s2, 11
    v_lshlrev_b32 v{T}, 3, {vL}
    v_lshl_add_u32 v{T+1}, {vL}, 2, {sT1}
    s_cmp_eq_u32 {sW}, 1
    s_cbranch_scc1 L_pubh
    s_mov_b64 exec, 0xffff
    """)
    for w in range(7):
        a(f"ds_read_b64 v[{T+2+2*w}:{T+3+2*w}], v{T} offset:{L_QP+128*w}")
    a("s_waitcnt lgkmcnt(0)")
    for w in range(1, 7):
        a(f"v_add_f32 v{T+2}, v{T+2}, v{T+2+2*w}\nv_add_f32 v{T+3}, v{T+3}, v{T+3+2*w}")
    a(f"""
    v_cvt_pk_bf16_f32 v{T+2}, v{T+2}, v{T+3}
    v_min_u32 v{T+2}, -2, v{T+2}
    """)
    a(f"buffer_store_dword v{T+2}, v{T+1}, {SWS}, 0 offen offset:{QS} sc1", count=False)
    a(f"""
    s_mov_b64 exec, -1
    s_branch L_main
L_pubh:
    s_cmp_eq_u32 {sS}, 7
    s_cbranch_scc1 L_main
    s_mov_b64 exec, 0xff
    """)
    for w in range(7):
        a(f"ds_read_b64 v[{T+2+2*w}:{T+3+2*w}], v{T} offset:{L_HP+64*w}")
    a("s_waitcnt lgkmcnt(0)")
    for w in range(1, 7):
        a(f"v_add_f32 v{T+2}, v{T+2}, v{T+2+2*w}\nv_add_f32 v{T+3}, v{T+3}, v{T+3+2*w}")
    a(f"""
    v_maximum3_f32 v{T+2}, v{T+2}, 0, 0
    v_maximum3_f32 v{T+3}, v{T+3}, 0, 0
    v_cvt_pk_bf16_f32 v{T+2}, v{T+2}, v{T+3}
    v_min_u32 v{T+2}, -2, v{T+2}
    """)
    a(f"buffer_store_dword v{T+2}, v{T+1}, {SWS}, 0 offen offset:{HS} sc1", count=False)
    a("s_mov_b64 exec, -1\ns_branch L_main")
    vm_at_main = list(a.vm)

    a("L_service:")
    a.vm = []
    a(f"""
    v_mov_b32 v{T}, 0
    v_mov_b32 v{T+1}, {L_RDY}
    ds_write_b32 v{T+1}, v{T}
    s_lshl_b32 {sT0}, s2, 11
    v_lshl_add_u32 {vA0}, {vL}, 4, {sT0}
    v_mov_b32 v{T+4}, -1
    v_mov_b32 v{T+5}, -1
    v_mov_b32 v{T+6}, -1
    v_mov_b32 v{T+7}, -1
    s_mul_i32 {sT0}, {sB}, 896
    v_lshlrev_b32 {vA1}, 4, {vL}
    v_add_u32 {vA2}, {sT0}, {vA1}
    v_cmp_gt_u32 vcc, 56, {vL}
    v_mov_b32 v{T+2}, 0x10000
    v_cndmask_b32 {vA2}, v{T+2}, {vA2}, vcc
    s_waitcnt lgkmcnt(0)
    """)
    srd(SWS, 26, 256 * SLOT)
    a(f"buffer_store_dwordx4 v[{T+4}:{T+7}], {vA0}, {SWS}, 0 offen sc1")
    a(f"buffer_store_dwordx4 v[{T+4}:{T+7}], {vA0}, {SWS}, 0 offen offset:1024 sc1")
    srd(SX, 4, 1792); srd(SGW, 20, 896)
    a(f"buffer_load_dwordx4 v[{T+8}:{T+11}], {vA2}, {SX}, 0 offen")
    a(f"buffer_load_dwordx4 v[{T+12}:{T+15}], {vA1}, {SGW}, 0 offen")
    srd(SDBG, 24, 256); srd(SK, 6, 1 << 26); srd(SV, 8, 1 << 26); srd(SWO, 12, 4096 * 896); srd(SW2, 18, 1792 * 896)
    srd(SOUT, 22, 1792); srd(SWQ, 10, 448 * 8192); srd(SW1, 16, 448 * 3584)
    a(f"v_mov_b32 v{T}, s2\nv_mov_b32 v{T+1}, 1")
    a.wait_vm_all()
    a("s_mov_b64 exec, 1")
    a(f"buffer_store_byte v{T+1}, v{T}, {SDBG}, 0 offen sc1", count=False)
    a("s_mov_b64 exec, -1")
    a(f"v_mov_b32 v{T+16}, 0")
    for i in range(4):
        x, g = T + 8 + i, T + 12 + i
        a(f"""
        v_lshlrev_b32 v{T+17}, 16, v{x}
        v_lshlrev_b32 v{T+18}, 16, v{g}
        v_and_b32 v{T+19}, 0xffff0000, v{x}
        v_and_b32 v{T+20}, 0xffff0000, v{g}
        v_mul_f32 v{T+17}, v{T+17}, v{T+18}
        v_mul_f32 v{T+19}, v{T+19}, v{T+20}
        v_cvt_pk_bf16_f32 v{T+17}, v{T+17}, v{T+19}
        v_lshlrev_b32 v{T+18}, 16, v{T+17}
        v_and_b32 v{T+19}, 0xffff0000, v{T+17}
        v_add_f32 v{T+16}, v{T+16}, v{T+18}
        v_add_f32 v{T+16}, v{T+16}, v{T+19}
        """)
    allred("v_add_f32", T + 16, T + 17)
    a(f"""
    v_cvt_pk_bf16_f32 v{T+16}, 0, v{T+16}
    v_mul_f32 v{T+16}, {hex(f32bits(-math.log2(math.e)))}, v{T+16}
    v_exp_f32 v{T+16}, v{T+16}
    v_add_f32 v{T+16}, 1.0, v{T+16}
    v_rcp_f32 v{T+16}, v{T+16}
    v_cvt_pk_bf16_f32 v{T+16}, 0, v{T+16}
    v_mov_b32 v{T+17}, {L_G}
    ds_write_b32 v{T+17}, v{T+16}
    s_waitcnt lgkmcnt(0)
    s_barrier
    """)
    stamp(1)
    cur[0] = None
    for j in range(NK0):
        kv_load(SK, j, KR + 4 * j, "K")
    a(f"""
    v_lshlrev_b32 v{T}, 2, {vL}
    s_mov_b32 {sT0}, 0x01010101
L_fl:
    """)
    a(f"buffer_load_dword v{T+1}, v{T}, {SDBG}, 0 offen sc1", count=False)
    a(f"""
    s_waitcnt vmcnt(0)
    v_cmp_ne_u32 vcc, {sT0}, v{T+1}
    s_cbranch_vccz L_fld
    s_cmp_eq_u32 {sSPIN}, 0
    s_cbranch_scc1 L_fld
    s_sub_u32 {sSPIN}, {sSPIN}, 1
    s_branch L_fl
L_fld:
    v_mov_b32 v{T}, 1
    v_mov_b32 v{T+1}, {L_RDY}
    ds_write_b32 v{T+1}, v{T}
    """)
    assert a.vm == vm_at_main, (a.vm, vm_at_main)

    a("L_main:")
    cur[0] = None
    for j in range(NK0, 32):
        kv_load(SK, j, KR + 4 * j, "K")
    a(f"""
    s_and_b32 {sT0}, s2, 31
    s_lshl_b32 {sT0}, {sT0}, 11
    v_bfe_u32 v{T}, {vL}, 2, 3
    v_lshlrev_b32 {vA0}, 16, v{T}
    v_and_b32 v{T}, 3, {vL}
    v_lshl_add_u32 {vA0}, v{T}, 4, {vA0}
    v_add_u32 {vA0}, {sT0}, {vA0}
    v_and_b32 v{T}, 7, {vL}
    v_lshlrev_b32 {vA1}, 16, v{T}
    v_add_u32 {vA1}, {sT0}, {vA1}
    v_lshrrev_b32 v{T}, 3, {vL}
    v_lshl_add_u32 {vA2}, v{T}, 4, {vA1}
    s_lshl_b32 {sT1}, {sW}, 7
    v_add_u32 {vA2}, {sT1}, {vA2}
    v_mov_b32 v{T+1}, {L_RDY}
L_rdy:
    ds_read_b32 v{T+2}, v{T+1}
    s_waitcnt lgkmcnt(0)
    v_cmp_eq_u32 vcc, 1, v{T+2}
    s_cbranch_vccnz L_rdyd
    s_cmp_eq_u32 {sSPIN}, 0
    s_cbranch_scc1 L_rdyd
    s_sleep 2
    s_sub_u32 {sSPIN}, {sSPIN}, 1
    s_branch L_rdy
L_rdyd:
    """)
    qload = f"buffer_load_dwordx4 v[{Q0}:{Q0+3}], {vA0}, {SWS}, 0 offen offset:{QS} sc1"
    a(qload, tag="q")
    cur[0] = None
    for j in range(NVE):
        kv_load(SV, j, VE + 4 * j, f"V{j}")
    stamp(2)
    a.wait_vm("q")
    poll_check([Q0, Q0 + 1, Q0 + 2, Q0 + 3], qload, T)
    stamp(3)
    def R(j): return KR + 4 * j
    def lvl_combine(level, x, y):
        if level == 0:
            a(f"v_permlane16_swap_b32 v{x}, v{y}\nv_add_f32 v{x}, v{x}, v{y}")
        elif level == 1:
            a(f"v_add_f32_dpp v{x}, v{x}, v{x} row_ror:8 row_mask:0xf bank_mask:0x3")
            a(f"v_add_f32_dpp v{x}, v{y}, v{y} row_ror:8 row_mask:0xf bank_mask:0xc")
        elif level == 2:
            a(f"v_add_f32_dpp v{x}, v{x}, v{x} row_half_mirror row_mask:0xf bank_mask:0x5")
            a(f"v_add_f32_dpp v{x}, v{y}, v{y} row_half_mirror row_mask:0xf bank_mask:0xa")
        else:
            qp = "[2,3,0,1]" if level == 3 else "[1,0,3,2]"
            m = MB1 if level == 3 else MB0
            a(f"v_add_f32_dpp v{x}, v{x}, v{x} quad_perm:{qp} row_mask:0xf bank_mask:0xf")
            a(f"v_add_f32_dpp v{y}, v{y}, v{y} quad_perm:{qp} row_mask:0xf bank_mask:0xf")
            a(f"v_cndmask_b32 v{x}, v{x}, v{y}, {m}")
    for g0 in range(0, 32, 8):
        for i in range(4):
            for j in range(g0, g0 + 8):
                src2 = "0" if i == 0 else f"v{R(j)}"
                a(f"v_dot2_f32_bf16 v{R(j)}, v{R(j)+i}, v{Q0+i}, {src2}")
    for level in range(5):
        st = 1 << level
        if level == 0:
            for j in range(0, 32, 2):
                a(f"v_permlane16_swap_b32 v{R(j)}, v{R(j+1)}")
            for j in range(0, 32, 2):
                a(f"v_add_f32 v{R(j)}, v{R(j)}, v{R(j+1)}")
        else:
            for j in range(0, 32, 2 * st):
                lvl_combine(level, R(j), R(j + st))
    S = T + 8
    a(f"""
    v_cvt_pk_bf16_f32 v{S}, 0, v{R(0)}
    v_mov_b32 v{T}, v{S}
    """)
    allred("v_max_f32", T, T + 1)
    a(f"""
    s_lshl_b32 {sT0}, {sW}, 2
    v_mov_b32 v{T+2}, {sT0}
    ds_write_b32 v{T+2}, v{T} offset:{L_MW}
    v_mov_b32 v{T+3}, 0
    s_waitcnt lgkmcnt(0)
    s_barrier
    ds_read_b128 v[{T+12}:{T+15}], v{T+3} offset:{L_MW}
    ds_read_b128 v[{T+16}:{T+19}], v{T+3} offset:{L_MW+16}
    s_waitcnt lgkmcnt(0)
    v_max3_f32 v{T}, v{T+12}, v{T+13}, v{T+14}
    v_max3_f32 v{T}, v{T}, v{T+15}, v{T+16}
    v_max3_f32 v{T}, v{T}, v{T+17}, v{T+18}
    v_max_f32 v{T}, v{T}, v{T+19}
    v_sub_f32 v{S}, v{S}, v{T}
    v_mul_f32 v{S}, {hex(f32bits(math.log2(math.e)/16))}, v{S}
    v_exp_f32 v{S}, v{S}
    v_mov_b32 v{T+4}, v{S}
    """)
    allred("v_add_f32", T + 4, T + 1)
    a(f"""
    ds_write_b32 v{T+2}, v{T+4} offset:{L_LW}
    v_cvt_pk_bf16_f32 v{P0}, v{S}, 0
    v_cvt_pk_bf16_f32 v{P0+1}, 0, v{S}
    v_mov_b32 v{P0+2}, v{P0}
    v_mov_b32 v{P0+3}, v{P0+1}
    v_permlane16_swap_b32 v{P0}, v{P0+2}
    v_permlane16_swap_b32 v{P0+1}, v{P0+3}
    s_waitcnt lgkmcnt(0)
    s_barrier
    s_cmp_lg_u32 {sW}, 0
    s_cbranch_scc1 L_noml
    ds_read_b128 v[{T+12}:{T+15}], v{T+3} offset:{L_LW}
    ds_read_b128 v[{T+16}:{T+19}], v{T+3} offset:{L_LW+16}
    s_lshl_b32 {sT0}, s2, 11
    v_mov_b32 v{T+2}, {sT0}
    s_waitcnt lgkmcnt(0)
    v_add_f32 v{T+12}, v{T+12}, v{T+13}
    v_add_f32 v{T+14}, v{T+14}, v{T+15}
    v_add_f32 v{T+16}, v{T+16}, v{T+17}
    v_add_f32 v{T+18}, v{T+18}, v{T+19}
    v_add_f32 v{T+12}, v{T+12}, v{T+14}
    v_add_f32 v{T+16}, v{T+16}, v{T+18}
    v_add_f32 v{T+1}, v{T+12}, v{T+16}
    v_min_u32 v{T}, -2, v{T}
    v_min_u32 v{T+1}, -2, v{T+1}
    s_mov_b64 exec, 1
    """)
    a(f"buffer_store_dwordx2 v[{T}:{T+1}], v{T+2}, {SWS}, 0 offen offset:{ML} sc1", count=False)
    a("s_mov_b64 exec, -1\nL_noml:")
    stamp(4)
    VL, WOr, W2r, HP_, MLr = KR, KR + 4 * NVL, KR + 4 * NVL + 16, KR + 4 * NVL + 24, KR + 4 * NVL + 26
    assert MLr + 2 <= 256
    ACB = T + 16
    a(f"""
    v_lshrrev_b32 v{T}, 3, {vL}                  ; r
    v_and_b32 v{T+1}, 7, {vL}                    ; c
    s_mul_i32 {sT1}, {sS}, 112
    v_lshl_add_u32 v{T+1}, v{T+1}, 4, {sT1}
    s_lshl_b32 {sT0}, {sH}, 8
    s_lshl_b32 {sT1}, {sW}, 5
    s_add_u32 {sT0}, {sT0}, {sT1}
    v_lshl_add_u32 v{T+2}, v{T}, 2, {sT0}
    v_mul_u32_u24 v{T+2}, 896, v{T+2}
    v_add_u32 {vA3}, v{T+2}, v{T+1}
    s_and_b32 {sT0}, s2, 31
    s_lshl_b32 {sT0}, {sT0}, 11
    s_lshl_b32 {sT1}, {sW}, 16
    s_add_u32 {sT0}, {sT0}, {sT1}
    v_lshl_add_u32 {vA4}, v{T}, 2, {sT0}
    s_cmp_eq_u32 {sW}, 7
    s_cbranch_scc1 L_now2
    ; w2 rows 112h + 16w + 2r + j
    s_mul_i32 {sT0}, {sH}, 112
    s_lshl_b32 {sT1}, {sW}, 4
    s_add_u32 {sT0}, {sT0}, {sT1}
    v_lshl_add_u32 v{T+2}, v{T}, 1, {sT0}
    v_mul_u32_u24 v{T+2}, 896, v{T+2}
    v_add_u32 v{T+2}, v{T+2}, v{T+1}
    """)
    hload = f"buffer_load_dword v{HP_}, {vA4}, {SWS}, 0 offen offset:{HS} sc1"
    a(hload, count=False)
    a(f"buffer_load_dwordx4 v[{W2r}:{W2r+3}], v{T+2}, {SW2}, 0 offen {wpol}", count=False)
    a(f"buffer_load_dwordx4 v[{W2r+4}:{W2r+7}], v{T+2}, {SW2}, 0 offen offset:896 {wpol}", count=False)
    a("L_now2:")
    for j in range(4):
        a(f"buffer_load_dwordx4 v[{WOr+4*j}:{WOr+4*j+3}], {vA3}, {SWO}, 0 offen offset:{896*j} {wpol}", tag="wo")
    for i in range(8):
        a(f"v_mov_b32 v{ACC+i}, 0")
    def vreg(j): return VE + 4 * j if j < NVE else VL + 4 * (j - NVE)
    def pv(j):
        a.wait_vm(f"V{j}")
        pr = P0 + 2 * (j & 1)
        n = ((j >> 1) & 1) << 3 | ((j >> 2) & 1) << 2 | ((j >> 3) & 1) << 1 | ((j >> 4) & 1)
        for i in range(4):
            a(f"v_dot2c_f32_bf16_dpp v{ACC+2*i}, v{pr}, v{vreg(j)+i} row_newbcast:{n} row_mask:0xf bank_mask:0xf")
            a(f"v_dot2c_f32_bf16_dpp v{ACC+2*i+1}, v{pr+1}, v{vreg(j)+i} row_newbcast:{n} row_mask:0xf bank_mask:0xf")
    mlload = f"buffer_load_dwordx2 v[{MLr}:{MLr+1}], {vA1}, {SWS}, 0 offen offset:{ML} sc1"
    cur[0] = None
    done = 0
    for k in range(NVL):
        if k == NVL - mlpos:
            a(mlload, tag="ml")
        kv_load(SV, NVE + k, VL + 4 * k, f"V{NVE+k}")
        if done < NVE:
            pv(done); done += 1
    while done < NVE:
        pv(done); done += 1
    a.wait_vm("wo")
    a(f"s_cmp_eq_u32 {sW}, 7\ns_cbranch_scc1 L_now2b")
    poll_check([HP_], hload, T)
    a(f"""
    v_and_b32 v{T}, 0xffff, v{HP_}
    v_lshlrev_b32 v{T+1}, 16, v{HP_}
    v_lshrrev_b32 v{T+2}, 16, v{HP_}
    v_and_b32 v{T+3}, 0xffff0000, v{HP_}
    """)
    gemv_step(ACB, W2r, T, T + 1, True)
    gemv_step(ACB, W2r + 4, T + 2, T + 3, False)
    red8(ACB, T)
    a(f"""
    s_lshl_b32 {sT0}, {sW}, 8
    v_add_u32 v{T}, {sT0}, v{COL}
    ds_write_b32 v{T}, v{ACB} offset:{L_YB}
L_now2b:
    """)
    while done < 32:
        if done == 32 - mlpos:
            a.wait_vm("ml")
            poll_check([MLr, MLr + 1], mlload, T)
            a(f"v_mov_b32 v{T}, v{MLr}")
            allred("v_max_f32", T, T + 1, bits=3)
            a(f"""
            v_sub_f32 v{T}, v{MLr}, v{T}
            v_mul_f32 v{T}, {hex(f32bits(math.log2(math.e)/16))}, v{T}
            v_exp_f32 v{T}, v{T}
            v_mul_f32 v{T+1}, v{T}, v{MLr+1}
            """)
            allred("v_add_f32", T + 1, T + 2, bits=3)
            a(f"v_rcp_f32 v{T+1}, v{T+1}\nv_mul_f32 v{F}, v{T}, v{T+1}")
        pv(done); done += 1
    stamp(5)
    for k in range(4):
        a(f"v_permlane32_swap_b32 v{ACC+k}, v{ACC+k+4}")
    for k in range(4):
        a(f"v_add_f32 v{ACC+k}, v{ACC+k}, v{ACC+k+4}")
    a(f"""
    v_and_b32 v{T}, 31, {vL}
    v_lshlrev_b32 v{T}, 5, v{T}
    v_lshrrev_b32 v{T+1}, 5, {vL}
    v_lshl_add_u32 v{T}, v{T+1}, 4, v{T}
    s_lshl_b32 {sT0}, {sW}, 10
    v_add_u32 v{T}, {sT0}, v{T}
    ds_write_b128 v{T}, v[{ACC}:{ACC+3}] offset:{L_OP}
    s_lshl_b32 {sT1}, s2, 11
    s_waitcnt lgkmcnt(0)
    s_barrier
    s_cmp_gt_u32 {sW}, 1
    s_cbranch_scc1 L_hop1
    s_cmp_eq_u32 {sW}, 1
    s_cbranch_scc1 L_pubyb
    v_lshlrev_b32 v{T}, 4, {vL}
    """)
    B = VE
    for w in range(8):
        a(f"ds_read_b128 v[{B+4*w}:{B+4*w+3}], v{T} offset:{L_OP+1024*w}")
    a(f"v_add_u32 v{T+1}, {sT1}, v{T}")
    a("s_waitcnt lgkmcnt(0)")
    for st in (1, 2, 4):
        for w in range(0, 8, 2 * st):
            for i in range(4):
                a(f"v_add_f32 v{B+4*w+i}, v{B+4*w+i}, v{B+4*(w+st)+i}")
    for i in range(4):
        a(f"v_min_u32 v{B+i}, -2, v{B+i}")
    a(f"buffer_store_dwordx4 v[{B}:{B+3}], v{T+1}, {SWS}, 0 offen offset:{OP} sc1", count=False)
    a(f"""
    s_branch L_hop1
L_pubyb:
    v_lshlrev_b32 v{T}, 2, {vL}
    """)
    for w in range(7):
        a(f"ds_read_b32 v{B+w}, v{T} offset:{L_YB+256*w}")
    a(f"v_add_u32 v{T+1}, {sT1}, v{T}")
    a("s_waitcnt lgkmcnt(0)")
    for w in range(1, 7):
        a(f"v_add_f32 v{B}, v{B}, v{B+w}")
    a(f"v_min_u32 v{B}, -2, v{B}")
    a(f"buffer_store_dword v{B}, v{T+1}, {SWS}, 0 offen offset:{YB} sc1", count=False)
    a("L_hop1:")
    O = B + 32
    opload = f"buffer_load_dwordx4 v[{O}:{O+3}], {vA2}, {SWS}, 0 offen offset:{OP} sc1"
    a(opload, count=False)
    a("s_waitcnt vmcnt(0)")
    poll_check([O, O + 1, O + 2, O + 3], opload, T)
    stamp(6)
    for i in range(4):
        a(f"v_mul_f32 v{O+i}, v{F}, v{O+i}")
    for qp in ("quad_perm:[1,0,3,2]", "quad_perm:[2,3,0,1]", "row_half_mirror"):
        for i in range(4):
            a(f"v_add_f32_dpp v{O+i}, v{O+i}, v{O+i} {qp} row_mask:0xf bank_mask:0xf")
    for i in range(4):
        a(f"v_cvt_pk_bf16_f32 v{O+4+i}, 0, v{O+i}")
    for i in range(4):
        a(f"v_cvt_pk_bf16_f32 v{O+i}, v{O+i}, 0")
    for j in range(4):
        gemv_step(ACC, WOr + 4 * j, O + j, O + 4 + j, j == 0)
    red8(ACC, T)
    a(f"""
    s_lshl_b32 {sT0}, {sW}, 8
    v_add_u32 v{T}, {sT0}, v{COL}
    ds_write_b32 v{T}, v{ACC} offset:{L_YA}
    s_waitcnt lgkmcnt(0)
    s_barrier
    s_cmp_lg_u32 {sW}, 0
    s_cbranch_scc1 L_end
    v_lshlrev_b32 v{T}, 2, {vL}
    """)
    for w in range(8):
        a(f"ds_read_b32 v{B+w}, v{T} offset:{L_YA+256*w}")
    a(f"v_mov_b32 v{T+2}, {L_G}\nds_read_b32 v{T+3}, v{T+2}")
    a(f"v_add_u32 v{T+1}, {sT1}, v{T}")
    a("s_waitcnt lgkmcnt(0)")
    for st in (1, 2, 4):
        for w in range(0, 8, 2 * st):
            a(f"v_add_f32 v{B+w}, v{B+w}, v{B+w+st}")
    a(f"v_min_u32 v{B}, -2, v{B}")
    a(f"buffer_store_dword v{B}, v{T+1}, {SWS}, 0 offen offset:{YA} sc1", count=False)
    a(f"""
    s_lshl_b32 {sT0}, {sS}, 1
    s_add_u32 {sT0}, {sT0}, {sB}
    s_cmp_lg_u32 {sT0}, {sH}
    s_cbranch_scc1 L_fin
    s_and_b32 {sT0}, s2, 0xf0
    s_lshl_b32 {sT0}, {sT0}, 11
    v_lshrrev_b32 v{T}, 4, {vL}
    v_lshlrev_b32 v{T}, 11, v{T}
    v_and_b32 v{T+1}, 15, {vL}
    v_lshl_add_u32 v{T}, v{T+1}, 4, v{T}
    v_add_u32 {vA0}, {sT0}, v{T}
    s_mov_b32 s4, {1*4*SLOT}
    s_mov_b32 s5, {2*4*SLOT}
    s_mov_b32 s6, {3*4*SLOT}
    """)
    YBr, YAr = B + 16, B + 32
    so = ["0", "s4", "s5", "s6"]
    ybl = "\n".join(f"buffer_load_dwordx4 v[{YBr+4*k}:{YBr+4*k+3}], {vA0}, {SWS}, {so[k]} offen offset:{YB} sc1" for k in range(4))
    yal = "\n".join(f"buffer_load_dwordx4 v[{YAr+4*k}:{YAr+4*k+3}], {vA0}, {SWS}, {so[k]} offen offset:{YA} sc1" for k in range(4))
    a(ybl, count=False); a(yal, count=False)
    a(f"""
    v_lshlrev_b32 v{T+4}, 2, v{T+1}
    v_lshrrev_b32 v{T+5}, 5, {vL}
    v_lshl_add_u32 v{T+4}, v{T+5}, 1, v{T+4}
    v_bfe_u32 v{T+5}, {vL}, 4, 1
    v_add_u32 v{T+4}, v{T+4}, v{T+5}
    s_mul_i32 {sT0}, {sB}, 448
    s_mul_i32 {sT1}, {sS}, 56
    s_add_u32 {sT0}, {sT0}, {sT1}
    v_add_lshl_u32 v{T+4}, v{T+4}, {sT0}, 1
    v_cmp_gt_u32 vcc, 14, v{T+1}
    v_mov_b32 v{T+5}, 0x10000
    v_cndmask_b32 v{T+4}, v{T+5}, v{T+4}, vcc
    v_sub_f32 v{T+6}, 1.0, v{T+3}
    v_cvt_pk_bf16_f32 v{T+6}, 0, v{T+6}
    s_waitcnt vmcnt(0)
    """)
    poll_check(list(range(YBr, YBr + 16)), ybl, T)
    poll_check(list(range(YAr, YAr + 16)), yal, T)
    for Y in (YBr, YAr):
        for i in range(4):
            a(f"v_add_f32 v{Y+i}, v{Y+i}, v{Y+4+i}\nv_add_f32 v{Y+8+i}, v{Y+8+i}, v{Y+12+i}")
        for i in range(4):
            a(f"v_add_f32 v{Y+i}, v{Y+i}, v{Y+8+i}")
        a(f"v_permlane32_swap_b32 v{Y}, v{Y+2}\nv_permlane32_swap_b32 v{Y+1}, v{Y+3}")
        a(f"v_add_f32 v{Y}, v{Y}, v{Y+2}\nv_add_f32 v{Y+1}, v{Y+1}, v{Y+3}")
        a(f"v_permlane16_swap_b32 v{Y}, v{Y+1}\nv_add_f32 v{Y}, v{Y}, v{Y+1}")
        a(f"v_cvt_pk_bf16_f32 v{Y}, 0, v{Y}")
    a(f"""
    v_mul_f32 v{YAr}, v{T+3}, v{YAr}
    v_mul_f32 v{YBr}, v{T+6}, v{YBr}
    v_cvt_pk_bf16_f32 v{YAr}, 0, v{YAr}
    v_cvt_pk_bf16_f32 v{YBr}, 0, v{YBr}
    v_add_f32 v{YAr}, v{YAr}, v{YBr}
    v_cvt_pk_bf16_f32 v{YAr}, v{YAr}, 0
    """)
    a(f"buffer_store_short v{YAr}, v{T+4}, {SOUT}, 0 offen", count=False)
    a("L_fin:")
    if stamps:
        a("s_waitcnt vmcnt(0)")
        stamp(7)
        a(f"""
        s_waitcnt lgkmcnt(0)
        s_lshl_b32 s3, s2, 6
        s_add_u32 s3, s3, {128<<20}
        v_mov_b32 v{T}, s3
        s_mov_b64 exec, 1
        """)
        for k in range(4):
            for i in range(4):
                a(f"v_mov_b32 v{B+4*k+i}, s{STAMP0+4*k+i}")
            a(f"global_store_dwordx4 v{T}, v[{B+4*k}:{B+4*k+3}], s[26:27] offset:{16*k}", count=False)
    a("L_end:\ns_endpgm")
    return f"""{HEADER}; @launch grid=(256,1,1) block=(512,1,1) lds={L_END}
.amdgcn_target "amdgcn-amd-amdhsa--gfx950"
.text
.globl {KLABEL}
.p2align 8
.type {KLABEL},@function
{KLABEL}:
{a.text()}
.section .rodata,"a"
.p2align 6
.amdhsa_kernel {KLABEL}
  .amdhsa_next_free_vgpr 256
  .amdhsa_next_free_sgpr 102
  .amdhsa_accum_offset 256
  .amdhsa_group_segment_fixed_size 0
  .amdhsa_kernarg_size 96
  .amdhsa_user_sgpr_count 2
  .amdhsa_user_sgpr_kernarg_segment_ptr 1
  .amdhsa_system_sgpr_workgroup_id_x 1
.end_amdhsa_kernel
"""

if __name__ == "__main__":
    ap = argparse.ArgumentParser()
    ap.add_argument("-o", default="k.s")
    ap.add_argument("--stamps", action="store_true")
    ap.add_argument("--nk0", type=int, default=8)
    ap.add_argument("--nve", type=int, default=16)
    ap.add_argument("--pol", default="nt")
    ap.add_argument("--wpol", default="")
    ap.add_argument("--pattern", default="wint4")
    ap.add_argument("--mlpos", type=int, default=4)
    x = ap.parse_args()
    open(x.o, "w").write(gen(x.nk0, x.nve, x.pol, x.wpol, x.stamps, x.pattern, x.mlpos))
```

```python
import sys, math, struct, argparse
from asmlib import Asm
from common import NAME, KLABEL

def f32bits(x):
    return struct.unpack("<I", struct.pack("<f", x))[0]

HEADER = open("cdna_kernels/" + NAME + ".s.ref").read().split("; Override launch")[0]

RB = 256 * 2048
OP, YA, YB, ML = 0, 1024, 1280, 1536
GEN = RB + 256 * 2048
WS_BYTES = GEN + 256
L_ML, L_F, L_C1, L_C2, L_C3, L_QRDY, L_G, L_Q, L_H, L_OP, L_YB, L_YA, L_END = 0, 64, 96, 100, 104, 108, 112, 128, 640, 1024, 9216, 11264, 13312
L_QG = L_OP + 6144
L_QH = L_OP
SK, SV, SWQ, SW1, SWO, SW2, SX, SGW, SOUT, SWS = [f"s[{n}:{n+3}]" for n in range(28, 68, 4)]
sTA, sTB = "s68", "s69"
sOWN, sPUB = "s70", "s71"
sH, sB, sS, sW = "s72", "s73", "s74", "s75"
sT0, sT1 = "s76", "s77"
MB1, MB0 = "s[78:79]", "s[80:81]"
sOFF, sSPIN = "s82", "s83"
STAMP0 = 84
vL, vKV = "v1", "v2"
vA0, vA1, vA2, vA3, vA4 = "v3", "v4", "v5", "v6", "v7"
Q0, ACC, P0, F, COL = 8, 16, 24, 28, 29
CSC = hex(f32bits(math.log2(math.e) / 16))

def gen(NK0=12, NK1=0, NVE=16, pol="nt", wpol="", stamps=None, pattern="wint4", mlpos=4, spin=200000, D=60,
        cpf=True, prio=True, skip="", spec=False):
    a0 = Asm()
    class Filt:
        phase = "head"
        def __call__(self, txt, tag=None, count=True):
            out = []
            for l in txt.split("\n"):
                ls = l.strip()
                if self.phase == "head" and SWS in ls:
                    if "s" in skip and ls.startswith("buffer_store"): continue
                    if "g" in skip and ls.startswith("buffer_load") and tag is None: continue
                    if "m" in skip and ls.startswith("buffer_load") and tag in ("ml", "ev"): continue
                out.append(l)
            a0("\n".join(out), tag=tag, count=count)
        def __getattr__(self, k): return getattr(a0, k)
        def __setattr__(self, k, v):
            if k == "phase": object.__setattr__(self, k, v)
            else: setattr(a0, k, v)
    a = Filt()
    NVL = 32 - NVE
    KR = 128
    VE = KR - 4 * NVE
    T = 30
    assert VE - T >= 18
    def stamp(i):
        if stamps and i in stamps:
            k = stamps.index(i)
            a(f"s_memrealtime s[{STAMP0+2*k}:{STAMP0+2*k+1}]")
    def srd(dst, src, size):
        n = int(dst[2:dst.index(":")])
        a(f"s_mov_b32 s{n}, s{src}\ns_mov_b32 s{n+1}, s{src+1}\ns_mov_b32 s{n+2}, {size}\ns_mov_b32 s{n+3}, 0x20000")
    SRDS = {SX: (4, 1792), SK: (6, 1 << 26), SV: (8, 1 << 26), SWQ: (10, 448 * 8192), SWO: (12, 4096 * 896), SW1: (16, 448 * 3584),
            SW2: (18, 1792 * 896), SGW: (20, 896), SOUT: (22, 1792), SWS: (26, WS_BYTES)}
    def srds(*names):
        for n in names: srd(n, *SRDS[n])
    cur = [None]
    def kv_off(j):
        if pattern == "wint4": return (j // 4) * 32768 + (j % 4) * 1024
        if pattern == "cont": return j * 1024
        raise ValueError
    def window():
        if len(a.vm) >= D:
            a(f"s_waitcnt vmcnt({D-1})")
            a.vm = a.vm[len(a.vm) - (D - 1):]
    def kv_load(srdn, j, reg, tag, win=True):
        if win: window()
        off = kv_off(j)
        so = off // 4096 * 4096
        if so == 0:
            sreg = "0"
        else:
            if cur[0] != so:
                a(f"s_mov_b32 {sOFF}, {so}")
                cur[0] = so
            sreg = sOFF
        a(f"buffer_load_dwordx4 v[{reg}:{reg+3}], {vKV}, {srdn}, {sreg} offen offset:{off % 4096} {pol}", tag=tag)
    def red8(acc):
        for k in range(4): a(f"v_permlane32_swap_b32 v{acc+k}, v{acc+k+4}")
        for k in range(4): a(f"v_add_f32 v{acc+k}, v{acc+k}, v{acc+k+4}")
        for k in range(2): a(f"v_permlane16_swap_b32 v{acc+k}, v{acc+k+2}")
        for k in range(2): a(f"v_add_f32 v{acc+k}, v{acc+k}, v{acc+k+2}")
        a(f"v_add_f32_dpp v{acc}, v{acc}, v{acc} row_ror:8 row_mask:0xf bank_mask:0x3")
        a(f"v_add_f32_dpp v{acc}, v{acc+1}, v{acc+1} row_ror:8 row_mask:0xf bank_mask:0xc")
    def gemv_step(acc, wreg, lo, hi, first, n=4):
        for i in range(n):
            a(f"v_dot2_f32_bf16 v{acc+2*i}, v{wreg+i}, v{lo}, {'0' if first else f'v{acc+2*i}'}")
            a(f"v_dot2_f32_bf16 v{acc+2*i+1}, v{wreg+i}, v{hi}, {'0' if first else f'v{acc+2*i+1}'}")
    def bc_step(acc, wreg, lo, hi, n):
        for i in range(4):
            a(f"v_dot2c_f32_bf16_dpp v{acc+2*i}, v{lo}, v{wreg+i} row_newbcast:{n} row_mask:0xf bank_mask:0xf")
            a(f"v_dot2c_f32_bf16_dpp v{acc+2*i+1}, v{hi}, v{wreg+i} row_newbcast:{n} row_mask:0xf bank_mask:0xf")
    def allred(op, v, t, bits=6):
        a(f"{op}_dpp v{v}, v{v}, v{v} quad_perm:[1,0,3,2] row_mask:0xf bank_mask:0xf")
        a(f"{op}_dpp v{v}, v{v}, v{v} quad_perm:[2,3,0,1] row_mask:0xf bank_mask:0xf")
        a(f"{op}_dpp v{v}, v{v}, v{v} row_half_mirror row_mask:0xf bank_mask:0xf")
        if bits > 3:
            a(f"{op}_dpp v{v}, v{v}, v{v} row_ror:8 row_mask:0xf bank_mask:0xf")
            a(f"v_mov_b32 v{t}, v{v}\nv_permlane16_swap_b32 v{v}, v{t}\n{op} v{v}, v{v}, v{t}")
            a(f"v_mov_b32 v{t}, v{v}\nv_permlane32_swap_b32 v{v}, v{t}\n{op} v{v}, v{v}, v{t}")
    def spin_or(ld):
        a(f"s_cmp_eq_u32 {sSPIN}, 0\ns_cbranch_scc1 {ld}\ns_sub_u32 {sSPIN}, {sSPIN}, 1")
    def retry(cond_code, reissue):
        lt, ld = a.newlabel("L_poll"), a.newlabel("L_pdone")
        a(f"{lt}:")
        cond_code()
        a(f"s_cbranch_vccz {ld}")
        spin_or(ld)
        a(reissue, count=False)
        a(f"s_waitcnt vmcnt(0)\ns_branch {lt}\n{ld}:")
    def poll_tags(grans, reissue, t):
        def cond():
            for k, g in enumerate(grans):
                if k == 0:
                    a(f"v_xor_b32 v{t}, {sTA}, v{g+1}\nv_xor_b32 v{t+1}, {sTB}, v{g+3}")
                else:
                    a(f"v_bitop3_b32 v{t}, v{t}, {sTA}, v{g+1} bitop3:0xf6\nv_bitop3_b32 v{t+1}, v{t+1}, {sTB}, v{g+3} bitop3:0xf6")
            a(f"v_or_b32 v{t}, v{t}, v{t+1}\nv_cmp_ne_u32 vcc, 0, v{t}")
        retry(cond, reissue)
    def poll_sent(regs, reissue, t):
        def cond():
            rs = list(regs)
            if len(rs) >= 3:
                a(f"v_max3_u32 v{t}, v{rs[0]}, v{rs[1]}, v{rs[2]}"); rs = rs[3:]
            else:
                a(f"v_max_u32 v{t}, v{rs[0]}, v{rs[1]}"); rs = rs[2:]
            while len(rs) >= 2:
                a(f"v_max3_u32 v{t}, v{t}, v{rs[0]}, v{rs[1]}"); rs = rs[2:]
            if rs: a(f"v_max_u32 v{t}, v{t}, v{rs[0]}")
            a(f"v_cmp_eq_u32 vcc, -1, v{t}")
        retry(cond, reissue)
    def lds_ticket(addr, t):
        a(f"""
        v_mov_b32 v{t}, {addr}
        v_mov_b32 v{t+1}, 1
        s_waitcnt lgkmcnt(0)
        s_mov_b64 exec, 1
        ds_add_rtn_u32 v{t+1}, v{t}, v{t+1}
        s_mov_b64 exec, -1
        s_waitcnt lgkmcnt(0)
        v_readfirstlane_b32 {sT0}, v{t+1}
        """)

    a(f"""
    s_cmp_ge_u32 s2, 256
    s_cbranch_scc1 L_end
    s_load_dwordx16 s[4:19], s[0:1], 0
    s_load_dwordx8 s[20:27], s[0:1], 64
    """)
    stamp(0)
    if cpf:
        a(f"""
        s_getpc_b64 s[100:101]
L_pc:
        s_lshr_b32 s3, s2, 3
        s_lshl_b32 s3, s3, 9
        v_subrev_u32 v{T}, 448, v0
        v_cmp_gt_u32 vcc, 4, v{T}
        v_lshl_add_u32 v{T}, v{T}, 7, s3
        s_and_saveexec_b64 s[98:99], vcc
        s_cbranch_execz L_nocpf
        global_load_dword v{F}, v{T}, s[100:101]
L_nocpf:
        s_mov_b64 exec, -1
        """, count=False)
    if prio: a("s_setprio 3")
    a(f"""
    s_and_b32 {sH}, s2, 7
    s_lshl_b32 {sH}, {sH}, 1
    s_bfe_u32 {sT0}, s2, 0x10003
    s_add_u32 {sH}, {sH}, {sT0}
    s_bfe_u32 {sB}, s2, 0x10004
    s_lshr_b32 {sS}, s2, 5
    s_lshl_b32 {sT0}, {sB}, 25
    s_lshl_b32 {sT1}, {sH}, 21
    s_add_u32 {sT0}, {sT0}, {sT1}
    s_lshl_b32 {sT1}, {sS}, 18
    s_add_u32 {sT0}, {sT0}, {sT1}
    v_and_b32 {vL}, 63, v0
    v_lshrrev_b32 v3, 6, v0
    v_lshlrev_b32 {vKV}, {12 if pattern == 'wint4' else 15}, v3
    v_lshl_add_u32 {vKV}, {vL}, 4, {vKV}
    v_add_u32 {vKV}, {sT0}, {vKV}
    s_mov_b32 s30, {1<<26}
    s_mov_b32 s31, 0x20000
    v_readfirstlane_b32 {sW}, v3
    s_waitcnt lgkmcnt(0)
    s_mov_b32 s28, s6
    s_mov_b32 s29, s7
    """)
    ADDRS = f"""
            s_mov_b32 s78, 0xcccccccc
            s_mov_b32 s79, 0xcccccccc
            s_mov_b32 s80, 0xaaaaaaaa
            s_mov_b32 s81, 0xaaaaaaaa
            s_lshl_b32 {sOWN}, s2, 11
            s_add_u32 {sOWN}, {sOWN}, {RB}
            v_and_b32 v{T+1}, 7, {vL}
            v_lshrrev_b32 v{T}, 3, {vL}
            v_lshlrev_b32 v{COL}, 5, v{T+1}
            v_lshrrev_b32 v{T+2}, 5, {vL}
            v_lshl_add_u32 v{COL}, v{T+2}, 4, v{COL}
            v_bfe_u32 v{T+2}, {vL}, 4, 1
            v_lshl_add_u32 v{COL}, v{T+2}, 3, v{COL}
            v_bfe_u32 v{T+2}, {vL}, 3, 1
            v_lshl_add_u32 v{COL}, v{T+2}, 2, v{COL}
            s_lshl_b32 {sT1}, {sW}, 8
            v_add_u32 v{COL}, {sT1}, v{COL}
            s_and_b32 {sT0}, s2, 31
            s_lshl_b32 {sT0}, {sT0}, 11
            s_add_u32 {sT0}, {sT0}, {RB}
            v_lshlrev_b32 {vA1}, 16, v{T+1}
            v_add_u32 {vA1}, {sT0}, {vA1}
            v_lshl_add_u32 {vA2}, v{T}, 4, {vA1}
            s_lshl_b32 {sT1}, {sW}, 7
            v_add_u32 {vA2}, {sT1}, {vA2}
            s_lshl_b32 {sT1}, {sS}, 7
            v_lshl_add_u32 v{T+1}, v{T+1}, 4, {sT1}
            s_lshl_b32 {sT0}, {sH}, 8
            s_lshl_b32 {sT1}, {sW}, 5
            s_add_u32 {sT0}, {sT0}, {sT1}
            v_lshl_add_u32 v{T+2}, v{T}, 2, {sT0}
            v_mul_u32_u24 v{T+2}, 896, v{T+2}
            v_add_u32 {vA3}, v{T+2}, v{T+1}
            s_lshr_b32 {sT0}, {sT0}, 1
            v_lshl_add_u32 v{T+2}, v{T}, 1, {sT0}
            v_mul_u32_u24 v{T+2}, 896, v{T+2}
            v_add_u32 {vA4}, v{T+2}, v{T+1}              ; w2 rows 128h+16w+2r+j
            v_and_b32 v{T}, 31, {vL}
            v_lshlrev_b32 {vA0}, 4, v{T}
    """
    a(f"""
    s_cmp_gt_u32 {sW}, 3
    s_cbranch_scc1 L_young
    """)
    if prio: a("s_setprio 2")
    for j in range(NK0):
        kv_load(SK, j, KR + 4 * j, "K")
    genload = f"""
    s_lshl_b32 {sT0}, {sB}, 7
    s_add_u32 {sT0}, {sT0}, {GEN}
    s_load_dwordx2 s[68:69], s[26:27], {sT0}
    s_mov_b32 {sSPIN}, {spin}
    s_mov_b32 {sPUB}, 0
    """
    a(genload)
    srds(SWS, SV, SWO, SW2, SOUT, SGW, SX, SWQ, SW1)
    a(f"s_waitcnt lgkmcnt(0)\ns_barrier\ns_add_u32 {sTA}, s68, 1\ns_add_u32 {sTB}, s69, 1\ns_branch L_kmore")
    vm_k = list(a.vm)
    a.vm = []
    WQr, W1r, XQ, XF, AQ, AF, GX = KR, KR + 28, KR + 44, KR + 46, KR + 48, KR + 56, KR + 64
    a("L_young:")
    srds(SWQ)
    a(f"""
    s_mul_i32 {sT0}, {sS}, 56
    s_mul_i32 {sT1}, {sW}, 14
    s_add_u32 {sT0}, {sT0}, {sT1}
    s_sub_u32 {sT0}, {sT0}, 56
    v_lshrrev_b32 v{T}, 5, {vL}                  ; half
    v_add_u32 v{T+1}, {sT0}, v{T}
    v_lshlrev_b32 {vA2}, 13, v{T+1}
    v_and_b32 v{T+2}, 31, {vL}
    v_lshl_add_u32 {vA2}, v{T+2}, 4, {vA2}
    s_lshl_b32 {sT1}, {sH}, 9
    v_add_u32 {vA2}, {sT1}, {vA2}
    """)
    for t in range(7):
        if t: a(f"s_mov_b32 {sT1}, {t*2*8192}")
        if "1" not in skip:
            a(f"buffer_load_dwordx4 v[{WQr+4*t}:{WQr+4*t+3}], {vA2}, {SWQ}, {sT1 if t else 0} offen {wpol}")
    srds(SX, SW1, SWS)
    a(f"""
    v_lshrrev_b32 v{T+3}, 4, {vL}                ; rho
    v_and_b32 v{T+4}, 15, {vL}                   ; n
    v_add_u32 v{T+5}, {sT0}, v{T+3}
    v_mul_u32_u24 {vA3}, 3584, v{T+5}
    v_lshl_add_u32 {vA3}, v{T+4}, 4, {vA3}
    s_lshl_b32 {sT1}, {sH}, 8
    v_add_u32 {vA3}, {sT1}, {vA3}                ; w1 address
    s_cmp_gt_u32 {sH}, 13
    s_cbranch_scc1 L_nof1
    """)
    for t in range(4):
        if t: a(f"s_mov_b32 {sT1}, {t*4*3584}")
        if "1" not in skip:
            a(f"buffer_load_dwordx4 v[{W1r+4*t}:{W1r+4*t+3}], {vA3}, {SW1}, {sT1 if t else 0} offen {wpol}")
    a(f"""
L_nof1:
    s_mul_i32 {sT1}, {sB}, 448
    s_add_u32 {sT1}, {sT1}, {sT0}
    v_and_b32 v{T+5}, 7, {vL}
    v_lshl_add_u32 v{T+5}, v{T+5}, 1, v{T}
    v_add_lshl_u32 {vA0}, v{T+5}, {sT1}, 1
    v_and_b32 v{T+5}, 3, {vL}
    v_lshl_add_u32 v{T+5}, v{T+5}, 2, v{T+3}
    v_add_lshl_u32 {vA1}, v{T+5}, {sT1}, 1
    v_cmp_gt_u32 vcc, 14, v{T+5}
    v_mov_b32 v{T+6}, 0x10000
    v_cndmask_b32 {vA1}, v{T+6}, {vA1}, vcc
    buffer_load_ushort v{XQ}, {vA0}, {SX}, 0 offen
    buffer_load_ushort v{XF}, {vA1}, {SX}, 0 offen
    """)
    a(genload.replace(sT0, "s3"))
    srds(SGW)
    a(f"""
    s_cmp_eq_u32 {sW}, 4
    s_cbranch_scc1 L_clr
    s_cmp_eq_u32 {sW}, 5
    s_cbranch_scc1 L_gl
    s_cmp_eq_u32 {sW}, 6
    s_cbranch_scc1 L_svcd
    v_mov_b32 v{T+8}, 0
    v_mov_b32 v{T+9}, 0
    v_mov_b32 v{T+6}, {L_C1}
    ds_write_b64 v{T+6}, v[{T+8}:{T+9}]
    ds_write_b64 v{T+6}, v[{T+8}:{T+9}] offset:8
    s_branch L_svcd
L_clr:
    s_lshl_b32 s3, s2, 11
    s_add_u32 s3, s3, {RB}
    v_lshl_add_u32 v{T+7}, {vL}, 4, s3
    v_mov_b32 v{T+8}, -1
    v_mov_b32 v{T+9}, -1
    v_mov_b32 v{T+10}, -1
    v_mov_b32 v{T+11}, -1
    buffer_store_dwordx4 v[{T+8}:{T+11}], v{T+7}, {SWS}, 0 offen sc1
    s_mov_b32 exec_hi, 0xff
    buffer_store_dwordx4 v[{T+8}:{T+11}], v{T+7}, {SWS}, 0 offen offset:1024 sc1
    s_mov_b64 exec, -1
    s_branch L_svcd
L_gl:
    s_mul_i32 s3, {sB}, 896
    v_lshlrev_b32 v{T+7}, 4, {vL}
    v_add_u32 v{T+8}, s3, v{T+7}
    v_cmp_gt_u32 vcc, 56, {vL}
    v_cndmask_b32 v{T+8}, v{T+6}, v{T+8}, vcc
    buffer_load_dwordx4 v[{GX}:{GX+3}], v{T+8}, {SX}, 0 offen
    buffer_load_dwordx4 v[{GX+4}:{GX+7}], v{T+7}, {SGW}, 0 offen
    """)
    a("L_svcd:\ns_waitcnt lgkmcnt(0)\ns_barrier")
    srds(SV, SWO, SW2, SOUT)
    for i in range(16): a(f"v_mov_b32 v{AQ+i}, 0")
    a(f"""
    s_add_u32 {sTA}, s68, 1
    s_add_u32 {sTB}, s69, 1
    s_mul_i32 {sT0}, {sW}, 1536
    s_sub_u32 {sT0}, {sT0}, {4*1536}
    v_lshlrev_b32 v{T+2}, 5, v{T+2}
    v_lshl_add_u32 v{T+2}, v{T}, 4, v{T+2}
    v_add_u32 v{T+2}, {sT0}, v{T+2}
    v_lshlrev_b32 v{T+4}, 5, v{T+4}
    v_lshl_add_u32 v{T+4}, v{T+3}, 3, v{T+4}     ; 32n + 8*rho
    v_add_u32 v{T+4}, {sT0}, v{T+4}
    """)
    stamp(10)
    a.wait_vm_all()
    stamp(11)
    a(f"v_lshlrev_b32 v{XQ+1}, 16, v{XQ}\nv_lshlrev_b32 v{XF+1}, 16, v{XF}")
    for t in range(7): bc_step(AQ, WQr + 4 * t, XQ, XQ + 1, t)
    for t in range(4): bc_step(AF, W1r + 4 * t, XF, XF + 1, t)
    for k in range(4): a(f"v_permlane32_swap_b32 v{AQ+k}, v{AQ+k+4}")
    for k in range(4): a(f"v_permlane32_swap_b32 v{AF+k}, v{AF+k+4}")
    for k in range(4): a(f"v_add_f32 v{AQ+k}, v{AQ+k}, v{AQ+k+4}")
    for k in range(4): a(f"v_add_f32 v{AF+k}, v{AF+k}, v{AF+k+4}")
    a(f"ds_write_b128 v{T+2}, v[{AQ}:{AQ+3}] offset:{L_QH}")
    for k in range(2): a(f"v_permlane16_swap_b32 v{AF+k}, v{AF+k+2}")
    for k in range(2): a(f"v_add_f32 v{AF+k}, v{AF+k}, v{AF+k+2}")
    a(f"ds_write_b64 v{T+4}, v[{AF}:{AF+1}] offset:{L_QH+1024}")
    lds_ticket(L_C1, T + 6)
    PBs = [8, 12]
    a(f"""
    s_cmp_lg_u32 {sT0}, 3
    s_cbranch_scc1 L_pubd
    v_lshlrev_b32 v{T}, 2, {vL}
    """)
    PR = VE
    for u in range(2):
        for th in range(3):
            for w in range(4):
                a(f"ds_read_b32 v{PR+12*u+4*th+w}, v{T} offset:{L_QH+1536*w+512*th+256*u}")
    a(f"s_lshl_b32 {sT0}, s2, 11\nv_lshl_add_u32 v{T+1}, {vL}, 4, {sT0}")
    for u in range(2): a(f"v_mov_b32 v{PBs[u]+3}, {sTA}")
    a("s_waitcnt lgkmcnt(0)")
    for u in range(2):
        for th in range(3):
            b = PR + 12 * u + 4 * th
            a(f"v_add_f32 v{b}, v{b}, v{b+1}\nv_add_f32 v{b+2}, v{b+2}, v{b+3}")
        for th in range(3):
            b = PR + 12 * u + 4 * th
            a(f"v_add_f32 v{PBs[u]+th}, v{b}, v{b+2}")
        a(f"buffer_store_dwordx4 v[{PBs[u]}:{PBs[u]+3}], v{T+1}, {SWS}, 0 offen offset:{1024*u} sc1", count=False)
    stamp(1)
    a(f"L_pubd:\ns_cmp_lg_u32 {sW}, 5\ns_cbranch_scc1 L_nogate")
    G = T
    a(f"v_mov_b32 v{G}, 0")
    for i in range(4):
        x, g = GX + i, GX + 4 + i
        a(f"""
        v_lshlrev_b32 v{G+1}, 16, v{x}
        v_lshlrev_b32 v{G+2}, 16, v{g}
        v_and_b32 v{G+3}, 0xffff0000, v{x}
        v_and_b32 v{G+4}, 0xffff0000, v{g}
        v_mul_f32 v{G+1}, v{G+1}, v{G+2}
        v_mul_f32 v{G+3}, v{G+3}, v{G+4}
        v_cvt_pk_bf16_f32 v{G+1}, v{G+1}, v{G+3}
        v_lshlrev_b32 v{G+2}, 16, v{G+1}
        v_and_b32 v{G+3}, 0xffff0000, v{G+1}
        v_add_f32 v{G}, v{G}, v{G+2}
        v_add_f32 v{G}, v{G}, v{G+3}
        """)
    allred("v_add_f32", G, G + 1)
    a(f"""
    v_cvt_pk_bf16_f32 v{G}, 0, v{G}
    v_mul_f32 v{G}, {hex(f32bits(-math.log2(math.e)))}, v{G}
    v_exp_f32 v{G}, v{G}
    v_add_f32 v{G}, 1.0, v{G}
    v_rcp_f32 v{G}, v{G}
    v_cvt_pk_bf16_f32 v{G}, 0, v{G}
    v_mov_b32 v{G+1}, {L_G}
    ds_write_b32 v{G+1}, v{G}
L_nogate:
    """)
    cur[0] = None
    for j in range(NK0):
        kv_load(SK, j, KR + 4 * j, "K")
    assert a.vm == vm_k
    GB = VE
    a(f"""
    s_and_b32 {sT0}, s2, 31
    s_lshl_b32 {sT0}, {sT0}, 11
    s_sub_u32 {sT1}, {sW}, 4
    s_lshl_b32 s3, {sT1}, 17
    s_add_u32 {sT0}, {sT0}, s3
    v_lshl_add_u32 v8, {vL}, 4, {sT0}            ; members 2(w-4), 2(w-4)+1
    s_mov_b32 s3, 0x10000
    s_mul_i32 {sT1}, {sT1}, 1536
    v_lshl_add_u32 v9, {vL}, 2, {sT1}
    """)
    gl = "\n".join(f"buffer_load_dwordx4 v[{GB+8*m+4*u}:{GB+8*m+4*u+3}], v8, {SWS}, {'s3' if m else '0'} offen offset:{1024*u} sc1"
                   for m in range(2) for u in range(2))
    a(gl, count=False)
    a("s_waitcnt vmcnt(0)")
    def cond():
        a(f"v_xor_b32 v10, {sTA}, v{GB+3}")
        for k in range(1, 4): a(f"v_bitop3_b32 v10, v10, {sTA}, v{GB+4*k+3} bitop3:0xf6")
        a("v_cmp_ne_u32 vcc, 0, v10")
    retry(cond, gl)
    stamp(12)
    for u in range(2):
        for th in range(3):
            a(f"v_add_f32 v{GB+4*u+th}, v{GB+4*u+th}, v{GB+8+4*u+th}")
    for u in range(2):
        for th in range(3):
            a(f"ds_write_b32 v9, v{GB+4*u+th} offset:{L_QG+512*th+256*u}")
    lds_ticket(L_C3, 10)
    a(f"""
    s_cmp_lg_u32 {sT0}, 3
    s_cbranch_scc1 L_noq
    v_lshlrev_b32 v9, 3, {vL}
    """)
    for th in range(3):
        for w in range(4):
            a(f"ds_read_b64 v[{GB+8*th+2*w}:{GB+8*th+2*w+1}], v9 offset:{L_QG+1536*w+512*th}")
    a(f"v_lshlrev_b32 v9, 2, {vL}\nv_mov_b32 v11, 1\nv_mov_b32 v12, {L_QRDY}\ns_waitcnt lgkmcnt(0)")
    for th in range(3):
        b = GB + 8 * th
        for e in range(2): a(f"v_add_f32 v{b+e}, v{b+e}, v{b+2+e}\nv_add_f32 v{b+4+e}, v{b+4+e}, v{b+6+e}")
        for e in range(2): a(f"v_add_f32 v{b+e}, v{b+e}, v{b+4+e}")
        if th == 2: a(f"v_maximum3_f32 v{b}, v{b}, 0, 0\nv_maximum3_f32 v{b+1}, v{b+1}, 0, 0")
        a(f"v_cvt_pk_bf16_f32 v{b}, v{b}, v{b+1}\nds_write_b32 v9, v{b} offset:{L_Q+256*th}")
    a("s_waitcnt lgkmcnt(0)\nds_write_b32 v12, v11")
    stamp(17)
    a("L_noq:")
    if prio: a("s_setprio 2")
    a("L_kmore:")
    cur[0] = None
    for j in range(NK0, 32):
        kv_load(SK, j, KR + 4 * j, "K")
        stamp(20 + j)
        if j == NK0 + 1:
            a(ADDRS)
    stamp(13)
    if prio > 1: a("s_setprio 1")
    cur[0] = None
    NV0 = min(D - 1, NVE)
    for j in range(NV0):
        kv_load(SV, j, VE + 4 * j, f"V{j}")
    stamp(2)
    a(f"""
    v_mov_b32 v{T+1}, {L_QRDY}
L_rdy:
    ds_read_b32 v{T+2}, v{T+1}
    ds_read_b128 v[{Q0}:{Q0+3}], {vA0} offset:{L_Q}
    s_waitcnt lgkmcnt(0)
    v_cmp_eq_u32 vcc, 1, v{T+2}
    s_cbranch_vccnz L_rdyd
    """)
    spin_or("L_rdyd")
    a("s_sleep 1\ns_branch L_rdy\nL_rdyd:")
    stamp(18)
    a.wait_vm("K")
    stamp(3)
    def R(j): return KR + 4 * j
    for g0 in range(0, 32, 8):
        for i in range(4):
            for j in range(g0, g0 + 8):
                if "q" not in skip: a(f"v_dot2_f32_bf16 v{R(j)}, v{R(j)+i}, v{Q0+i}, {'0' if i == 0 else f'v{R(j)}'}")
        if NV0 < NVE:
            kv_load(SV, NV0, VE + 4 * NV0, f"V{NV0}", win=False); NV0 += 1
    while NV0 < NVE:
        kv_load(SV, NV0, VE + 4 * NV0, f"V{NV0}", win=False); NV0 += 1
    for j in range(0, 32, 2): a(f"v_permlane16_swap_b32 v{R(j)}, v{R(j+1)}")
    for j in range(0, 32, 2): a(f"v_add_f32 v{R(j)}, v{R(j)}, v{R(j+1)}")
    for st, ctl, m0, m1 in ((2, "row_ror:8", 3, 12), (4, "row_half_mirror", 5, 10)):
        for j in range(0, 32, 2 * st):
            a(f"v_add_f32_dpp v{R(j)}, v{R(j)}, v{R(j)} {ctl} row_mask:0xf bank_mask:{m0}")
        for j in range(0, 32, 2 * st):
            a(f"v_add_f32_dpp v{R(j)}, v{R(j+st)}, v{R(j+st)} {ctl} row_mask:0xf bank_mask:{m1}")
    for st, qp, m in ((8, "[2,3,0,1]", MB1), (16, "[1,0,3,2]", MB0)):
        for j in range(0, 32, st):
            a(f"v_add_f32_dpp v{R(j)}, v{R(j)}, v{R(j)} quad_perm:{qp} row_mask:0xf bank_mask:0xf")
        for j in range(0, 32, 2 * st):
            a(f"v_cndmask_b32 v{R(j)}, v{R(j)}, v{R(j+st)}, {m}")
    S = T + 8
    a(f"v_cvt_pk_bf16_f32 v{S}, 0, v{R(0)}\nv_mov_b32 v{T}, v{S}")
    VL = KR + 4
    WOr = VL + 4 * NVL; W2r = WOr + 16; MLr = W2r + 8; EV = MLr + 2
    assert EV + 4 <= 256
    cur[0] = None
    nlate = 0
    def late():
        nonlocal nlate
        kv_load(SV, NVE + nlate, VL + 4 * nlate, f"V{NVE+nlate}"); nlate += 1
    allred("v_max_f32", T, T + 1)
    a(f"""
    v_sub_f32 v{S}, v{S}, v{T}
    v_mul_f32 v{S}, {CSC}, v{S}
    v_exp_f32 v{S}, v{S}
    v_mov_b32 v{T+1}, v{S}
    """)
    allred("v_add_f32", T + 1, T + 2)
    a(f"""
    s_lshl_b32 {sT0}, {sW}, 3
    v_mov_b32 v{T+2}, {sT0}
    ds_write_b64 v{T+2}, v[{T}:{T+1}] offset:{L_ML}
    v_cvt_pk_bf16_f32 v{P0}, v{S}, 0
    v_cvt_pk_bf16_f32 v{P0+1}, 0, v{S}
    v_mov_b32 v{P0+2}, v{P0}
    v_mov_b32 v{P0+3}, v{P0+1}
    v_permlane16_swap_b32 v{P0}, v{P0+2}
    v_permlane16_swap_b32 v{P0+1}, v{P0+3}
    """)
    lds_ticket(L_C2, T + 2)
    a(f"""
    s_cmp_lg_u32 {sT0}, 7
    s_cbranch_scc1 L_noml
    v_and_b32 v{T+2}, 7, {vL}
    v_lshlrev_b32 v{T+3}, 3, v{T+2}
    ds_read_b64 v[{T+4}:{T+5}], v{T+3} offset:{L_ML}
    v_lshlrev_b32 v{T+3}, 2, v{T+2}
    v_mov_b32 v{T+2}, {sOWN}
    s_waitcnt lgkmcnt(0)
    v_mov_b32 v{T}, v{T+4}
    """)
    allred("v_max_f32", T, T + 1, bits=3)
    a(f"""
    v_sub_f32 v{T+4}, v{T+4}, v{T}
    v_mul_f32 v{T+4}, {CSC}, v{T+4}
    v_exp_f32 v{T+4}, v{T+4}
    v_mul_f32 v{T+1}, v{T+4}, v{T+5}
    ds_write_b32 v{T+3}, v{T+4} offset:{L_F}
    """)
    allred("v_add_f32", T + 1, T + 6, bits=3)
    a(f"""
    v_min_u32 v{T}, -2, v{T}
    v_min_u32 v{T+1}, -2, v{T+1}
    s_mov_b64 exec, 1
    buffer_store_dwordx2 v[{T}:{T+1}], v{T+2}, {SWS}, 0 offen offset:{ML} sc1
    s_mov_b64 exec, -1
L_noml:
    """, count=False)
    stamp(4)
    a(f"s_cmp_eq_u32 {sS}, 7\ns_cbranch_scc1 L_now2")
    if "2" in skip: a("s_branch L_now2")
    for j in range(4):
        a(f"buffer_load_dwordx4 v[{WOr+4*j}:{WOr+4*j+3}], {vA3}, {SWO}, 0 offen offset:{896*j} {wpol}", count=False)
    a(f"s_cmp_gt_u32 {sH}, 13\ns_cbranch_scc1 L_now2")
    a(f"buffer_load_dwordx4 v[{W2r}:{W2r+3}], {vA4}, {SW2}, 0 offen {wpol}", count=False)
    a(f"buffer_load_dwordx4 v[{W2r+4}:{W2r+7}], {vA4}, {SW2}, 0 offen offset:896 {wpol}", count=False)
    a("L_now2:")
    if prio > 1: a("s_setprio 0")
    late(); late()
    for i in range(8): a(f"v_mov_b32 v{ACC+i}, 0")
    def vreg(j): return VE + 4 * j if j < NVE else VL + 4 * (j - NVE)
    def pv(j):
        if f"V{j}" in a.vm: a.wait_vm(f"V{j}")
        pr = P0 + 2 * (j & 1)
        n = ((j >> 1) & 1) << 3 | ((j >> 2) & 1) << 2 | ((j >> 3) & 1) << 1 | ((j >> 4) & 1)
        if "p" not in skip: bc_step(ACC, vreg(j), pr, pr + 1, n)
    mlload = f"buffer_load_dwordx2 v[{MLr}:{MLr+1}], {vA1}, {SWS}, 0 offen offset:{ML} sc1"
    ACB = Q0
    evload = f"buffer_load_dwordx4 v[{EV}:{EV+3}], v{T+6}, {SWS}, 0 offen sc1"
    def w2part():
        a(f"""
        v_mov_b32 v{ACB}, 0
        s_cmp_eq_u32 {sS}, 7
        s_cbranch_scc1 L_now2b
        s_cmp_gt_u32 {sH}, 13
        s_cbranch_scc1 L_now2c
        v_lshrrev_b32 v{T}, 3, {vL}
        s_lshl_b32 {sT0}, {sW}, 5
        v_lshl_add_u32 v{T}, v{T}, 2, {sT0}
        ds_read_b32 v{T+4}, v{T} offset:{L_H}
        s_waitcnt lgkmcnt(0)
        v_and_b32 v{T}, 0xffff, v{T+4}
        v_lshlrev_b32 v{T+1}, 16, v{T+4}
        v_lshrrev_b32 v{T+2}, 16, v{T+4}
        v_and_b32 v{T+3}, 0xffff0000, v{T+4}
        """)
        gemv_step(ACB, W2r, T, T + 1, True)
        gemv_step(ACB, W2r + 4, T + 2, T + 3, False)
        red8(ACB)
        a(f"L_now2c:\nds_write_b32 v{COL}, v{ACB} offset:{L_YB}\nL_now2b:")
        a(f"""
        v_and_b32 v{T+4}, 31, {vL}
        v_lshlrev_b32 v{T+4}, 5, v{T+4}
        v_lshrrev_b32 v{T+5}, 5, {vL}
        v_lshl_add_u32 v{T+4}, v{T+5}, 4, v{T+4}
        s_lshl_b32 {sT0}, {sW}, 10
        v_add_u32 v{T+4}, {sT0}, v{T+4}
        """)
    def mlcalc():
        if "ml" in a.vm: a.wait_vm("ml")
        poll_sent([MLr, MLr + 1], mlload, T)
        a(f"v_mov_b32 v{T}, v{MLr}")
        allred("v_max_f32", T, T + 1, bits=3)
        a(f"""
        v_sub_f32 v{T}, v{MLr}, v{T}
        v_mul_f32 v{T}, {CSC}, v{T}
        v_exp_f32 v{T}, v{T}
        v_mul_f32 v{T+1}, v{T}, v{MLr+1}
        """)
        allred("v_add_f32", T + 1, T + 2, bits=3)
        a(f"v_rcp_f32 v{T+1}, v{T+1}\nv_mul_f32 v{F}, v{T}, v{T+1}")
        def evc():
            a(f"v_cmp_ne_u32 vcc, {sTA}, v{EV+3}")
        retry(evc, evload)
    a(f"""
    s_and_b32 {sT0}, s2, 0xf0
    v_and_b32 v{T+6}, 15, {vL}
    v_add_lshl_u32 v{T+6}, v{T+6}, {sT0}, 11
    """)
    done = 0
    def step():
        nonlocal done
        pv(done); stamp(60 + done); done += 1
        if done == NVE + 1: w2part()
    while nlate < NVL:
        if nlate == NVL - mlpos:
            a(evload, tag="ev"); a(mlload, tag="ml")
        late()
        if done < NVE: step()
    while done < 32: step()
    stamp(5)
    a.phase = "tail"
    for k in range(4): a(f"v_permlane32_swap_b32 v{ACC+k}, v{ACC+k+4}")
    for k in range(4): a(f"v_add_f32 v{ACC+k}, v{ACC+k}, v{ACC+k+4}")
    a(f"""
    ds_write_b128 v{T+4}, v[{ACC}:{ACC+3}] offset:{L_OP}
    s_waitcnt lgkmcnt(0)
    s_barrier
    """)
    stamp(14)
    B = VE
    a(f"""
    s_cmp_gt_u32 {sW}, 1
    s_cbranch_scc1 L_hop1
    s_cmp_eq_u32 {sW}, 1
    s_cbranch_scc1 L_pubyb
    v_lshlrev_b32 v{T}, 4, {vL}
    v_mov_b32 v{T+2}, 0
    ds_read_b128 v[{B+32}:{B+35}], v{T+2} offset:{L_F}
    ds_read_b128 v[{B+36}:{B+39}], v{T+2} offset:{L_F+16}
    """)
    for w in range(8):
        a(f"ds_read_b128 v[{B+4*w}:{B+4*w+3}], v{T} offset:{L_OP+1024*w}")
    a(f"v_add_u32 v{T+1}, {sOWN}, v{T}")
    a("s_waitcnt lgkmcnt(0)")
    for w in (0, 4):
        for i in range(4): a(f"v_mul_f32 v{B+4*w+i}, v{B+32+w}, v{B+4*w+i}")
    for k in (1, 2, 3):
        for w in (0, 4):
            for i in range(4): a(f"v_fmac_f32 v{B+4*w+i}, v{B+32+w+k}, v{B+4*(w+k)+i}")
    for i in range(4): a(f"v_add_f32 v{B+i}, v{B+i}, v{B+16+i}")
    for i in range(4): a(f"v_min_u32 v{B+i}, -2, v{B+i}")
    a(f"""
    buffer_store_dwordx4 v[{B}:{B+3}], v{T+1}, {SWS}, 0 offen offset:{OP} sc1
    s_branch L_hop1
L_pubyb:
    s_cmp_eq_u32 {sS}, 7
    s_cbranch_scc1 L_fin
    v_lshlrev_b32 v{T}, 2, {vL}
    """, count=False)
    for w in range(8): a(f"ds_read_b32 v{B+w}, v{T} offset:{L_YB+256*w}")
    a(f"v_add_u32 v{T+1}, {sOWN}, v{T}\ns_waitcnt lgkmcnt(0)")
    for st in (1, 2, 4):
        for w in range(0, 8, 2 * st): a(f"v_add_f32 v{B+w}, v{B+w}, v{B+w+st}")
    a(f"""
    v_min_u32 v{B}, -2, v{B}
    buffer_store_dword v{B}, v{T+1}, {SWS}, 0 offen offset:{YB} sc1
L_hop1:
    s_cmp_eq_u32 {sS}, 7
    s_cbranch_scc1 L_fin
    """, count=False)
    O = B + 40
    opload = f"buffer_load_dwordx4 v[{O}:{O+3}], {vA2}, {SWS}, 0 offen offset:{OP} sc1"
    a(opload, count=False)
    mlcalc()
    a("s_waitcnt vmcnt(0)")
    poll_sent([O, O + 1, O + 2, O + 3], opload, T)
    stamp(6)
    for i in range(4): a(f"v_mul_f32 v{O+i}, v{F}, v{O+i}")
    for qp in ("quad_perm:[1,0,3,2]", "quad_perm:[2,3,0,1]", "row_half_mirror"):
        for i in range(4): a(f"v_add_f32_dpp v{O+i}, v{O+i}, v{O+i} {qp} row_mask:0xf bank_mask:0xf")
    for i in range(4): a(f"v_cvt_pk_bf16_f32 v{O+4+i}, 0, v{O+i}")
    for i in range(4): a(f"v_cvt_pk_bf16_f32 v{O+i}, v{O+i}, 0")
    for j in range(4): gemv_step(ACC, WOr + 4 * j, O + j, O + 4 + j, j == 0)
    red8(ACC)
    a(f"""
    ds_write_b32 v{COL}, v{ACC} offset:{L_YA}
    s_waitcnt lgkmcnt(0)
    s_barrier
    """)
    stamp(15)
    a(f"s_cmp_lg_u32 {sW}, 0\ns_cbranch_scc1 L_fin\nv_lshlrev_b32 v{T}, 2, {vL}")
    for w in range(8): a(f"ds_read_b32 v{B+w}, v{T} offset:{L_YA+256*w}")
    a(f"v_mov_b32 v{T+2}, {L_G}\nds_read_b32 v{T+3}, v{T+2}")
    a(f"v_add_u32 v{T+1}, {sOWN}, v{T}\ns_waitcnt lgkmcnt(0)")
    for st in (1, 2, 4):
        for w in range(0, 8, 2 * st): a(f"v_add_f32 v{B+w}, v{B+w}, v{B+w+st}")
    a(f"""
    v_min_u32 v{B}, -2, v{B}
    buffer_store_dword v{B}, v{T+1}, {SWS}, 0 offen offset:{YA} sc1
    s_lshl_b32 {sT0}, {sS}, 1
    s_add_u32 {sT0}, {sT0}, {sB}
    s_cmp_lg_u32 {sT0}, {sH}
    s_cbranch_scc1 L_fin
    s_and_b32 {sT0}, s2, 0xf0
    s_lshl_b32 {sT0}, {sT0}, 11
    s_add_u32 {sT0}, {sT0}, {RB}
    v_lshrrev_b32 v{T}, 4, {vL}
    v_lshlrev_b32 v{T}, 11, v{T}
    v_and_b32 v{T+1}, 15, {vL}
    v_lshl_add_u32 v{T}, v{T+1}, 4, v{T}
    v_add_u32 {vA0}, {sT0}, v{T}
    s_mov_b32 s4, {1*4*2048}
    s_mov_b32 s5, {2*4*2048}
    s_mov_b32 s6, {3*4*2048}
    """, count=False)
    YBr, YAr = B + 16, B + 32
    so = ["0", "s4", "s5", "s6"]
    ybl = "\n".join(f"buffer_load_dwordx4 v[{YBr+4*k}:{YBr+4*k+3}], {vA0}, {SWS}, {so[k]} offen offset:{YB} sc1" for k in range(4))
    yal = "\n".join(f"buffer_load_dwordx4 v[{YAr+4*k}:{YAr+4*k+3}], {vA0}, {SWS}, {so[k]} offen offset:{YA} sc1" for k in range(4))
    a(yal, count=False); a(ybl, count=False)
    a(f"""
    v_lshlrev_b32 v{T+4}, 2, v{T+1}
    v_lshrrev_b32 v{T+5}, 5, {vL}
    v_lshl_add_u32 v{T+4}, v{T+5}, 1, v{T+4}
    v_bfe_u32 v{T+5}, {vL}, 4, 1
    v_add_u32 v{T+4}, v{T+4}, v{T+5}
    s_mul_i32 {sT0}, {sB}, 448
    s_lshl_b32 {sT1}, {sS}, 6
    s_add_u32 {sT0}, {sT0}, {sT1}
    v_add_lshl_u32 v{T+4}, v{T+4}, {sT0}, 1
    v_sub_f32 v{T+6}, 1.0, v{T+3}
    v_cvt_pk_bf16_f32 v{T+6}, 0, v{T+6}
    s_waitcnt vmcnt(0)
    """)
    poll_sent(list(range(YBr, YBr + 16)), ybl, T)
    poll_sent(list(range(YAr, YAr + 16)), yal, T)
    stamp(16)
    for Y in (YBr, YAr):
        for i in range(4): a(f"v_add_f32 v{Y+i}, v{Y+i}, v{Y+4+i}\nv_add_f32 v{Y+8+i}, v{Y+8+i}, v{Y+12+i}")
        for i in range(4): a(f"v_add_f32 v{Y+i}, v{Y+i}, v{Y+8+i}")
        a(f"v_permlane32_swap_b32 v{Y}, v{Y+2}\nv_permlane32_swap_b32 v{Y+1}, v{Y+3}")
        a(f"v_add_f32 v{Y}, v{Y}, v{Y+2}\nv_add_f32 v{Y+1}, v{Y+1}, v{Y+3}")
        a(f"v_permlane16_swap_b32 v{Y}, v{Y+1}\nv_add_f32 v{Y}, v{Y}, v{Y+1}")
        a(f"v_cvt_pk_bf16_f32 v{Y}, 0, v{Y}")
    a(f"""
    v_mul_f32 v{YAr}, v{T+3}, v{YAr}
    v_mul_f32 v{YBr}, v{T+6}, v{YBr}
    v_cvt_pk_bf16_f32 v{YAr}, 0, v{YAr}
    v_cvt_pk_bf16_f32 v{YBr}, 0, v{YBr}
    v_add_f32 v{YAr}, v{YAr}, v{YBr}
    v_cvt_pk_bf16_f32 v{YAr}, v{YAr}, 0
    buffer_store_short v{YAr}, v{T+4}, {SOUT}, 0 offen
    s_cmp_lg_u32 {sS}, 0
    s_cbranch_scc1 L_fin
    s_lshl_b32 {sT0}, {sB}, 7
    s_add_u32 {sT0}, {sT0}, {GEN}
    v_mov_b32 v{T}, {sT0}
    v_mov_b32 v{T+10}, {sTA}
    v_mov_b32 v{T+11}, {sTB}
    s_mov_b64 exec, 1
    buffer_store_dwordx2 v[{T+10}:{T+11}], v{T}, {SWS}, 0 offen
    s_mov_b64 exec, -1
L_fin:
    """, count=False)
    if stamps:
        a("s_waitcnt vmcnt(0)")
        stamp(7)
        a(f"""
        s_waitcnt lgkmcnt(0)
        s_lshl_b32 s3, s2, 3
        s_add_u32 s3, s3, {sW}
        s_lshl_b32 s3, s3, 6
        s_add_u32 s3, s3, {128<<20}
        v_mov_b32 v{T}, s3
        s_mov_b64 exec, 1
        """)
        for k in range(4):
            for i in range(4): a(f"v_mov_b32 v{B+4*k+i}, s{STAMP0+4*k+i}")
            a(f"global_store_dwordx4 v{T}, v[{B+4*k}:{B+4*k+3}], s[26:27] offset:{16*k}", count=False)
    a("L_end:\ns_endpgm")
    pad = "\n.fill 4096, 4, 0xbf810000\n" if cpf else ""
    return f"""{HEADER}; @launch grid=(256,1,1) block=(512,1,1) lds={L_END}
.amdgcn_target "amdgcn-amd-amdhsa--gfx950"
.text
.globl {KLABEL}
.p2align 8
.type {KLABEL},@function
{KLABEL}:
{a.text()}{pad}
.section .rodata,"a"
.p2align 6
.amdhsa_kernel {KLABEL}
  .amdhsa_next_free_vgpr 256
  .amdhsa_next_free_sgpr 102
  .amdhsa_accum_offset 256
  .amdhsa_group_segment_fixed_size 0
  .amdhsa_kernarg_size 96
  .amdhsa_user_sgpr_count 2
  .amdhsa_user_sgpr_kernarg_segment_ptr 1
  .amdhsa_system_sgpr_workgroup_id_x 1
.end_amdhsa_kernel
"""

if __name__ == "__main__":
    ap = argparse.ArgumentParser()
    ap.add_argument("-o", default="k.s")
    ap.add_argument("--stamps", default="")
    ap.add_argument("--nk0", type=int, default=12)
    ap.add_argument("--nk1", type=int, default=3)
    ap.add_argument("--nve", type=int, default=16)
    ap.add_argument("--pol", default="nt")
    ap.add_argument("--wpol", default="")
    ap.add_argument("--pattern", default="wint4")
    ap.add_argument("--mlpos", type=int, default=4)
    ap.add_argument("-D", type=int, default=60)
    ap.add_argument("--nocpf", action="store_true")
    ap.add_argument("--prio", type=int, default=2)
    ap.add_argument("--skip", default="")
    ap.add_argument("--spec", action="store_true")
    ap.add_argument("--spin", type=int, default=200000)
    x = ap.parse_args()
    open(x.o, "w").write(gen(x.nk0, x.nk1, x.nve, x.pol, x.wpol, [int(t) for t in x.stamps.split(',')] if x.stamps else None,
                             x.pattern, x.mlpos, D=x.D, cpf=not x.nocpf, prio=x.prio, skip=x.skip, spec=x.spec, spin=x.spin))
```

```python
import sys, math, struct, argparse
from asmlib import Asm
from common import NAME, KLABEL

def f32bits(x):
    return struct.unpack("<I", struct.pack("<f", x))[0]

HEADER = open("cdna_kernels/" + NAME + ".s.ref").read().split("; Override launch")[0]

SLOT = 8192
QA, QB, OP, ML = 0, 2048, 4096, 6144
YA, YB = 6656, 7168
BOFF = 256 * SLOT
GEN = 2 * BOFF
WS_BYTES = GEN + 256
L_ML, L_F, L_C1, L_C2, L_C3, L_QRDY, L_FRDY, L_G, L_REM, L_Q, L_H = 0, 64, 96, 100, 104, 108, 112, 116, 120, 128, 640
L_OP, L_YB, L_YA = 1024, 9216, 11264
L_QH = 1024
L_QG = 13312
L_MLG = 25568
L_DONE = 25600
L_LAND = 25856
RING = 32768
L_END = RING + 131072
SK, SV, SWQ, SW1, SWO, SW2, SX, SGW, SOUT, SWS = [f"s[{n}:{n+3}]" for n in range(28, 68, 4)]
sTA, sTB, sOWN = "s68", "s69", "s70"
sH, sB, sS, sW = "s72", "s73", "s74", "s75"
sT0, sT1 = "s76", "s77"
MB1, MB0 = "s[78:79]", "s[80:81]"
sOFF, sSPIN = "s82", "s83"
STAMP0 = 84
vL, vKV = "v1", "v2"
vA0, vA1, vA2, vA3, vA4 = "v3", "v4", "v5", "v6", "v7"
Q0, ACC, P0, F, COL, RA, RBv = 8, 12, 20, 24, 25, 26, 27
sLAND = "s71"
sTQ = "s33"
CSC = hex(f32bits(math.log2(math.e) / 16))

def gen(W=32, NG=14, NGW=3, pol="nt", wpol="nt", stamps=None, spin=200000, cpf=True, npoll=3, fpos=3, skip="", dstep=2, lsl=1, bar0=1, barc=4, warm=1, bo=0):
    a0 = Asm()
    class Filt:
        phase = "head"
        def __call__(self, txt, tag=None, count=True):
            out = []
            for l in txt.split("\n"):
                ls = l.strip()
                if self.phase == "head" and SWS in ls:
                    if "s" in skip and ls.startswith("buffer_store"): continue
                    if "g" in skip and ls.startswith("buffer_load"): continue
                    if "c" in skip and ls.startswith("buffer_store") and f"v[{28+8}:{28+11}]" in ls: continue
                    if "p" in skip and ls.startswith("buffer_store") and ("v[8:11], v29" in ls or "v[12:15]" in ls): continue
                    if "m" in skip and ls.startswith("buffer_store") and "offset:2560" in ls: continue
                    if "P" in skip and ls.startswith("buffer_store"): l = l.replace(" sc1", "")
                    if "N" in skip and ls.startswith("buffer_store"): l = l.replace(" sc1", " sc1 nt")
                    if "S" in skip and ls.startswith("buffer_store"): l = l.replace(" sc1", " sc0 sc1")
                out.append(l)
            a0("\n".join(out), tag=tag, count=count)
        def __getattr__(self, k): return getattr(a0, k)
        def __setattr__(self, k, v):
            if k == "phase": object.__setattr__(self, k, v)
            else: setattr(a0, k, v)
    a = Filt()
    KR = 40
    T = 28
    def stamp(i):
        if stamps and i in stamps:
            k = stamps.index(i)
            a(f"s_memrealtime s[{STAMP0+2*k}:{STAMP0+2*k+1}]")
    def srd(dst, src, size):
        n = int(dst[2:dst.index(":")])
        a(f"s_mov_b32 s{n}, s{src}\ns_mov_b32 s{n+1}, s{src+1}\ns_mov_b32 s{n+2}, {size}\ns_mov_b32 s{n+3}, 0x20000")
    SRDS = {SX: (4, 1792), SK: (6, 1 << 26), SV: (8, 1 << 26), SWQ: (10, 448 * 8192), SWO: (12, 4096 * 896), SW1: (16, 448 * 3584),
            SW2: (18, 1792 * 896), SGW: (20, 896), SOUT: (22, 1792), SWS: (26, WS_BYTES)}
    def srds(*names):
        for n in names: srd(n, *SRDS[n])
    def red8(acc):
        for k in range(4): a(f"v_permlane32_swap_b32 v{acc+k}, v{acc+k+4}")
        for k in range(4): a(f"v_add_f32 v{acc+k}, v{acc+k}, v{acc+k+4}")
        for k in range(2): a(f"v_permlane16_swap_b32 v{acc+k}, v{acc+k+2}")
        for k in range(2): a(f"v_add_f32 v{acc+k}, v{acc+k}, v{acc+k+2}")
        a(f"v_add_f32_dpp v{acc}, v{acc}, v{acc} row_ror:8 row_mask:0xf bank_mask:0x3")
        a(f"v_add_f32_dpp v{acc}, v{acc+1}, v{acc+1} row_ror:8 row_mask:0xf bank_mask:0xc")
    def gemv_step(acc, wreg, lo, hi, first, n=4):
        for i in range(n):
            a(f"v_dot2_f32_bf16 v{acc+2*i}, v{wreg+i}, v{lo}, {'0' if first else f'v{acc+2*i}'}")
            a(f"v_dot2_f32_bf16 v{acc+2*i+1}, v{wreg+i}, v{hi}, {'0' if first else f'v{acc+2*i+1}'}")
    def bc_step(acc, wreg, lo, hi, n):
        for i in range(4):
            a(f"v_dot2c_f32_bf16_dpp v{acc+2*i}, v{lo}, v{wreg+i} row_newbcast:{n} row_mask:0xf bank_mask:0xf")
            a(f"v_dot2c_f32_bf16_dpp v{acc+2*i+1}, v{hi}, v{wreg+i} row_newbcast:{n} row_mask:0xf bank_mask:0xf")
    def allred(op, v, t, bits=6):
        a(f"{op}_dpp v{v}, v{v}, v{v} quad_perm:[1,0,3,2] row_mask:0xf bank_mask:0xf")
        a(f"{op}_dpp v{v}, v{v}, v{v} quad_perm:[2,3,0,1] row_mask:0xf bank_mask:0xf")
        a(f"{op}_dpp v{v}, v{v}, v{v} row_half_mirror row_mask:0xf bank_mask:0xf")
        if bits > 3:
            a(f"{op}_dpp v{v}, v{v}, v{v} row_ror:8 row_mask:0xf bank_mask:0xf")
            a(f"v_mov_b32 v{t}, v{v}\nv_permlane16_swap_b32 v{v}, v{t}\n{op} v{v}, v{v}, v{t}")
            a(f"v_mov_b32 v{t}, v{v}\nv_permlane32_swap_b32 v{v}, v{t}\n{op} v{v}, v{v}, v{t}")
    def spin_or(ld):
        a(f"s_cmp_eq_u32 {sSPIN}, 0\ns_cbranch_scc1 {ld}\ns_sub_u32 {sSPIN}, {sSPIN}, 1")
    def retry(cond_code, reissue):
        lt, ld = a.newlabel("L_poll"), a.newlabel("L_pdone")
        a(f"{lt}:")
        cond_code()
        a(f"s_cbranch_vccz {ld}")
        spin_or(ld)
        a(reissue, count=False)
        a(f"s_waitcnt vmcnt(0)\ns_branch {lt}\n{ld}:")
    def sent_cond(regs, t):
        rs = list(regs)
        a(f"v_max3_u32 v{t}, v{rs[0]}, v{rs[1]}, v{rs[2]}"); rs = rs[3:]
        while len(rs) >= 2:
            a(f"v_max3_u32 v{t}, v{t}, v{rs[0]}, v{rs[1]}"); rs = rs[2:]
        if rs: a(f"v_max_u32 v{t}, v{t}, v{rs[0]}")
        a(f"v_cmp_eq_u32 vcc, -1, v{t}")
    def poll_sent(regs, reissue, t):
        retry(lambda: sent_cond(regs, t), reissue)
    def tag2_cond(g, t):
        a(f"v_xor_b32 v{t}, {sTA}, v{g+2}\nv_bitop3_b32 v{t}, v{t}, {sTB}, v{g+3} bitop3:0xf6\nv_cmp_ne_u32 vcc, 0, v{t}")
    def poll_pipe(nreg, sets, mk, nld, t, hit):
        n = len(sets)
        lt, ld = a.newlabel("L_pp"), a.newlabel("L_ppd")
        hits = [a.newlabel("L_pph") for _ in sets]
        for r in sets[:-1]:
            a(mk(r), count=False); a("s_nop 15\ns_nop 15")
        a(f"{lt}:")
        for k in range(n):
            a(mk(sets[(k + n - 1) % n]), count=False)
            a(f"s_waitcnt vmcnt({(n-1)*nld})")
            sent_cond(range(sets[k], sets[k] + nreg), t)
            a(f"s_cbranch_vccz {hits[k]}")
        spin_or(hits[0])
        a(f"s_branch {lt}")
        for k in range(n - 1, -1, -1):
            a(f"{hits[k]}:")
            hit(sets[k])
            if k: a(f"s_branch {ld}")
        a(f"{ld}:")
    def lds_ticket(addr, t):
        a(f"""
        v_mov_b32 v{t}, {addr}
        v_mov_b32 v{t+1}, 1
        s_waitcnt lgkmcnt(0)
        s_mov_b64 exec, 1
        ds_add_rtn_u32 v{t+1}, v{t}, v{t+1}
        s_mov_b64 exec, -1
        s_waitcnt lgkmcnt(0)
        v_readfirstlane_b32 {sT0}, v{t+1}
        """)
    def lds_wait(flag, extra, t, name):
        a(f"v_mov_b32 v{t}, {flag}\n{name}:\nds_read_b32 v{t+1}, v{t}\n{extra}\ns_waitcnt lgkmcnt(0)\nv_cmp_eq_u32 vcc, 1, v{t+1}\ns_cbranch_vccnz {name}d")
        spin_or(name + "d")
        a(f"s_sleep 1\ns_branch {name}\n{name}d:")

    def chunk_read(c, reg):
        ok, sp = a.newlabel("L_ck"), a.newlabel("L_cs")
        a(f"""
        s_cmp_gt_u32 {sLAND}, {c}
        s_cbranch_scc1 {ok}
{sp}:
        ds_read_b32 v{T+11}, v{RA} offset:{L_LAND}
        s_waitcnt lgkmcnt(0)
        v_readfirstlane_b32 {sLAND}, v{T+11}
        s_cmp_gt_u32 {sLAND}, {c}
        s_cbranch_scc1 {ok}
        """)
        spin_or(ok)
        a(f"s_sleep {lsl}\ns_branch {sp}\n{ok}:")
        slot = c % 16
        a(f"ds_read_b128 v[{reg}:{reg+3}], v{vR0 if slot < 8 else vR1} offset:{(slot % 8) * 8192}")
    def done(c):
        a(f"v_mov_b32 v{T+10}, {c+1}\ns_waitcnt lgkmcnt(0)\ns_mov_b64 exec, 1\nds_write_b32 v{RBv}, v{T+10} offset:{L_DONE}\ns_mov_b64 exec, -1")
    vR0, vR1 = 2, 0
    a(f"""
    s_cmp_ge_u32 s2, 256
    s_cbranch_scc1 L_end
    s_load_dwordx16 s[4:19], s[0:1], 0
    s_load_dwordx8 s[20:27], s[0:1], 64
    """)
    stamp(0)
    if cpf:
        a(f"""
        s_getpc_b64 s[100:101]
        s_lshr_b32 s3, s2, 3
        s_lshl_b32 s3, s3, 9
        v_cmp_gt_u32 vcc, 4, v0
        v_lshl_add_u32 v{T}, v0, 7, s3
        s_and_saveexec_b64 s[98:99], vcc
        s_cbranch_execz L_nocpf
        global_load_dword v{F}, v{T}, s[100:101]
L_nocpf:
        s_mov_b64 exec, -1
        """, count=False)
    a(f"""
    v_lshrrev_b32 v3, 6, v0
    v_and_b32 {vL}, 63, v0
    v_readfirstlane_b32 {sW}, v3
    s_and_b32 {sH}, s2, 7
    s_lshl_b32 {sH}, {sH}, 1
    s_bfe_u32 {sT0}, s2, 0x10003
    s_add_u32 {sH}, {sH}, {sT0}
    s_bfe_u32 {sB}, s2, 0x10004
    s_lshr_b32 {sS}, s2, 5
    s_mov_b32 {sSPIN}, {spin}
    s_cmp_eq_u32 {sW}, 0
    s_cbranch_scc1 L_loader
    s_sub_u32 {sW}, {sW}, 1
    s_mov_b32 {sLAND}, 0
    s_lshl_b32 {sT0}, {sW}, 10
    s_add_u32 {sT0}, {sT0}, {RING}
    v_lshl_add_u32 v{vR0}, {vL}, 4, {sT0}
    v_add_u32 v{vR1}, 0x10000, v{vR0}
    s_lshl_b32 {sT0}, {sW}, 2
    v_mov_b32 v{RBv}, {sT0}
    v_mov_b32 v{RA}, {sT0}
    {"s_barrier" if bar0 else ""}
    s_branch L_cons
    """)
    a(f"""
L_loader:
    s_setprio 3
    v_lshlrev_b32 v4, 2, {vL}
    v_mov_b32 v5, 0
    ds_write_b32 v4, v5 offset:{L_LAND}
    ds_write_b32 v4, v5 offset:{L_DONE}
    ds_write_b32 v4, v5 offset:{L_ML}
    s_lshl_b32 {sT0}, {sB}, 25
    s_lshl_b32 {sT1}, {sH}, 21
    s_add_u32 {sT0}, {sT0}, {sT1}
    s_lshl_b32 {sT1}, {sS}, 18
    s_add_u32 {sT0}, {sT0}, {sT1}
    v_lshl_add_u32 v2, {vL}, 4, {sT0}
    v_and_b32 v6, 7, {vL}
    v_lshlrev_b32 v6, 2, v6
    s_mov_b32 s30, {1<<26}
    s_mov_b32 s31, 0x20000
    s_mov_b32 s32, 0                             ; chunk
    s_mov_b32 s33, 16
    s_mov_b32 s34, 0                             ; soffset
    s_waitcnt lgkmcnt(0)
    s_mov_b32 s28, s6
    s_mov_b32 s29, s7
L_ld:
    s_cmp_lg_u32 s32, {barc}
    s_cbranch_scc1 L_ldnb
    s_barrier
L_ldnb:
    s_cmp_lt_u32 s32, s33
    s_cbranch_scc1 L_ldok
L_ldfree:
    ds_read_b32 v7, v6 offset:{L_DONE}
    s_waitcnt lgkmcnt(0)
    v_min_u32_dpp v7, v7, v7 quad_perm:[1,0,3,2] row_mask:0xf bank_mask:0xf
    v_min_u32_dpp v7, v7, v7 quad_perm:[2,3,0,1] row_mask:0xf bank_mask:0xf
    v_min_u32_dpp v7, v7, v7 row_half_mirror row_mask:0xf bank_mask:0xf
    v_readfirstlane_b32 s33, v7
    s_add_u32 s33, s33, 16
    s_cmp_lt_u32 s32, s33
    s_cbranch_scc1 L_ldok
    """)
    spin_or("L_ldok")
    a(f"""
    s_branch L_ldfree
L_ldok:
    """)
    for st in (stamps or []):
        if 200 <= st < 264:
            a(f"s_cmp_lg_u32 s32, {st-200}\ns_cbranch_scc1 L_lst{st}"); stamp(st); a(f"L_lst{st}:")
    a(f"""
    s_and_b32 s35, s32, 15
    s_lshl_b32 s35, s35, 13
    s_add_u32 s35, s35, {RING}
    s_mov_b32 m0, s35
    s_sub_u32 s36, s32, {W//8 - 1}
    v_mov_b32 v5, s36
    """)
    for p in range(8):
        if p == 4:
            a("s_add_u32 s35, s35, 4096\ns_add_u32 s34, s34, 4096\ns_mov_b32 m0, s35")
        a(f"s_waitcnt vmcnt({W-1})")
        if p == 7:
            a(f"s_cmp_lt_u32 s32, {W//8}\ns_cbranch_scc1 L_ldnp\nds_write_b32 v4, v5 offset:{L_LAND}\nL_ldnp:")
        a(f"s_nop 0\nbuffer_load_dwordx4 v2, {SK}, s34 offen offset:{(p%4)*1024} {pol} lds", count=False)
    a(f"""
    s_add_u32 s34, s34, 4096
    s_add_u32 s32, s32, 1
    s_cmp_lg_u32 s32, 32
    s_cbranch_scc1 L_ldnsw
    s_mov_b32 s28, s8
    s_mov_b32 s29, s9
    s_mov_b32 s34, 0
L_ldnsw:
    s_cmp_lt_u32 s32, 64
    s_cbranch_scc1 L_ld
    """)
    stamp(13)
    a(f"s_lshl_b32 s3, {sB}, 7\ns_add_u32 s3, s3, {GEN}\ns_load_dwordx2 s[68:69], s[26:27], s3")
    srds(SWS, SOUT)
    for k in range(W // 8 - 1, -1, -1):
        a(f"v_mov_b32 v5, {64-k}\ns_waitcnt vmcnt({8*k})\nds_write_b32 v4, v5 offset:{L_LAND}")
    a("s_waitcnt lgkmcnt(0)")
    stamp(5)
    if stamps: a(f"s_mul_i32 {sW}, s2, 7\ns_sub_u32 {sW}, 2048, {sW}")
    a("s_branch L_lsvc")
    a(f"""
L_cons:
    s_waitcnt lgkmcnt(0)
    s_lshl_b32 s3, {sB}, 7
    s_add_u32 s3, s3, {GEN}
    s_load_dwordx2 s[68:69], s[26:27], s3
    s_cmp_eq_u32 {sW}, 7
    s_cbranch_scc1 L_svc
    """)
    VE = KR + 64
    WQr, W1r, XQ, XF, AQ, AF = VE, VE + 16, VE + 24, VE + 26, VE + 32, VE + 40
    srds(SWQ)
    a(f"""
    s_mul_i32 {sT0}, {sS}, 56
    s_lshl_b32 {sT1}, {sW}, 3
    s_add_u32 {sT0}, {sT0}, {sT1}
    v_lshrrev_b32 v{T}, 5, {vL}                  ; half
    v_add_u32 v{T+1}, {sT0}, v{T}
    v_lshlrev_b32 {vA2}, 13, v{T+1}
    v_and_b32 v{T+2}, 31, {vL}
    v_lshl_add_u32 {vA2}, v{T+2}, 4, {vA2}
    s_lshl_b32 {sT1}, {sH}, 9
    v_add_u32 {vA2}, {sT1}, {vA2}
    """)
    for t in range(4):
        if t: a(f"s_mov_b32 {sT1}, {t*2*8192}")
        if "1" not in skip:
            a(f"buffer_load_dwordx4 v[{WQr+4*t}:{WQr+4*t+3}], {vA2}, {SWQ}, {sT1 if t else 0} offen {wpol}", tag="w")
    srds(SX, SW1)
    a(f"""
    v_lshrrev_b32 v{T+3}, 4, {vL}                ; rho
    v_and_b32 v{T+4}, 15, {vL}                   ; n
    v_add_u32 v{T+5}, {sT0}, v{T+3}
    v_mul_u32_u24 {vA3}, 3584, v{T+5}
    v_lshl_add_u32 {vA3}, v{T+4}, 4, {vA3}
    s_lshl_b32 {sT1}, {sH}, 8
    v_add_u32 {vA3}, {sT1}, {vA3}                ; w1 address
    s_cmp_gt_u32 {sH}, 13
    s_cbranch_scc1 L_nof1
    s_mov_b32 {sT1}, {4*3584}
    """)
    if "1" not in skip:
        a(f"buffer_load_dwordx4 v[{W1r}:{W1r+3}], {vA3}, {SW1}, 0 offen {wpol}", count=False)
        a(f"buffer_load_dwordx4 v[{W1r+4}:{W1r+7}], {vA3}, {SW1}, {sT1} offen {wpol}", count=False)
    a(f"""
L_nof1:
    s_mul_i32 {sT1}, {sB}, 448
    s_add_u32 {sT1}, {sT1}, {sT0}
    v_and_b32 v{T+5}, 3, {vL}
    v_lshl_add_u32 v{T+5}, v{T+5}, 1, v{T}
    v_add_lshl_u32 {vA0}, v{T+5}, {sT1}, 1
    v_and_b32 v{T+5}, 1, {vL}
    v_lshl_add_u32 v{T+5}, v{T+5}, 2, v{T+3}
    v_add_lshl_u32 {vA1}, v{T+5}, {sT1}, 1
    """)
    a(f"buffer_load_ushort v{XQ}, {vA0}, {SX}, 0 offen", tag="w")
    a(f"buffer_load_ushort v{XF}, {vA1}, {SX}, 0 offen", tag="w")
    if not bar0: a("s_barrier")
    srds(SWS, SWO, SW2, SOUT, SGW)
    for i in range(16): a(f"v_mov_b32 v{AQ+i}, 0")
    a(f"""
    s_mul_i32 {sT0}, {sW}, 1536
    v_lshlrev_b32 v{T+2}, 5, v{T+2}
    v_lshl_add_u32 v{T+2}, v{T}, 4, v{T+2}
    v_add_u32 v{T+2}, {sT0}, v{T+2}
    v_lshlrev_b32 v{T+4}, 5, v{T+4}
    v_lshl_add_u32 v{T+4}, v{T+3}, 3, v{T+4}     ; 32n + 8*rho
    v_add_u32 v{T+4}, {sT0}, v{T+4}
    """)
    stamp(10)
    a.wait_vm("w")
    stamp(11)
    a(f"v_lshlrev_b32 v{XQ+1}, 16, v{XQ}\nv_lshlrev_b32 v{XF+1}, 16, v{XF}")
    for t in range(4): bc_step(AQ, WQr + 4 * t, XQ, XQ + 1, t)
    for t in range(2): bc_step(AF, W1r + 4 * t, XF, XF + 1, t)
    for k in range(4): a(f"v_permlane32_swap_b32 v{AQ+k}, v{AQ+k+4}")
    for k in range(4): a(f"v_permlane32_swap_b32 v{AF+k}, v{AF+k+4}")
    for k in range(4): a(f"v_add_f32 v{AQ+k}, v{AQ+k}, v{AQ+k+4}")
    for k in range(4): a(f"v_add_f32 v{AF+k}, v{AF+k}, v{AF+k+4}")
    a(f"ds_write_b128 v{T+2}, v[{AQ}:{AQ+3}] offset:{L_QH}")
    for k in range(2): a(f"v_permlane16_swap_b32 v{AF+k}, v{AF+k+2}")
    for k in range(2): a(f"v_add_f32 v{AF+k}, v{AF+k}, v{AF+k+2}")
    a(f"ds_write_b64 v{T+4}, v[{AF}:{AF+1}] offset:{L_QH+1024}")
    lds_ticket(L_C1, T + 6)
    TAGS = f"""
    s_add_u32 {sTA}, s68, 1
    s_add_u32 {sTB}, s69, 1
    s_getreg_b32 {sTQ}, hwreg(HW_REG_XCC_ID, 0, 3)
    s_lshl_b32 s3, {sTA}, 3
    s_or_b32 {sTQ}, {sTQ}, s3
    """
    a(TAGS)
    PBs = [8, 12]
    PR = VE
    a(f"s_cmp_lg_u32 {sT0}, 6\ns_cbranch_scc1 L_k2\nv_lshlrev_b32 v{T}, 2, {vL}")
    for u in range(2):
        for th in range(3):
            for w in range(7):
                a(f"ds_read_b32 v{PR+24*u+8*th+w}, v{T} offset:{L_QH+1536*w+512*th+256*u}")
    a(f"s_lshl_b32 {sT0}, s2, 13\nv_lshl_add_u32 v{T+1}, {vL}, 4, {sT0}")
    for u in range(2): a(f"v_mov_b32 v{PBs[u]+3}, {sTQ}")
    a("s_waitcnt lgkmcnt(0)")
    for u in range(2):
        for th in range(3):
            b = PR + 24 * u + 8 * th
            a(f"v_add_f32 v{b}, v{b}, v{b+1}\nv_add_f32 v{b+2}, v{b+2}, v{b+3}\nv_add_f32 v{b+4}, v{b+4}, v{b+5}")
        for th in range(3):
            b = PR + 24 * u + 8 * th
            a(f"v_add_f32 v{b}, v{b}, v{b+2}\nv_add_f32 v{b+4}, v{b+4}, v{b+6}")
        for th in range(3):
            b = PR + 24 * u + 8 * th
            a(f"v_add_f32 v{PBs[u]+th}, v{b}, v{b+4}")
        a(f"buffer_store_dwordx4 v[{PBs[u]}:{PBs[u]+3}], v{T+1}, {SWS}, 0 offen offset:{QA+1024*u}", count=False)
    stamp(1)
    a("s_branch L_k2")
    a("L_svc:")
    a.vm = []
    GX = VE
    srds(SWS, SX, SGW)
    a(f"""
    s_mul_i32 s3, {sB}, 896
    v_lshlrev_b32 v{T+7}, 4, {vL}
    v_add_u32 v{T+8}, s3, v{T+7}
    v_cmp_gt_u32 vcc, 56, {vL}
    v_mov_b32 v{T+6}, 0x10000
    v_cndmask_b32 v{T+8}, v{T+6}, v{T+8}, vcc
    """)
    a(f"buffer_load_dwordx4 v[{GX}:{GX+3}], v{T+8}, {SX}, 0 offen", tag="w")
    a(f"buffer_load_dwordx4 v[{GX+4}:{GX+7}], v{T+7}, {SGW}, 0 offen", tag="w")
    a(f"""
    s_waitcnt lgkmcnt(0)
    """)
    if not bar0: a("s_barrier")
    a(TAGS)
    srds(SWO, SW2, SOUT, SWQ, SW1)
    a(f"""
    s_waitcnt vmcnt(0)
    """, count=False)
    G = T
    a(f"v_mov_b32 v{G}, 0")
    for i in range(4):
        x, g = GX + i, GX + 4 + i
        a(f"""
        v_lshlrev_b32 v{G+1}, 16, v{x}
        v_lshlrev_b32 v{G+2}, 16, v{g}
        v_and_b32 v{G+3}, 0xffff0000, v{x}
        v_and_b32 v{G+4}, 0xffff0000, v{g}
        v_mul_f32 v{G+1}, v{G+1}, v{G+2}
        v_mul_f32 v{G+3}, v{G+3}, v{G+4}
        v_cvt_pk_bf16_f32 v{G+1}, v{G+1}, v{G+3}
        v_lshlrev_b32 v{G+2}, 16, v{G+1}
        v_and_b32 v{G+3}, 0xffff0000, v{G+1}
        v_add_f32 v{G}, v{G}, v{G+2}
        v_add_f32 v{G}, v{G}, v{G+3}
        """)
    allred("v_add_f32", G, G + 1)
    a(f"""
    v_cvt_pk_bf16_f32 v{G}, 0, v{G}
    v_mul_f32 v{G}, {hex(f32bits(-math.log2(math.e)))}, v{G}
    v_exp_f32 v{G}, v{G}
    v_add_f32 v{G}, 1.0, v{G}
    v_rcp_f32 v{G}, v{G}
    v_cvt_pk_bf16_f32 v{G}, 0, v{G}
    v_mov_b32 v{G+1}, {L_G}
    ds_write_b32 v{G+1}, v{G}
L_k2:
    """)
    a.vm = []
    ADDRS = f"""
    s_mov_b32 s78, 0xcccccccc
    s_mov_b32 s79, 0xcccccccc
    s_mov_b32 s80, 0xaaaaaaaa
    s_mov_b32 s81, 0xaaaaaaaa
    s_lshl_b32 {sOWN}, s2, 13
    v_and_b32 v{T+1}, 7, {vL}
    v_lshrrev_b32 v{T}, 3, {vL}
    v_lshlrev_b32 v{COL}, 5, v{T+1}
    v_lshrrev_b32 v{T+2}, 5, {vL}
    v_lshl_add_u32 v{COL}, v{T+2}, 4, v{COL}
    v_bfe_u32 v{T+2}, {vL}, 4, 1
    v_lshl_add_u32 v{COL}, v{T+2}, 3, v{COL}
    v_bfe_u32 v{T+2}, {vL}, 3, 1
    v_lshl_add_u32 v{COL}, v{T+2}, 2, v{COL}
    s_lshl_b32 {sT1}, {sW}, 8
    v_add_u32 v{COL}, {sT1}, v{COL}
    s_and_b32 {sT0}, s2, 31
    s_lshl_b32 {sT0}, {sT0}, 13
    s_add_u32 {sT0}, {sT0}, {OP}
    v_lshlrev_b32 {vA1}, 18, v{T+1}
    v_add_u32 {vA1}, {sT0}, {vA1}
    v_lshl_add_u32 {vA2}, v{T}, 4, {vA1}
    s_lshl_b32 {sT1}, {sW}, 7
    v_add_u32 {vA2}, {sT1}, {vA2}
    s_lshl_b32 {sT1}, {sS}, 7
    v_lshl_add_u32 v{T+1}, v{T+1}, 4, {sT1}
    s_lshl_b32 {sT0}, {sH}, 8
    s_lshl_b32 {sT1}, {sW}, 5
    s_add_u32 {sT0}, {sT0}, {sT1}
    v_lshl_add_u32 v{T+2}, v{T}, 2, {sT0}
    v_mul_u32_u24 v{T+2}, 896, v{T+2}
    v_add_u32 {vA3}, v{T+2}, v{T+1}
    s_lshr_b32 {sT0}, {sT0}, 1
    v_lshl_add_u32 v{T+2}, v{T}, 1, {sT0}
    v_mul_u32_u24 v{T+2}, 896, v{T+2}
    v_add_u32 {vA4}, v{T+2}, v{T+1}              ; w2 rows 128h+16w+2r+j
    v_and_b32 v{T}, 31, {vL}
    v_lshlrev_b32 {vA0}, 4, v{T}
    s_and_b32 {sT0}, s2, 31
    s_lshl_b32 {sT0}, {sT0}, 13
    s_lshl_b32 {sT1}, {sW}, 18
    s_add_u32 {sT0}, {sT0}, {sT1}
    v_lshl_add_u32 v8, {vL}, 4, {sT0}
    v_lshl_add_u32 v12, {vL}, 4, {sOWN}
    s_mul_i32 {sT1}, {sW}, 1536
    v_lshl_add_u32 v9, {vL}, 2, {sT1}
    """
    a(ADDRS)
    def drain(c0, c1):
        for c in range(c0, c1):
            chunk_read(c, KR + 4 * c)
            if (c + 1) % dstep == 0 or c == c1 - 1: done(c)
    drain(0, NG)
    GB = KR + 96
    gl = "\n".join(f"buffer_load_dwordx4 v[{GB+4*u}:{GB+4*u+3}], v8, {SWS}, 0 offen offset:{QA+1024*u} sc1" for u in range(2))
    glb = gl.replace(f"offset:{QA} ", f"offset:{QB} ").replace(f"offset:{QA+1024} ", f"offset:{QB+1024} ")
    def wt_copy(must):
        lt, ld = a.newlabel("L_wt"), a.newlabel("L_wtd")
        a(f"""
{lt}:
        buffer_load_dwordx4 v[{GB+8}:{GB+11}], v12, {SWS}, 0 offen offset:{QA} sc1
        buffer_load_dwordx4 v[{GB+12}:{GB+15}], v12, {SWS}, 0 offen offset:{QA+1024} sc1
        s_waitcnt vmcnt(0)
        v_xor_b32 v10, {sTQ}, v{GB+11}
        v_bitop3_b32 v10, v10, {sTQ}, v{GB+15} bitop3:0xf6
        v_cmp_ne_u32 vcc, 0, v10
        s_cbranch_vccz {ld}s
        """, count=False)
        if must:
            spin_or(ld); a(f"s_branch {lt}")
        else:
            a(f"s_branch {ld}")
        a(f"""
{ld}s:
        buffer_store_dwordx4 v[{GB+8}:{GB+11}], v12, {SWS}, 0 offen offset:{QB} sc1
        buffer_store_dwordx4 v[{GB+12}:{GB+15}], v12, {SWS}, 0 offen offset:{QB+1024} sc1
{ld}:
        """, count=False)
    a(gl, count=False)
    drain(NG, NG + NGW)
    assert NG + NGW <= 24
    a("s_waitcnt vmcnt(0)")
    a(f"""
    s_mov_b32 s34, 0
L_g:
    v_xor_b32 v10, {sTQ}, v{GB+3}
    v_bitop3_b32 v10, v10, {sTQ}, v{GB+7} bitop3:0xf6
    v_cmp_ne_u32 vcc, 0, v10
    s_cbranch_vccz L_gd
    v_cmp_lt_u32 vcc, 7, v10
    s_cbranch_vccz L_grem
    """)
    spin_or("L_gd")
    a(f"s_add_u32 s34, s34, 1\ns_and_b32 s3, s34, 15\ns_cbranch_scc0 L_gfb\n{gl}\ns_waitcnt vmcnt(0)\ns_branch L_g\nL_gfb:", count=False)
    wt_copy(False)
    a(f"{glb}\ns_waitcnt vmcnt(0)\ns_branch L_g\nL_grem:", count=False)
    a(f"v_mov_b32 v10, {L_REM}\nv_mov_b32 v11, 1\nds_write_b32 v10, v11")
    wt_copy(True)
    a("L_gd:")
    stamp(12)
    for u in range(2):
        for th in range(3):
            a(f"ds_write_b32 v9, v{GB+4*u+th} offset:{L_QG+512*th+256*u}")
    lds_ticket(L_C3, 10)
    a(f"s_cmp_lg_u32 {sT0}, 7\ns_cbranch_scc1 L_noq\nv_lshlrev_b32 v9, 3, {vL}")
    a(f"v_lshlrev_b32 v8, 2, {vL}\nv_mov_b32 v11, 1\nv_mov_b32 v12, {L_QRDY}")
    def qreads(th):
        for w in range(8):
            a(f"ds_read_b64 v[{GB+16*(th%2)+2*w}:{GB+16*(th%2)+2*w+1}], v9 offset:{L_QG+1536*w+512*th}")
    qreads(0); qreads(1)
    for th in range(3):
        b = GB + 16 * (th % 2)
        a("s_waitcnt lgkmcnt(0)")
        for st in (1, 2, 4):
            for w in range(0, 8, 2 * st):
                for e in range(2): a(f"v_add_f32 v{b+2*w+e}, v{b+2*w+e}, v{b+2*(w+st)+e}")
        if th == 2: a(f"v_maximum3_f32 v{b}, v{b}, 0, 0\nv_maximum3_f32 v{b+1}, v{b+1}, 0, 0")
        a(f"v_cvt_pk_bf16_f32 v{13+th}, v{b}, v{b+1}\nds_write_b32 v8, v{13+th} offset:{L_Q+256*th}")
        if th == 0: qreads(2)
    a("s_waitcnt lgkmcnt(0)\nds_write_b32 v12, v11")
    stamp(17)
    a(f"""
L_noq:
    s_cmp_lg_u32 {sW}, 0
    s_cbranch_scc1 L_noclr
    s_add_u32 {sT0}, {sOWN}, {OP}
    v_lshl_add_u32 v{T}, {vL}, 4, {sT0}
    v_mov_b32 v8, -1
    v_mov_b32 v9, -1
    v_mov_b32 v10, -1
    v_mov_b32 v11, -1
    buffer_store_dwordx4 v[8:11], v{T}, {SWS}, 0 offen
L_noclr:
    """, count=False)
    drain(NG + NGW, 32)
    a("s_waitcnt vmcnt(0)")
    stamp(2)
    lds_wait(L_QRDY, f"ds_read_b128 v[{Q0}:{Q0+3}], {vA0} offset:{L_Q}", T, "L_rdy")
    stamp(3)
    def R(j): return KR + 4 * j
    for g0 in range(0, 32, 8):
        for i in range(4):
            for j in range(g0, g0 + 8):
                a(f"v_dot2_f32_bf16 v{R(j)}, v{R(j)+i}, v{Q0+i}, {'0' if i == 0 else f'v{R(j)}'}")
    for j in range(0, 32, 2): a(f"v_permlane16_swap_b32 v{R(j)}, v{R(j+1)}")
    for j in range(0, 32, 2): a(f"v_add_f32 v{R(j)}, v{R(j)}, v{R(j+1)}")
    for st, ctl, m0, m1 in ((2, "row_ror:8", 3, 12), (4, "row_half_mirror", 5, 10)):
        for j in range(0, 32, 2 * st):
            a(f"v_add_f32_dpp v{R(j)}, v{R(j)}, v{R(j)} {ctl} row_mask:0xf bank_mask:{m0}")
        for j in range(0, 32, 2 * st):
            a(f"v_add_f32_dpp v{R(j)}, v{R(j+st)}, v{R(j+st)} {ctl} row_mask:0xf bank_mask:{m1}")
    for st, qp, m in ((8, "[2,3,0,1]", MB1), (16, "[1,0,3,2]", MB0)):
        for j in range(0, 32, st):
            a(f"v_add_f32_dpp v{R(j)}, v{R(j)}, v{R(j)} quad_perm:{qp} row_mask:0xf bank_mask:0xf")
        for j in range(0, 32, 2 * st):
            a(f"v_cndmask_b32 v{R(j)}, v{R(j)}, v{R(j+st)}, {m}")
    S = T + 8
    a(f"v_cvt_pk_bf16_f32 v{S}, 0, v{R(0)}\nv_mov_b32 v{T}, v{S}")
    allred("v_max_f32", T, T + 1)
    a(f"""
    v_sub_f32 v{S}, v{S}, v{T}
    v_mul_f32 v{S}, {CSC}, v{S}
    v_exp_f32 v{S}, v{S}
    v_mov_b32 v{T+1}, v{S}
    """)
    allred("v_add_f32", T + 1, T + 2)
    a(f"""
    s_lshl_b32 {sT0}, {sW}, 3
    v_mov_b32 v{T+2}, {sT0}
    ds_write_b64 v{T+2}, v[{T}:{T+1}] offset:{L_ML}
    v_cvt_pk_bf16_f32 v{P0}, v{S}, 0
    v_cvt_pk_bf16_f32 v{P0+1}, 0, v{S}
    v_mov_b32 v{P0+2}, v{P0}
    v_mov_b32 v{P0+3}, v{P0+1}
    v_permlane16_swap_b32 v{P0}, v{P0+2}
    v_permlane16_swap_b32 v{P0+1}, v{P0+3}
    """)
    lds_ticket(L_C2, T + 2)
    M4 = Q0
    a(f"""
    s_cmp_lg_u32 {sT0}, 7
    s_cbranch_scc1 L_noml
    v_and_b32 v{T+2}, 7, {vL}
    v_lshlrev_b32 v{T+3}, 3, v{T+2}
    ds_read_b64 v[{T+4}:{T+5}], v{T+3} offset:{L_ML}
    v_lshlrev_b32 v{T+3}, 2, v{T+2}
    v_mov_b32 v{T+2}, {sOWN}
    s_waitcnt lgkmcnt(0)
    v_mov_b32 v{M4}, v{T+4}
    """)
    allred("v_max_f32", M4, T + 1, bits=3)
    a(f"""
    v_sub_f32 v{T+4}, v{T+4}, v{M4}
    v_mul_f32 v{T+4}, {CSC}, v{T+4}
    v_exp_f32 v{T+4}, v{T+4}
    v_mul_f32 v{M4+1}, v{T+4}, v{T+5}
    ds_write_b32 v{T+3}, v{T+4} offset:{L_F}
    v_mov_b32 v{T+3}, {L_FRDY}
    v_mov_b32 v{T+7}, 1
    s_waitcnt lgkmcnt(0)
    ds_write_b32 v{T+3}, v{T+7}
    """)
    allred("v_add_f32", M4 + 1, T + 6, bits=3)
    a(f"""
    v_mov_b32 v{M4+2}, {sTA}
    v_mov_b32 v{M4+3}, {sTB}
    s_mov_b64 exec, 1
    v_add_u32 v{T+2}, {ML}, v{T+2}
    buffer_store_dwordx4 v[{M4}:{M4+3}], v{T+2}, {SWS}, 0 offen
    v_mov_b32 v{T+3}, {L_MLG}
    ds_write_b128 v{T+3}, v[{M4}:{M4+3}]
    s_mov_b64 exec, -1
    s_nop 1
L_noml:
    """, count=False)
    stamp(4)
    NVT = 4
    VL = KR + 4
    WOr = VL + 4 * NVT; W2r = WOr + 16; MLr = W2r + 8; EV = MLr + 4
    for i in range(8): a(f"v_mov_b32 v{ACC+i}, 0")
    def vreg(j): return VL + 4 * (j % NVT)
    def pv(j):
        pr = P0 + 2 * (j & 1)
        n = ((j >> 1) & 1) << 3 | ((j >> 2) & 1) << 2 | ((j >> 3) & 1) << 1 | ((j >> 4) & 1)
        bc_step(ACC, vreg(j), pr, pr + 1, n)
    mlload = f"buffer_load_dwordx4 v[{MLr}:{MLr+3}], {vA1}, {SWS}, 0 offen offset:{ML-OP} sc1"
    ACB = EV + 4
    FW = T + 7
    def w2part():
        a(f"""
        v_mov_b32 v{ACB}, 0
        s_cmp_eq_u32 {sS}, 7
        s_cbranch_scc1 L_now2b
        s_cmp_gt_u32 {sH}, 13
        s_cbranch_scc1 L_now2c
        v_lshrrev_b32 v{T}, 3, {vL}
        s_lshl_b32 {sT0}, {sW}, 5
        v_lshl_add_u32 v{T}, v{T}, 2, {sT0}
        ds_read_b32 v{T+4}, v{T} offset:{L_H}
        s_waitcnt lgkmcnt(0)
        v_and_b32 v{T}, 0xffff, v{T+4}
        v_lshlrev_b32 v{T+1}, 16, v{T+4}
        v_lshrrev_b32 v{T+2}, 16, v{T+4}
        v_and_b32 v{T+3}, 0xffff0000, v{T+4}
        """)
        gemv_step(ACB, W2r, T, T + 1, True)
        gemv_step(ACB, W2r + 4, T + 2, T + 3, False)
        red8(ACB)
        a(f"L_now2c:\nds_write_b32 v{COL}, v{ACB} offset:{L_YB}\nL_now2b:")
        a(f"""
        v_and_b32 v{T+4}, 31, {vL}
        v_lshlrev_b32 v{T+4}, 5, v{T+4}
        v_lshrrev_b32 v{T+5}, 5, {vL}
        v_lshl_add_u32 v{T+4}, v{T+5}, 4, v{T+4}
        s_lshl_b32 {sT0}, {sW}, 10
        v_add_u32 v{T+4}, {sT0}, v{T+4}
        """)
    def mlcalc(remote):
        retry(lambda: tag2_cond(MLr, T), mlload.replace(", 0 offen", ", s4 offen") if remote else mlload)
        a(f"v_mov_b32 v{T}, v{MLr}")
        allred("v_max_f32", T, T + 1, bits=3)
        a(f"""
        v_sub_f32 v{T}, v{MLr}, v{T}
        v_mul_f32 v{T}, {CSC}, v{T}
        v_exp_f32 v{T}, v{T}
        v_mul_f32 v{T+1}, v{T}, v{MLr+1}
        """)
        allred("v_add_f32", T + 1, T + 2, bits=3)
        a(f"v_rcp_f32 v{T+1}, v{T+1}\nv_mul_f32 v{F}, v{T}, v{T+1}")
    wl = [("o", j) for j in range(4)] + [("2", j) for j in range(2)]
    def wload(kind, j):
        lb = a.newlabel("L_nw")
        a(f"s_cmp_eq_u32 {sS}, 7\ns_cbranch_scc1 {lb}")
        if kind == "2":
            a(f"s_cmp_gt_u32 {sH}, 13\ns_cbranch_scc1 {lb}")
            a(f"buffer_load_dwordx4 v[{W2r+4*j}:{W2r+4*j+3}], {vA4}, {SW2}, 0 offen offset:{896*j} {wpol}", count=False)
        else:
            a(f"buffer_load_dwordx4 v[{WOr+4*j}:{WOr+4*j+3}], {vA3}, {SWO}, 0 offen offset:{896*j} {wpol}", count=False)
        a(f"{lb}:")
    chunk_read(32, vreg(0))
    for j in range(32):
        if wl and "2" not in skip: wload(*wl.pop(0))
        if j == 12:
            a("s_waitcnt vmcnt(0)"); w2part()
        if j == 32 - fpos:
            a(mlload, count=False)
            lds_wait(L_FRDY, f"ds_read_b32 v{FW}, v{RA} offset:{L_F}", T, "L_frdy")
        if j < 48 - 32 and j % dstep == dstep - 1: done(32 + j)
        else: a("s_waitcnt lgkmcnt(0)")
        if j < 24: chunk_read(32 + j + 1, vreg(j + 1))
        pv(j); stamp(60 + j)
        if 24 <= j < 31: chunk_read(32 + j + 1, vreg(j + 1))
    a("s_waitcnt vmcnt(0)")
    stamp(5)
    a.phase = "tail"
    for k in range(4): a(f"v_permlane32_swap_b32 v{ACC+k}, v{ACC+k+4}")
    for k in range(4): a(f"v_add_f32 v{ACC+k}, v{ACC+k}, v{ACC+k+4}")
    for k in range(4): a(f"v_mul_f32 v{ACC+k}, v{FW}, v{ACC+k}")
    B = KR + 64
    def gcheck(grans, t):
        for k, g in enumerate(grans):
            if k == 0: a(f"v_xor_b32 v{t}, {sTA}, v{g+1}\nv_xor_b32 v{t+1}, {sTB}, v{g+3}")
            else: a(f"v_bitop3_b32 v{t}, v{t}, {sTA}, v{g+1} bitop3:0xf6\nv_bitop3_b32 v{t+1}, v{t+1}, {sTB}, v{g+3} bitop3:0xf6")
        a(f"v_or_b32 v{t}, v{t}, v{t+1}\nv_cmp_ne_u32 vcc, 0, v{t}")
    def sum_pairs(lds, stride, n):
        for w in range(n): a(f"ds_read_b64 v[{B+2*w}:{B+2*w+1}], v{T+8} offset:{lds+stride*w}")
        a("s_waitcnt lgkmcnt(0)")
        for st in (1, 2):
            for w in range(0, 8, 2 * st):
                a(f"v_add_f32 v{B+2*w}, v{B+2*w}, v{B+2*(w+st)}\nv_add_f32 v{B+2*w+1}, v{B+2*w+1}, v{B+2*(w+st)+1}")
        a(f"v_add_f32 v{PG}, v{B}, v{B+8}\nv_add_f32 v{PG+2}, v{B+1}, v{B+9}")
    PG = B + 16
    a(f"""
    ds_write_b128 v{T+4}, v[{ACC}:{ACC+3}] offset:{L_OP}
    v_mov_b32 v{T+5}, {L_REM}
    ds_read_b32 v{T+5}, v{T+5}
    s_lshl_b32 {sT0}, {sW}, 8
    v_lshl_add_u32 v{T+8}, {vL}, 2, {sT0}
    s_add_u32 {sT1}, {sOWN}, {OP}
    v_add_u32 v{T+9}, {sT1}, v{T+8}
    s_waitcnt lgkmcnt(0)
    v_readfirstlane_b32 s35, v{T+5}
    s_barrier
    """)
    stamp(14)
    O = B + 24
    a(f"s_cmp_lg_u32 s35, 0\ns_cbranch_scc1 L_remote\ns_cmp_gt_u32 {sW}, 3\ns_cbranch_scc1 L_hop1")
    for w in range(8): a(f"ds_read_b32 v{B+w}, v{T+8} offset:{L_OP+1024*w}")
    a("s_waitcnt lgkmcnt(0)")
    for st in (1, 2, 4):
        for w in range(0, 8, 2 * st): a(f"v_add_f32 v{B+w}, v{B+w}, v{B+w+st}")
    opl = f"buffer_load_dwordx4 v[{O}:{O+3}], {vA2}, {SWS}, 0 offen sc1"
    a(f"""
    v_min_u32 v{B}, -2, v{B}
    buffer_store_dword v{B}, v{T+9}, {SWS}, 0 offen
L_hop1:
    s_cmp_eq_u32 {sS}, 7
    s_cbranch_scc1 L_fin
    """, count=False)
    mlcalc(False)
    a(opl + "\ns_waitcnt vmcnt(0)", count=False)
    stamp(9)
    poll_sent([O, O + 1, O + 2, O + 3], (f"s_sleep {bo}\n" if bo else "") + opl, T)
    a(f"v_mul_f32 v{O+6}, v{F}, v{O+3}\nv_mul_f32 v{O+4}, v{F}, v{O+2}\nv_mul_f32 v{O+2}, v{F}, v{O+1}\nv_mul_f32 v{O}, v{F}, v{O}\nL_hop1d:")
    stamp(6)
    for qp in ("quad_perm:[1,0,3,2]", "quad_perm:[2,3,0,1]", "row_half_mirror"):
        for i in range(4): a(f"v_add_f32_dpp v{O+2*i}, v{O+2*i}, v{O+2*i} {qp} row_mask:0xf bank_mask:0xf")
    for i in range(4): a(f"v_cvt_pk_bf16_f32 v{O+2*i+1}, 0, v{O+2*i}")
    for i in range(4): a(f"v_cvt_pk_bf16_f32 v{O+2*i}, v{O+2*i}, 0")
    for j in range(4): gemv_step(ACC, WOr + 4 * j, O + 2 * j, O + 2 * j + 1, j == 0)
    red8(ACC)
    a(f"""
    ds_write_b32 v{COL}, v{ACC} offset:{L_YA}
    v_and_b32 v{T+8}, 31, {vL}
    v_lshlrev_b32 v{T+8}, 3, v{T+8}
    s_add_u32 {sT1}, {sOWN}, {YA}
    v_lshl_add_u32 v{T+9}, v{T+8}, 1, {sT1}
    v_mov_b32 v{PG+1}, {sTA}
    v_mov_b32 v{PG+3}, {sTB}
    s_waitcnt lgkmcnt(0)
    s_barrier
    """)
    stamp(15)
    a(f"s_cmp_lg_u32 {sW}, 0\ns_cbranch_scc1 L_fin")
    sum_pairs(L_YA, 256, 8)
    a(f"""
    s_mov_b32 exec_hi, 0
    buffer_store_dwordx4 v[{PG}:{PG+3}], v{T+9}, {SWS}, 0 offen sc1
    s_mov_b64 exec, -1
    s_branch L_fin
    """, count=False)
    a(f"""
L_remote:
    s_mov_b32 s4, {BOFF}
    v_mov_b32 v{PG+1}, {sTA}
    v_mov_b32 v{PG+3}, {sTB}
    s_cmp_gt_u32 {sW}, 2
    s_cbranch_scc1 L_rem1
    s_cmp_eq_u32 {sW}, 2
    s_cbranch_scc1 L_remml
    s_lshl_b32 {sT0}, {sW}, 9
    v_lshl_add_u32 v{T+8}, {vL}, 3, {sT0}
    s_add_u32 {sT1}, {sOWN}, {OP}
    v_lshl_add_u32 v{T+9}, v{T+8}, 1, {sT1}
    """)
    sum_pairs(L_OP, 1024, 8)
    a(f"""
    s_branch L_remst
L_remml:
    v_mov_b32 v{T+8}, {L_MLG}
    ds_read_b128 v[{PG}:{PG+3}], v{T+8}
    s_add_u32 {sT1}, {sOWN}, {ML}
    v_mov_b32 v{T+9}, {sT1}
    s_waitcnt lgkmcnt(0)
L_remst:
    buffer_store_dwordx4 v[{PG}:{PG+3}], v{T+9}, {SWS}, s4 offen sc1
L_rem1:
    s_cmp_eq_u32 {sS}, 7
    s_cbranch_scc1 L_fin
    v_sub_u32 v{T+8}, {vA2}, {vA1}
    v_lshl_add_u32 v{T+8}, v{T+8}, 1, {vA1}
    """, count=False)
    mlcalc(True)
    oplb = (f"buffer_load_dwordx4 v[{O}:{O+3}], v{T+8}, {SWS}, s4 offen sc1\n"
            f"buffer_load_dwordx4 v[{O+4}:{O+7}], v{T+8}, {SWS}, s4 offen offset:16 sc1")
    a(oplb + "\ns_waitcnt vmcnt(0)", count=False)
    retry(lambda: gcheck([O, O + 4], T), oplb)
    for i in range(4): a(f"v_mul_f32 v{O+2*i}, v{F}, v{O+2*i}")
    a("s_branch L_hop1d")
    a(f"""
L_lsvc:
    s_cmp_eq_u32 {sS}, 7
    s_cbranch_scc1 L_fin
    s_add_u32 {sTA}, s68, 1
    s_add_u32 {sTB}, s69, 1
    s_lshl_b32 {sOWN}, s2, 13
    v_and_b32 v{T+8}, 31, {vL}
    v_lshlrev_b32 v{T+8}, 3, v{T+8}
    s_add_u32 {sT1}, {sOWN}, {YB}
    v_lshl_add_u32 v{T+9}, v{T+8}, 1, {sT1}
    v_mov_b32 v{PG+1}, {sTA}
    v_mov_b32 v{PG+3}, {sTB}
    s_barrier
    """)
    sum_pairs(L_YB, 256, 8)
    a(f"""
    s_mov_b32 exec_hi, 0
    buffer_store_dwordx4 v[{PG}:{PG+3}], v{T+9}, {SWS}, 0 offen sc1
    s_mov_b64 exec, -1
    s_lshl_b32 {sT0}, {sS}, 1
    s_add_u32 {sT0}, {sT0}, {sB}
    s_cmp_lg_u32 {sT0}, {sH}
    s_cbranch_scc1 L_fin
    s_and_b32 {sT0}, s2, 0xf0
    s_lshl_b32 {sT0}, {sT0}, 13
    s_add_u32 {sT0}, {sT0}, {YA}
    v_lshrrev_b32 v{T+5}, 5, {vL}
    v_lshlrev_b32 v{T}, 13, v{T+5}
    v_lshl_add_u32 v{T}, v{T+8}, 1, v{T}
    v_add_u32 {vA0}, {sT0}, v{T}
    v_mov_b32 v{T+2}, {L_G}
    ds_read_b32 v{T+3}, v{T+2}
    """, count=False)
    for k in range(1, 8): a(f"s_mov_b32 s{3+k}, {k*2*SLOT}")
    so = ["0"] + [f"s{3+k}" for k in range(1, 8)]
    mk = lambda r, off: "\n".join(f"buffer_load_dwordx4 v[{r+4*k}:{r+4*k+3}], {vA0}, {SWS}, {so[k]} offen offset:{off} sc1" for k in range(8))
    YBr, YAr = KR, KR + 32
    sets = [KR + 32, KR + 64, KR + 96][:npoll]
    a(mk(YBr, YB - YA), count=False)
    a(f"""
    v_lshrrev_b32 v{T+4}, 2, v{T+8}
    v_add_u32 v{T+4}, v{T+4}, v{T+5}
    s_mul_i32 {sT0}, {sB}, 448
    s_lshl_b32 {sT1}, {sS}, 6
    s_add_u32 {sT0}, {sT0}, {sT1}
    v_add_lshl_u32 v{T+4}, v{T+4}, {sT0}, 1
    s_waitcnt lgkmcnt(0)
    v_sub_f32 v{T+6}, 1.0, v{T+3}
    v_cvt_pk_bf16_f32 v{T+6}, 0, v{T+6}
    """)
    def tree(dst, src):
        for e in range(2):
            for k in range(0, 8, 2): a(f"v_add_f32 v{dst+4*e+k//2}, v{src+4*k+2*e}, v{src+4*k+4+2*e}")
        for e in range(2):
            a(f"v_add_f32 v{dst+4*e}, v{dst+4*e}, v{dst+4*e+1}\nv_add_f32 v{dst+4*e+2}, v{dst+4*e+2}, v{dst+4*e+3}")
        for e in range(2): a(f"v_add_f32 v{dst+4*e}, v{dst+4*e}, v{dst+4*e+2}")
        a(f"v_permlane32_swap_b32 v{dst}, v{dst+4}\nv_add_f32 v{dst}, v{dst}, v{dst+4}\nv_cvt_pk_bf16_f32 v{dst}, 0, v{dst}")
    RA_, RB_ = 8, 16
    n = len(sets)
    lt, ld = "L_pp", "L_ppd"
    a(mk(sets[0], 0), count=False)
    a("s_barrier\ns_waitcnt vmcnt(0)")
    for r in sets[:-1]: a(mk(r, 0), count=False)
    retry(lambda: gcheck([YBr + 4 * k for k in range(8)], T), mk(YBr, YB - YA))
    tree(RB_, YBr)
    a(f"v_mul_f32 v{RB_}, v{T+6}, v{RB_}\nv_cvt_pk_bf16_f32 v{RB_}, 0, v{RB_}\n{lt}:")
    for k in range(n):
        a(mk(sets[(k + n - 1) % n], 0), count=False)
        a(f"s_waitcnt vmcnt({(n-1)*8})")
        gcheck([sets[k] + 4 * j for j in range(8)], T)
        a(f"s_cbranch_vccz L_pph{k}")
    spin_or("L_pph0")
    a(f"s_branch {lt}")
    for k in range(n - 1, -1, -1):
        a(f"L_pph{k}:")
        tree(RA_, sets[k])
        if k: a(f"s_branch {ld}")
    a(f"{ld}:")
    stamp(16)
    a(f"""
    v_mul_f32 v{RA_}, v{T+3}, v{RA_}
    v_cvt_pk_bf16_f32 v{RA_}, 0, v{RA_}
    v_add_f32 v{RA_}, v{RA_}, v{RB_}
    v_cvt_pk_bf16_f32 v{RA_}, v{RA_}, 0
    buffer_store_short v{RA_}, v{T+4}, {SOUT}, 0 offen
    s_cmp_lg_u32 {sS}, 0
    s_cbranch_scc1 L_fin
    s_lshl_b32 {sT0}, {sB}, 7
    s_add_u32 {sT0}, {sT0}, {GEN}
    v_mov_b32 v{T}, {sT0}
    v_mov_b32 v{T+10}, {sTA}
    v_mov_b32 v{T+11}, {sTB}
    s_mov_b64 exec, 1
    buffer_store_dwordx2 v[{T+10}:{T+11}], v{T}, {SWS}, 0 offen
    s_mov_b64 exec, -1
L_fin:
    """, count=False)
    if stamps:
        a("s_waitcnt vmcnt(0)")
        stamp(7)
        a(f"""
        s_waitcnt lgkmcnt(0)
        s_lshl_b32 s3, s2, 3
        s_add_u32 s3, s3, {sW}
        s_lshl_b32 s3, s3, 6
        s_add_u32 s3, s3, {128<<20}
        v_mov_b32 v{T}, s3
        s_mov_b64 exec, 1
        """)
        for k in range(4):
            for i in range(4): a(f"v_mov_b32 v{B+4*k+i}, s{STAMP0+4*k+i}")
            a(f"global_store_dwordx4 v{T}, v[{B+4*k}:{B+4*k+3}], s[26:27] offset:{16*k}", count=False)
    a("L_end:\ns_endpgm")
    pad = "\n.fill 4096, 4, 0xbf810000\n" if cpf else ""
    return f"""{HEADER}; @launch grid=(256,1,1) block=(576,1,1) lds={L_END}
.amdgcn_target "amdgcn-amd-amdhsa--gfx950"
.text
.globl {KLABEL}
.p2align 8
.type {KLABEL},@function
{KLABEL}:
{a.text()}{pad}
.section .rodata,"a"
.p2align 6
.amdhsa_kernel {KLABEL}
  .amdhsa_next_free_vgpr 168
  .amdhsa_next_free_sgpr 102
  .amdhsa_accum_offset 168
  .amdhsa_group_segment_fixed_size 0
  .amdhsa_kernarg_size 96
  .amdhsa_user_sgpr_count 2
  .amdhsa_user_sgpr_kernarg_segment_ptr 1
  .amdhsa_system_sgpr_workgroup_id_x 1
.end_amdhsa_kernel
"""

if __name__ == "__main__":
    ap = argparse.ArgumentParser()
    ap.add_argument("-o", default="k.s")
    ap.add_argument("--stamps", default="")
    for n, d in (("w", 32), ("ng", 10), ("ngw", 2), ("npoll", 2), ("fpos", 3), ("spin", 200000), ("dstep", 2), ("lsl", 1), ("bar0", 1), ("barc", 2), ("warm", 1), ("bo", 0)):
        ap.add_argument("--" + n, type=int, default=d)
    ap.add_argument("--pol", default="nt")
    ap.add_argument("--wpol", default="nt")
    ap.add_argument("--nocpf", action="store_true")
    ap.add_argument("--skip", default="")
    x = ap.parse_args()
    open(x.o, "w").write(gen(x.w, x.ng, x.ngw, x.pol, x.wpol, [int(t) for t in x.stamps.split(',')] if x.stamps else None,
                             x.spin, not x.nocpf, x.npoll, x.fpos, x.skip, x.dstep, x.lsl, x.bar0, x.barc, x.warm, x.bo))
```

```python
import sys, math, struct, argparse
from asmlib import Asm
from common import NAME, KLABEL

def f32bits(x):
    return struct.unpack("<I", struct.pack("<f", x))[0]

HEADER = open("cdna_kernels/" + NAME + ".s.ref").read().split("; Override launch")[0]

SLOT = 8192
QA, QB, OP, ML = 0, 2048, 4096, 6144
YA, YB = 6656, 7168
BOFF = 256 * SLOT
GEN = 2 * BOFF
WS_BYTES = GEN + 256
L_ML, L_F, L_C1, L_C2, L_C3, L_QRDY, L_FRDY, L_G, L_REM, L_Q, L_H = 0, 64, 96, 100, 104, 108, 112, 116, 120, 128, 640
L_OP, L_YB, L_YA = 1024, 9728, 11776
OPS = 1056
L_QH = 1024
L_QG = 13312
L_MLG = 25568
L_DONE = 25600
L_LAND = 25856
RING = 32768
L_END = RING + 131072
SK, SV, SWQ, SW1, SWO, SW2, SX, SGW, SOUT, SWS = [f"s[{n}:{n+3}]" for n in range(28, 68, 4)]
sTA, sTB, sOWN = "s68", "s69", "s70"
sH, sB, sS, sW = "s72", "s73", "s74", "s75"
sT0, sT1 = "s76", "s77"
MB1, MB0 = "s[78:79]", "s[80:81]"
sOFF, sSPIN = "s82", "s83"
STAMP0 = 84
vL, vKV = "v1", "v2"
vA0, vA1, vA2, vA3, vA4 = "v3", "v4", "v5", "v6", "v7"
Q0, ACC, P0, F, COL, RA, RBv = 8, 12, 20, 24, 25, 26, 27
sLAND = "s71"
sTQ = "s29"
sMISS, sREM = "s30", "s31"
vD = 7
MOWN = "s[78:79]"
CSC = hex(f32bits(math.log2(math.e) / 16))

def gen(W=32, NG=14, NGW=3, pol="nt", wpol="nt", stamps=None, spin=200000, cpf=True, npoll=3, fpos=3, skip="", dstep=2, lsl=1, bar0=1, nburst=4, warm=1, bo=0, ndir=1, dpos=4, dry=0, ypol='sc1', wsched='', touch=1, ybo=0, h1p=1, fpol='sc1', rpol='sc1', rinv=0):
    a0 = Asm()
    class Filt:
        phase = "head"
        def __call__(self, txt, tag=None, count=True):
            out = []
            for l in txt.split("\n"):
                ls = l.strip()
                if self.phase == "head" and SWS in ls:
                    if "s" in skip and ls.startswith("buffer_store"): continue
                    if "g" in skip and ls.startswith("buffer_load"): continue
                    if "c" in skip and ls.startswith("buffer_store") and "v[8:11], v28" in ls: continue
                    if "p" in skip and ls.startswith("buffer_store") and ("v[8:11], v29" in ls or "v[12:15], v29" in ls): continue
                    if "m" in skip and ls.startswith("buffer_store") and "v[8:11], v30" in ls: continue
                    if "N" in skip and ls.startswith("buffer_store") and "sc1" not in ls: l = l + " nt"
                    if "0" in skip and ls.startswith("buffer_store") and "sc1" not in ls: l = l + " sc0"
                out.append(l)
            a0("\n".join(out), tag=tag, count=count)
        def __getattr__(self, k): return getattr(a0, k)
        def __setattr__(self, k, v):
            if k == "phase": object.__setattr__(self, k, v)
            else: setattr(a0, k, v)
    a = Filt()
    KR = 40
    NCH = 64 - ndir
    T = 28
    def stamp(i):
        if stamps and i in stamps:
            k = stamps.index(i)
            a(f"s_memrealtime s[{STAMP0+2*k}:{STAMP0+2*k+1}]")
    def srd(dst, src, size):
        n = int(dst[2:dst.index(":")])
        a(f"s_mov_b32 s{n}, s{src}\ns_mov_b32 s{n+1}, s{src+1}\ns_mov_b32 s{n+2}, {size}\ns_mov_b32 s{n+3}, 0x20000")
    SRDS = {SX: (4, 1792), SK: (6, 1 << 26), SV: (8, 1 << 26), SWQ: (10, 448 * 8192), SWO: (12, 4096 * 896), SW1: (16, 448 * 3584),
            SW2: (18, 1792 * 896), SGW: (20, 896), SOUT: (22, 1792), SWS: (26, WS_BYTES)}
    def srds(*names):
        for n in names: srd(n, *SRDS[n])
    def red8(acc):
        for k in range(4): a(f"v_permlane32_swap_b32 v{acc+k}, v{acc+k+4}")
        for k in range(4): a(f"v_add_f32 v{acc+k}, v{acc+k}, v{acc+k+4}")
        for k in range(2): a(f"v_permlane16_swap_b32 v{acc+k}, v{acc+k+2}")
        for k in range(2): a(f"v_add_f32 v{acc+k}, v{acc+k}, v{acc+k+2}")
        a(f"v_add_f32_dpp v{acc}, v{acc}, v{acc} row_ror:8 row_mask:0xf bank_mask:0x3")
        a(f"v_add_f32_dpp v{acc}, v{acc+1}, v{acc+1} row_ror:8 row_mask:0xf bank_mask:0xc")
    def gemv_step(acc, wreg, lo, hi, first, n=4):
        for i in range(n):
            a(f"v_dot2_f32_bf16 v{acc+2*i}, v{wreg+i}, v{lo}, {'0' if first else f'v{acc+2*i}'}")
            a(f"v_dot2_f32_bf16 v{acc+2*i+1}, v{wreg+i}, v{hi}, {'0' if first else f'v{acc+2*i+1}'}")
    def bc_step(acc, wreg, lo, hi, n):
        for i in range(4):
            a(f"v_dot2c_f32_bf16_dpp v{acc+2*i}, v{lo}, v{wreg+i} row_newbcast:{n} row_mask:0xf bank_mask:0xf")
            a(f"v_dot2c_f32_bf16_dpp v{acc+2*i+1}, v{hi}, v{wreg+i} row_newbcast:{n} row_mask:0xf bank_mask:0xf")
    def allred(op, v, t, bits=6):
        a(f"{op}_dpp v{v}, v{v}, v{v} quad_perm:[1,0,3,2] row_mask:0xf bank_mask:0xf")
        a(f"{op}_dpp v{v}, v{v}, v{v} quad_perm:[2,3,0,1] row_mask:0xf bank_mask:0xf")
        a(f"{op}_dpp v{v}, v{v}, v{v} row_half_mirror row_mask:0xf bank_mask:0xf")
        if bits > 3:
            a(f"{op}_dpp v{v}, v{v}, v{v} row_ror:8 row_mask:0xf bank_mask:0xf")
            a(f"v_mov_b32 v{t}, v{v}\nv_permlane16_swap_b32 v{v}, v{t}\n{op} v{v}, v{v}, v{t}")
            a(f"v_mov_b32 v{t}, v{v}\nv_permlane32_swap_b32 v{v}, v{t}\n{op} v{v}, v{v}, v{t}")
    def spin_or(ld):
        a(f"s_cmp_eq_u32 {sSPIN}, 0\ns_cbranch_scc1 {ld}\ns_sub_u32 {sSPIN}, {sSPIN}, 1")
    def retry(cond_code, reissue):
        lt, ld = a.newlabel("L_poll"), a.newlabel("L_pdone")
        a(f"{lt}:")
        cond_code()
        a(f"s_cbranch_vccz {ld}")
        spin_or(ld)
        a(reissue, count=False)
        a(f"s_waitcnt vmcnt(0)\ns_branch {lt}\n{ld}:")
    def sent_cond(regs, t):
        rs = list(regs)
        a(f"v_max3_u32 v{t}, v{rs[0]}, v{rs[1]}, v{rs[2]}"); rs = rs[3:]
        while len(rs) >= 2:
            a(f"v_max3_u32 v{t}, v{t}, v{rs[0]}, v{rs[1]}"); rs = rs[2:]
        if rs: a(f"v_max_u32 v{t}, v{t}, v{rs[0]}")
        a(f"v_cmp_eq_u32 vcc, -1, v{t}")
    def poll_sent(regs, reissue, t):
        retry(lambda: sent_cond(regs, t), reissue)
    def tag2_cond(g, t):
        a(f"v_xor_b32 v{t}, {sTA}, v{g+2}\nv_bitop3_b32 v{t}, v{t}, {sTB}, v{g+3} bitop3:0xf6\nv_cmp_ne_u32 vcc, 0, v{t}")
    def poll_pipe(nreg, sets, mk, nld, t, hit):
        n = len(sets)
        lt, ld = a.newlabel("L_pp"), a.newlabel("L_ppd")
        hits = [a.newlabel("L_pph") for _ in sets]
        for r in sets[:-1]:
            a(mk(r), count=False); a("s_nop 15\ns_nop 15")
        a(f"{lt}:")
        for k in range(n):
            a(mk(sets[(k + n - 1) % n]), count=False)
            a(f"s_waitcnt vmcnt({(n-1)*nld})")
            sent_cond(range(sets[k], sets[k] + nreg), t)
            a(f"s_cbranch_vccz {hits[k]}")
        spin_or(hits[0])
        a(f"s_branch {lt}")
        for k in range(n - 1, -1, -1):
            a(f"{hits[k]}:")
            hit(sets[k])
            if k: a(f"s_branch {ld}")
        a(f"{ld}:")
    def lds_ticket(addr, t):
        a(f"""
        v_mov_b32 v{t}, {addr}
        v_mov_b32 v{t+1}, 1
        s_waitcnt lgkmcnt(0)
        s_mov_b64 exec, 1
        ds_add_rtn_u32 v{t+1}, v{t}, v{t+1}
        s_mov_b64 exec, -1
        s_waitcnt lgkmcnt(0)
        v_readfirstlane_b32 {sT0}, v{t+1}
        """)
    def lds_wait(flag, extra, t, name):
        a(f"v_mov_b32 v{t}, {flag}\n{name}:\nds_read_b32 v{t+1}, v{t}\n{extra}\ns_waitcnt lgkmcnt(0)\nv_cmp_eq_u32 vcc, 1, v{t+1}\ns_cbranch_vccnz {name}d")
        spin_or(name + "d")
        a(f"s_sleep 1\ns_branch {name}\n{name}d:")

    def chunk_read(c, reg, fast=False):
        ok, sp = a.newlabel("L_ck"), a.newlabel("L_cs")
        a(f"""
        s_cmp_gt_u32 {sLAND}, {c}
        s_cbranch_scc1 {ok}
{sp}:
        ds_read_b32 v{T+11}, v{RA} offset:{L_LAND}
        s_waitcnt lgkmcnt(0)
        v_readfirstlane_b32 {sLAND}, v{T+11}
        s_cmp_gt_u32 {sLAND}, {c}
        s_cbranch_scc1 {ok}
        """)
        spin_or(ok)
        a(("" if fast else f"s_sleep {lsl}\n") + f"s_branch {sp}\n{ok}:")
        slot = c % 16
        a(f"ds_read_b128 v[{reg}:{reg+3}], v{vR0 if slot < 8 else vR1} offset:{(slot % 8) * 8192}")
    def done(c):
        a(f"v_mov_b32 v{T+10}, {c+1}\ns_waitcnt lgkmcnt(0)\ns_mov_b64 exec, 1\nds_write_b32 v{RBv}, v{T+10} offset:{L_DONE}\ns_mov_b64 exec, -1")
    vR0, vR1 = 2, 0
    a(f"""
    s_load_dwordx4 s[36:39], s[0:1], 8
    v_readfirstlane_b32 {sW}, v0
    s_cmp_ge_u32 s2, 256
    s_cbranch_scc1 L_end
    """)
    stamp(0)
    a(f"""
    s_and_b32 {sH}, s2, 7
    s_lshl_b32 {sH}, {sH}, 1
    s_bfe_u32 {sT0}, s2, 0x10003
    s_add_u32 {sH}, {sH}, {sT0}
    s_bfe_u32 {sB}, s2, 0x10004
    s_lshr_b32 {sS}, s2, 5
    v_and_b32 {vL}, 63, v0
    s_mov_b32 {sSPIN}, {spin}
    s_lshr_b32 {sW}, {sW}, 6
    s_cbranch_scc1 L_cons0
    """)
    CPF = f"""
        s_getpc_b64 s[100:101]
L_pc:
        s_sub_u32 s100, s100, L_pc-{KLABEL}
        s_subb_u32 s101, s101, 0
        s_lshr_b32 s3, s2, 3
        s_lshl_b32 s3, s3, 9
        v_lshl_add_u32 v{T}, v0, 7, s3
        s_mov_b64 exec, 0xf
        global_load_dword v{F}, v{T}, s[100:101]
        s_mov_b64 exec, -1
        """
    if cpf == 2: a(CPF, count=False)
    a(f"""
    s_setprio 3
    s_lshl_b32 {sT0}, {sB}, 25
    s_lshl_b32 {sT1}, {sH}, 21
    s_add_u32 {sT0}, {sT0}, {sT1}
    s_lshl_b32 {sT1}, {sS}, 18
    s_add_u32 {sT0}, {sT0}, {sT1}
    v_lshl_add_u32 v2, {vL}, 4, {sT0}
    s_mov_b32 s30, {1<<26}
    s_mov_b32 s31, 0x20000
    s_mov_b32 m0, {RING}
    s_mov_b32 s34, 0
    s_waitcnt lgkmcnt(0)
    s_mov_b32 s28, s36
    s_mov_b32 s29, s37
L_burst:
    """)
    for p in range(4):
        a(f"buffer_load_dwordx4 v2, {SK}, s34 offen offset:{p*1024} {pol} lds", count=False)
    a(f"s_addk_i32 s34, 4096\ns_add_u32 m0, m0, 4096\ns_cmp_lt_u32 s34, {nburst*8192}\ns_cbranch_scc1 L_burst")
    stamp(199)
    if cpf == 1: a(CPF, count=False)
    a(f"""
    v_lshlrev_b32 v4, 2, {vL}
    v_mov_b32 v5, 0
    ds_write_b32 v4, v5 offset:{L_LAND}
    ds_write_b32 v4, v5 offset:{L_DONE}
    ds_write_b32 v4, v5 offset:{L_ML}
    v_and_b32 v6, 7, {vL}
    v_lshlrev_b32 v6, 2, v6
    s_mov_b32 s32, {nburst}                      ; chunk
    s_mov_b32 s33, 16
    s_waitcnt lgkmcnt(0)
    s_barrier
    s_branch L_ldok0
L_cons0:
    s_load_dwordx16 s[4:19], s[0:1], 0
    s_load_dwordx8 s[20:27], s[0:1], 64
    s_sub_u32 {sW}, {sW}, 1
    s_mov_b32 {sLAND}, 0
    s_lshl_b32 {sT0}, {sW}, 10
    s_add_u32 {sT0}, {sT0}, {RING}
    v_lshl_add_u32 v{vR0}, {vL}, 4, {sT0}
    v_add_u32 v{vR1}, 0x10000, v{vR0}
    s_lshl_b32 {sT0}, {sW}, 2
    v_mov_b32 v{RBv}, {sT0}
    v_mov_b32 v{RA}, {sT0}
    {"s_barrier" if bar0 else ""}
    s_branch L_cons
    """)
    sched = [(int(t.split(":")[0]), int(t.split(":")[1])) for t in wsched.split(",")] if wsched else [(64, W)]
    sched[-1] = (NCH, sched[-1][1])
    for ph, (cend, Wp) in enumerate(sched):
        a(f"""
L_ld{ph}:
        s_cmp_lt_u32 s32, s33
        s_cbranch_scc1 L_ldok{ph}
L_ldfree{ph}:
        ds_read_b32 v7, v6 offset:{L_DONE}
        s_waitcnt lgkmcnt(0)
        v_min_u32_dpp v7, v7, v7 quad_perm:[1,0,3,2] row_mask:0xf bank_mask:0xf
        v_min_u32_dpp v7, v7, v7 quad_perm:[2,3,0,1] row_mask:0xf bank_mask:0xf
        v_min_u32_dpp v7, v7, v7 row_half_mirror row_mask:0xf bank_mask:0xf
        v_readfirstlane_b32 s33, v7
        s_add_u32 s33, s33, 16
        s_cmp_lt_u32 s32, s33
        s_cbranch_scc1 L_ldok{ph}
        """)
        spin_or(f"L_ldok{ph}")
        a(f"s_branch L_ldfree{ph}\nL_ldok{ph}:")
        for st in (stamps or []):
            if 200 <= st < 264:
                a(f"s_cmp_lg_u32 s32, {st-200}\ns_cbranch_scc1 L_lst{st}_{ph}"); stamp(st); a(f"L_lst{st}_{ph}:")
        pp = (Wp - 1) % 8; back = (Wp - 1 - pp) // 8 + 1
        a(f"""
        s_and_b32 s35, s32, 15
        s_lshl_b32 s35, s35, 13
        s_add_u32 s35, s35, {RING}
        s_mov_b32 m0, s35
        s_sub_u32 s40, s32, {back - 1}
        v_mov_b32 v5, s40
        """)
        for p in range(8):
            if p == 4: a("s_add_u32 s35, s35, 4096\ns_add_u32 s34, s34, 4096\ns_mov_b32 m0, s35")
            a(f"s_waitcnt vmcnt({Wp-1})")
            if p == pp: a(f"ds_write_b32 v4, v5 offset:{L_LAND}")
            else: a("s_nop 0")
            a(f"buffer_load_dwordx4 v2, {SK}, s34 offen offset:{(p%4)*1024} {pol} lds", count=False)
        a(f"""
        s_add_u32 s34, s34, 4096
        s_add_u32 s32, s32, 1
        s_cmp_lg_u32 s32, 32
        s_cbranch_scc1 L_ldnsw{ph}
        s_mov_b32 s28, s38
        s_mov_b32 s29, s39
        s_mov_b32 s34, 0
L_ldnsw{ph}:
        s_cmp_lt_u32 s32, {cend}
        s_cbranch_scc1 L_ld{ph}
        """)
    W = sched[-1][1]
    assert sched[0][1] <= nburst * 8 + 1
    stamp(13)
    a("s_load_dwordx8 s[20:27], s[0:1], 64\ns_waitcnt lgkmcnt(0)")
    a(f"s_lshl_b32 s3, {sB}, 7\ns_add_u32 s3, s3, {GEN}\ns_load_dwordx2 s[68:69], s[26:27], s3")
    srds(SWS, SOUT)
    for k in range((W + 7) // 8 - 1, -1, -1):
        a(f"v_mov_b32 v5, {NCH-k}\ns_waitcnt vmcnt({8*k})\nds_write_b32 v4, v5 offset:{L_LAND}")
    a("s_waitcnt lgkmcnt(0)")
    stamp(5)
    if stamps: a(f"s_mul_i32 {sW}, s2, 7\ns_sub_u32 {sW}, 2048, {sW}")
    a(f"s_add_u32 {sTA}, s68, 8\ns_add_u32 {sTB}, s69, 1\ns_branch L_lsvc")
    a(f"""
L_cons:
    s_waitcnt lgkmcnt(0)
    s_lshl_b32 s3, {sB}, 7
    s_add_u32 s3, s3, {GEN}
    s_load_dwordx2 s[68:69], s[26:27], s3
    s_cmp_eq_u32 {sW}, 7
    s_cbranch_scc1 L_svc
    """)
    VE = KR + 64
    WQr, W1r, XQ, XF, AQ, AF = VE, VE + 16, VE + 24, VE + 26, VE + 32, VE + 40
    srds(SWQ)
    a(f"""
    s_mul_i32 {sT0}, {sS}, 56
    s_lshl_b32 {sT1}, {sW}, 3
    s_add_u32 {sT0}, {sT0}, {sT1}
    v_lshrrev_b32 v{T}, 5, {vL}                  ; half
    v_add_u32 v{T+1}, {sT0}, v{T}
    v_lshlrev_b32 {vA2}, 13, v{T+1}
    v_and_b32 v{T+2}, 31, {vL}
    v_lshl_add_u32 {vA2}, v{T+2}, 4, {vA2}
    s_lshl_b32 {sT1}, {sH}, 9
    v_add_u32 {vA2}, {sT1}, {vA2}
    """)
    for t in range(4):
        if t: a(f"s_mov_b32 {sT1}, {t*2*8192}")
        if "1" not in skip:
            a(f"buffer_load_dwordx4 v[{WQr+4*t}:{WQr+4*t+3}], {vA2}, {SWQ}, {sT1 if t else 0} offen {wpol}", tag="w")
    srds(SX, SW1)
    a(f"""
    v_lshrrev_b32 v{T+3}, 4, {vL}                ; rho
    v_and_b32 v{T+4}, 15, {vL}                   ; n
    v_add_u32 v{T+5}, {sT0}, v{T+3}
    v_mul_u32_u24 {vA3}, 3584, v{T+5}
    v_lshl_add_u32 {vA3}, v{T+4}, 4, {vA3}
    s_lshl_b32 {sT1}, {sH}, 8
    v_add_u32 {vA3}, {sT1}, {vA3}                ; w1 address
    s_cmp_gt_u32 {sH}, 13
    s_cbranch_scc1 L_nof1
    s_mov_b32 {sT1}, {4*3584}
    """)
    if "1" not in skip:
        a(f"buffer_load_dwordx4 v[{W1r}:{W1r+3}], {vA3}, {SW1}, 0 offen {wpol}", count=False)
        a(f"buffer_load_dwordx4 v[{W1r+4}:{W1r+7}], {vA3}, {SW1}, {sT1} offen {wpol}", count=False)
    a(f"""
L_nof1:
    s_mul_i32 {sT1}, {sB}, 448
    s_add_u32 {sT1}, {sT1}, {sT0}
    v_and_b32 v{T+5}, 3, {vL}
    v_lshl_add_u32 v{T+5}, v{T+5}, 1, v{T}
    v_add_lshl_u32 {vA0}, v{T+5}, {sT1}, 1
    v_and_b32 v{T+5}, 1, {vL}
    v_lshl_add_u32 v{T+5}, v{T+5}, 2, v{T+3}
    v_add_lshl_u32 {vA1}, v{T+5}, {sT1}, 1
    """)
    a(f"buffer_load_ushort v{XQ}, {vA0}, {SX}, 0 offen", tag="w")
    a(f"buffer_load_ushort v{XF}, {vA1}, {SX}, 0 offen", tag="w")
    if not bar0: a("s_barrier")
    srds(SWS, SWO, SW2, SOUT, SGW, SV)
    for i in range(16): a(f"v_mov_b32 v{AQ+i}, 0")
    a(f"""
    s_mul_i32 {sT0}, {sW}, 1536
    v_lshlrev_b32 v{T+2}, 5, v{T+2}
    v_lshl_add_u32 v{T+2}, v{T}, 4, v{T+2}
    v_add_u32 v{T+2}, {sT0}, v{T+2}
    v_lshlrev_b32 v{T+4}, 5, v{T+4}
    v_lshl_add_u32 v{T+4}, v{T+3}, 3, v{T+4}     ; 32n + 8*rho
    v_add_u32 v{T+4}, {sT0}, v{T+4}
    """)
    stamp(10)
    a.wait_vm("w")
    stamp(11)
    a(f"v_lshlrev_b32 v{XQ+1}, 16, v{XQ}\nv_lshlrev_b32 v{XF+1}, 16, v{XF}")
    for t in range(4): bc_step(AQ, WQr + 4 * t, XQ, XQ + 1, t)
    for t in range(2): bc_step(AF, W1r + 4 * t, XF, XF + 1, t)
    for k in range(4): a(f"v_permlane32_swap_b32 v{AQ+k}, v{AQ+k+4}")
    for k in range(4): a(f"v_permlane32_swap_b32 v{AF+k}, v{AF+k+4}")
    for k in range(4): a(f"v_add_f32 v{AQ+k}, v{AQ+k}, v{AQ+k+4}")
    for k in range(4): a(f"v_add_f32 v{AF+k}, v{AF+k}, v{AF+k+4}")
    a(f"ds_write_b128 v{T+2}, v[{AQ}:{AQ+3}] offset:{L_QH}")
    for k in range(2): a(f"v_permlane16_swap_b32 v{AF+k}, v{AF+k+2}")
    for k in range(2): a(f"v_add_f32 v{AF+k}, v{AF+k}, v{AF+k+2}")
    a(f"ds_write_b64 v{T+4}, v[{AF}:{AF+1}] offset:{L_QH+1024}")
    lds_ticket(L_C1, T + 6)
    TAGS = f"""
    s_add_u32 {sTA}, s68, 8
    s_add_u32 {sTB}, s69, 1
    s_getreg_b32 {sTQ}, hwreg(HW_REG_XCC_ID, 0, 3)
    s_andn2_b32 s3, {sTA}, 7
    s_or_b32 {sTQ}, {sTQ}, s3
    """
    a(TAGS)
    PBs = [8, 12]
    PR = VE
    a(f"s_cmp_lg_u32 {sT0}, 6\ns_cbranch_scc1 L_k2\nv_lshlrev_b32 v{T}, 2, {vL}")
    for u in range(2):
        for th in range(3):
            for w in range(7):
                a(f"ds_read_b32 v{PR+24*u+8*th+w}, v{T} offset:{L_QH+1536*w+512*th+256*u}")
    a(f"s_lshl_b32 {sT0}, s2, 13\nv_lshl_add_u32 v{T+1}, {vL}, 4, {sT0}")
    for u in range(2): a(f"v_mov_b32 v{PBs[u]+3}, {sTQ}")
    a("s_waitcnt lgkmcnt(0)")
    for u in range(2):
        for th in range(3):
            b = PR + 24 * u + 8 * th
            a(f"v_add_f32 v{b}, v{b}, v{b+1}\nv_add_f32 v{b+2}, v{b+2}, v{b+3}\nv_add_f32 v{b+4}, v{b+4}, v{b+5}")
        for th in range(3):
            b = PR + 24 * u + 8 * th
            a(f"v_add_f32 v{b}, v{b}, v{b+2}\nv_add_f32 v{b+4}, v{b+4}, v{b+6}")
        for th in range(3):
            b = PR + 24 * u + 8 * th
            a(f"v_add_f32 v{PBs[u]+th}, v{b}, v{b+4}")
        a(f"buffer_store_dwordx4 v[{PBs[u]}:{PBs[u]+3}], v{T+1}, {SWS}, 0 offen offset:{QA+1024*u}", count=False)
    stamp(1)
    a("s_branch L_k2")
    a("L_svc:")
    a.vm = []
    GX = VE
    srds(SWS, SX, SGW)
    a(f"""
    s_mul_i32 s3, {sB}, 896
    v_lshlrev_b32 v{T+7}, 4, {vL}
    v_add_u32 v{T+8}, s3, v{T+7}
    v_cmp_gt_u32 vcc, 56, {vL}
    v_mov_b32 v{T+6}, 0x10000
    v_cndmask_b32 v{T+8}, v{T+6}, v{T+8}, vcc
    """)
    a(f"buffer_load_dwordx4 v[{GX}:{GX+3}], v{T+8}, {SX}, 0 offen", tag="w")
    a(f"buffer_load_dwordx4 v[{GX+4}:{GX+7}], v{T+7}, {SGW}, 0 offen", tag="w")
    a(f"""
    s_waitcnt lgkmcnt(0)
    """)
    if not bar0: a("s_barrier")
    a(TAGS)
    srds(SWO, SW2, SOUT, SWQ, SW1, SV)
    a(f"""
    s_waitcnt vmcnt(0)
    """, count=False)
    G = T
    a(f"v_mov_b32 v{G}, 0")
    for i in range(4):
        x, g = GX + i, GX + 4 + i
        a(f"""
        v_lshlrev_b32 v{G+1}, 16, v{x}
        v_lshlrev_b32 v{G+2}, 16, v{g}
        v_and_b32 v{G+3}, 0xffff0000, v{x}
        v_and_b32 v{G+4}, 0xffff0000, v{g}
        v_mul_f32 v{G+1}, v{G+1}, v{G+2}
        v_mul_f32 v{G+3}, v{G+3}, v{G+4}
        v_cvt_pk_bf16_f32 v{G+1}, v{G+1}, v{G+3}
        v_lshlrev_b32 v{G+2}, 16, v{G+1}
        v_and_b32 v{G+3}, 0xffff0000, v{G+1}
        v_add_f32 v{G}, v{G}, v{G+2}
        v_add_f32 v{G}, v{G}, v{G+3}
        """)
    allred("v_add_f32", G, G + 1)
    a(f"""
    v_cvt_pk_bf16_f32 v{G}, 0, v{G}
    v_mul_f32 v{G}, {hex(f32bits(-math.log2(math.e)))}, v{G}
    v_exp_f32 v{G}, v{G}
    v_add_f32 v{G}, 1.0, v{G}
    v_rcp_f32 v{G}, v{G}
    v_cvt_pk_bf16_f32 v{G}, 0, v{G}
    v_mov_b32 v{G+1}, {L_G}
    ds_write_b32 v{G+1}, v{G}
L_k2:
    """)
    a.vm = []
    ADDRS = f"""
    s_mov_b32 s78, 0xcccccccc
    s_mov_b32 s79, 0xcccccccc
    s_mov_b32 s80, 0xaaaaaaaa
    s_mov_b32 s81, 0xaaaaaaaa
    s_lshl_b32 {sOWN}, s2, 13
    v_and_b32 v{T+1}, 7, {vL}
    v_lshrrev_b32 v{T}, 3, {vL}
    v_lshlrev_b32 v{COL}, 5, v{T+1}
    v_lshrrev_b32 v{T+2}, 5, {vL}
    v_lshl_add_u32 v{COL}, v{T+2}, 4, v{COL}
    v_bfe_u32 v{T+2}, {vL}, 4, 1
    v_lshl_add_u32 v{COL}, v{T+2}, 3, v{COL}
    v_bfe_u32 v{T+2}, {vL}, 3, 1
    v_lshl_add_u32 v{COL}, v{T+2}, 2, v{COL}
    s_lshl_b32 {sT1}, {sW}, 8
    v_add_u32 v{COL}, {sT1}, v{COL}
    s_and_b32 {sT0}, s2, 31
    s_lshl_b32 {sT0}, {sT0}, 13
    s_add_u32 {sT0}, {sT0}, {OP}
    v_lshlrev_b32 {vA1}, 18, v{T+1}
    v_add_u32 {vA1}, {sT0}, {vA1}
    v_lshl_add_u32 {vA2}, v{T}, 4, {vA1}
    s_lshl_b32 {sT1}, {sW}, 7
    v_add_u32 {vA2}, {sT1}, {vA2}
    s_lshl_b32 {sT1}, {sS}, 7
    v_lshl_add_u32 v{T+1}, v{T+1}, 4, {sT1}
    s_lshl_b32 {sT0}, {sH}, 8
    s_lshl_b32 {sT1}, {sW}, 5
    s_add_u32 {sT0}, {sT0}, {sT1}
    v_lshl_add_u32 v{T+2}, v{T}, 2, {sT0}
    v_mul_u32_u24 v{T+2}, 896, v{T+2}
    v_add_u32 {vA3}, v{T+2}, v{T+1}
    s_lshr_b32 {sT0}, {sT0}, 1
    v_lshl_add_u32 v{T+2}, v{T}, 1, {sT0}
    v_mul_u32_u24 v{T+2}, 896, v{T+2}
    v_add_u32 {vA4}, v{T+2}, v{T+1}              ; w2 rows 128h+16w+2r+j
    v_and_b32 v{T}, 31, {vL}
    v_lshlrev_b32 {vA0}, 4, v{T}
    s_and_b32 {sT0}, s2, 31
    s_lshl_b32 {sT0}, {sT0}, 13
    s_lshl_b32 {sT1}, {sW}, 18
    s_add_u32 {sT0}, {sT0}, {sT1}
    v_lshl_add_u32 v8, {vL}, 4, {sT0}
    v_lshl_add_u32 v12, {vL}, 4, {sOWN}
    s_mul_i32 {sT1}, {sW}, 1536
    v_lshl_add_u32 v9, {vL}, 2, {sT1}
    """
    a(ADDRS)
    def drain(c0, c1):
        for c in range(c0, c1):
            chunk_read(c, KR + 4 * c)
            if (c + 1) % dstep == 0 or c == c1 - 1: done(c)
    drain(0, NG)
    GB = KR + 96
    gl = "\n".join(f"buffer_load_dwordx4 v[{GB+4*u}:{GB+4*u+3}], v8, {SWS}, 0 offen offset:{QA+1024*u} sc1" for u in range(2))
    glb = gl.replace(f"offset:{QA} ", f"offset:{QB} ").replace(f"offset:{QA+1024} ", f"offset:{QB+1024} ")
    def wt_copy(must):
        lt, ld = a.newlabel("L_wt"), a.newlabel("L_wtd")
        a(f"""
{lt}:
        buffer_load_dwordx4 v[{GB+8}:{GB+11}], v12, {SWS}, 0 offen offset:{QA} sc1
        buffer_load_dwordx4 v[{GB+12}:{GB+15}], v12, {SWS}, 0 offen offset:{QA+1024} sc1
        s_waitcnt vmcnt(0)
        v_xor_b32 v10, {sTQ}, v{GB+11}
        v_bitop3_b32 v10, v10, {sTQ}, v{GB+15} bitop3:0xf6
        v_cmp_ne_u32 vcc, 0, v10
        s_cbranch_vccz {ld}s
        """, count=False)
        if must:
            spin_or(ld); a(f"s_branch {lt}")
        else:
            a(f"s_branch {ld}")
        a(f"""
{ld}s:
        buffer_store_dwordx4 v[{GB+8}:{GB+11}], v12, {SWS}, 0 offen offset:{QB} sc1
        buffer_store_dwordx4 v[{GB+12}:{GB+15}], v12, {SWS}, 0 offen offset:{QB+1024} sc1
{ld}:
        """, count=False)
    a(gl, count=False)
    drain(NG, NG + NGW)
    assert NG + NGW <= 24
    a("s_waitcnt vmcnt(0)")
    if "g" in skip or "r" in skip: a("s_branch L_gd")
    a(f"""
    s_mov_b32 {sMISS}, 0
L_g:
    v_xor_b32 v10, {sTQ}, v{GB+3}
    v_bitop3_b32 v10, v10, {sTQ}, v{GB+7} bitop3:0xf6
    v_cmp_ne_u32 vcc, 0, v10
    s_cbranch_vccz L_gd
    v_cmp_lt_u32 vcc, 7, v10
    s_cbranch_vccz L_grem
    """)
    spin_or("L_gd")
    a(f"s_add_u32 {sMISS}, {sMISS}, 1\ns_and_b32 s3, {sMISS}, 15\ns_cbranch_scc0 L_gfb\n{gl}\ns_waitcnt vmcnt(0)\ns_branch L_g\nL_gfb:", count=False)
    wt_copy(False)
    a(f"{glb}\ns_waitcnt vmcnt(0)\ns_branch L_g\nL_grem:", count=False)
    a(f"v_mov_b32 v10, {L_REM}\nv_mov_b32 v11, 1\nds_write_b32 v10, v11")
    wt_copy(True)
    a("L_gd:")
    stamp(12)
    for u in range(2):
        for th in range(3):
            a(f"ds_write_b32 v9, v{GB+4*u+th} offset:{L_QG+512*th+256*u}")
    lds_ticket(L_C3, 10)
    a(f"s_cmp_lg_u32 {sT0}, 7\ns_cbranch_scc1 L_noq\nv_lshlrev_b32 v9, 3, {vL}")
    a(f"v_lshlrev_b32 v8, 2, {vL}\nv_mov_b32 v11, 1\nv_mov_b32 v12, {L_QRDY}")
    def qreads(th):
        for w in range(8):
            a(f"ds_read_b64 v[{GB+16*(th%2)+2*w}:{GB+16*(th%2)+2*w+1}], v9 offset:{L_QG+1536*w+512*th}")
    qreads(0); qreads(1)
    for th in range(3):
        b = GB + 16 * (th % 2)
        a("s_waitcnt lgkmcnt(0)")
        for st in (1, 2, 4):
            for w in range(0, 8, 2 * st):
                for e in range(2): a(f"v_add_f32 v{b+2*w+e}, v{b+2*w+e}, v{b+2*(w+st)+e}")
        if th == 2: a(f"v_maximum3_f32 v{b}, v{b}, 0, 0\nv_maximum3_f32 v{b+1}, v{b+1}, 0, 0")
        a(f"v_cvt_pk_bf16_f32 v{13+th}, v{b}, v{b+1}\nds_write_b32 v8, v{13+th} offset:{L_Q+256*th}")
        if th == 0: qreads(2)
    a("s_waitcnt lgkmcnt(0)\nds_write_b32 v12, v11")
    stamp(17)
    a(f"""
L_noq:
    s_cmp_lg_u32 {sW}, 0
    s_cbranch_scc1 L_noclr
    s_add_u32 {sT0}, {sOWN}, {OP}
    v_lshl_add_u32 v{T}, {vL}, 4, {sT0}
    v_mov_b32 v8, -1
    v_mov_b32 v9, -1
    v_mov_b32 v10, -1
    v_mov_b32 v11, -1
    buffer_store_dwordx4 v[8:11], v{T}, {SWS}, 0 offen
L_noclr:
    """, count=False)
    drain(NG + NGW, 32)
    a("s_waitcnt vmcnt(0)")
    stamp(2)
    lds_wait(L_QRDY, f"ds_read_b128 v[{Q0}:{Q0+3}], {vA0} offset:{L_Q}\nds_read_b32 v{T+2}, v{T} offset:{L_REM-L_QRDY}", T, "L_rdy")
    a(f"v_readfirstlane_b32 {sREM}, v{T+2}")
    stamp(3)
    def R(j): return KR + 4 * j
    for g0 in range(0, 32, 8):
        for i in range(4):
            for j in range(g0, g0 + 8):
                a(f"v_dot2_f32_bf16 v{R(j)}, v{R(j)+i}, v{Q0+i}, {'0' if i == 0 else f'v{R(j)}'}")
    for j in range(0, 32, 2): a(f"v_permlane16_swap_b32 v{R(j)}, v{R(j+1)}")
    for j in range(0, 32, 2): a(f"v_add_f32 v{R(j)}, v{R(j)}, v{R(j+1)}")
    for st, ctl, m0, m1 in ((2, "row_ror:8", 3, 12), (4, "row_half_mirror", 5, 10)):
        for j in range(0, 32, 2 * st):
            a(f"v_add_f32_dpp v{R(j)}, v{R(j)}, v{R(j)} {ctl} row_mask:0xf bank_mask:{m0}")
        for j in range(0, 32, 2 * st):
            a(f"v_add_f32_dpp v{R(j)}, v{R(j+st)}, v{R(j+st)} {ctl} row_mask:0xf bank_mask:{m1}")
    for st, qp, m in ((8, "[2,3,0,1]", MB1), (16, "[1,0,3,2]", MB0)):
        for j in range(0, 32, st):
            a(f"v_add_f32_dpp v{R(j)}, v{R(j)}, v{R(j)} quad_perm:{qp} row_mask:0xf bank_mask:0xf")
        for j in range(0, 32, 2 * st):
            a(f"v_cndmask_b32 v{R(j)}, v{R(j)}, v{R(j+st)}, {m}")
    S = T + 8
    a(f"v_cvt_pk_bf16_f32 v{S}, 0, v{R(0)}\nv_mov_b32 v{T}, v{S}")
    allred("v_max_f32", T, T + 1)
    a(f"""
    v_sub_f32 v{S}, v{S}, v{T}
    v_mul_f32 v{S}, {CSC}, v{S}
    v_exp_f32 v{S}, v{S}
    v_mov_b32 v{T+1}, v{S}
    """)
    allred("v_add_f32", T + 1, T + 2)
    a(f"""
    s_lshl_b32 {sT0}, {sW}, 3
    v_mov_b32 v{T+2}, {sT0}
    ds_write_b64 v{T+2}, v[{T}:{T+1}] offset:{L_ML}
    v_cvt_pk_bf16_f32 v{P0}, v{S}, 0
    v_cvt_pk_bf16_f32 v{P0+1}, 0, v{S}
    v_mov_b32 v{P0+2}, v{P0}
    v_mov_b32 v{P0+3}, v{P0+1}
    v_permlane16_swap_b32 v{P0}, v{P0+2}
    v_permlane16_swap_b32 v{P0+1}, v{P0+3}
    """)
    lds_ticket(L_C2, T + 2)
    M4 = Q0
    a(f"""
    s_cmp_lg_u32 {sT0}, 7
    s_cbranch_scc1 L_noml
    v_and_b32 v{T+2}, 7, {vL}
    v_lshlrev_b32 v{T+3}, 3, v{T+2}
    ds_read_b64 v[{T+4}:{T+5}], v{T+3} offset:{L_ML}
    v_lshlrev_b32 v{T+3}, 2, v{T+2}
    v_mov_b32 v{T+2}, {sOWN}
    s_waitcnt lgkmcnt(0)
    v_mov_b32 v{M4}, v{T+4}
    """)
    allred("v_max_f32", M4, T + 1, bits=3)
    a(f"""
    v_sub_f32 v{T+4}, v{T+4}, v{M4}
    v_mul_f32 v{T+4}, {CSC}, v{T+4}
    v_exp_f32 v{T+4}, v{T+4}
    v_mul_f32 v{M4+1}, v{T+4}, v{T+5}
    ds_write_b32 v{T+3}, v{T+4} offset:{L_F}
    v_mov_b32 v{T+3}, {L_FRDY}
    v_mov_b32 v{T+7}, 1
    s_waitcnt lgkmcnt(0)
    ds_write_b32 v{T+3}, v{T+7}
    """)
    allred("v_add_f32", M4 + 1, T + 6, bits=3)
    a(f"""
    v_mov_b32 v{M4+2}, {sTA}
    v_mov_b32 v{M4+3}, {sTB}
    s_mov_b64 exec, 1
    v_add_u32 v{T+2}, {ML}, v{T+2}
    buffer_store_dwordx4 v[{M4}:{M4+3}], v{T+2}, {SWS}, 0 offen
    v_mov_b32 v{T+3}, {L_MLG}
    ds_write_b128 v{T+3}, v[{M4}:{M4+3}]
    s_mov_b64 exec, -1
    s_nop 1
L_noml:
    """, count=False)
    stamp(4)
    NVT = 4
    VL = KR + 4
    WOr = VL + 4 * NVT; W2r = WOr + 16; MLr = W2r + 8; EV = MLr + 4
    for i in range(8): a(f"v_mov_b32 v{ACC+i}, 0")
    def vreg(j): return VL + 4 * (j % NVT)
    def pv(j, reg=None):
        pr = P0 + 2 * (j & 1)
        n = ((j >> 1) & 1) << 3 | ((j >> 2) & 1) << 2 | ((j >> 3) & 1) << 1 | ((j >> 4) & 1)
        bc_step(ACC, vreg(j) if reg is None else reg, pr, pr + 1, n)
    mlload = f"buffer_load_dwordx4 v[{MLr}:{MLr+3}], {vA1}, {SWS}, 0 offen offset:{ML-OP} sc1"
    ACB = EV + 4
    FW = T + 7
    def w2part():
        a(f"""
        v_mov_b32 v{ACB}, 0
        s_cmp_eq_u32 {sS}, 7
        s_cbranch_scc1 L_now2b
        s_cmp_gt_u32 {sH}, 13
        s_cbranch_scc1 L_now2c
        v_lshrrev_b32 v{T}, 3, {vL}
        s_lshl_b32 {sT0}, {sW}, 5
        v_lshl_add_u32 v{T}, v{T}, 2, {sT0}
        ds_read_b32 v{T+4}, v{T} offset:{L_H}
        s_waitcnt lgkmcnt(0)
        v_and_b32 v{T}, 0xffff, v{T+4}
        v_lshlrev_b32 v{T+1}, 16, v{T+4}
        v_lshrrev_b32 v{T+2}, 16, v{T+4}
        v_and_b32 v{T+3}, 0xffff0000, v{T+4}
        """)
        gemv_step(ACB, W2r, T, T + 1, True)
        gemv_step(ACB, W2r + 4, T + 2, T + 3, False)
        red8(ACB)
        a(f"L_now2c:\nds_write_b32 v{COL}, v{ACB} offset:{L_YB}\nL_now2b:")
        a(f"""
        v_and_b32 v{T+4}, 31, {vL}
        v_lshlrev_b32 v{T+4}, 5, v{T+4}
        v_lshrrev_b32 v{T+5}, 5, {vL}
        v_lshl_add_u32 v{T+4}, v{T+5}, 4, v{T+4}
        s_mul_i32 {sT0}, {sW}, {OPS}
        v_add_u32 v{T+4}, {sT0}, v{T+4}
        s_lshl_b32 {sT0}, {sW}, 10
        s_lshl_b32 {sT1}, {sB}, 25
        s_add_u32 {sT0}, {sT0}, {sT1}
        s_lshl_b32 {sT1}, {sH}, 21
        s_add_u32 {sT0}, {sT0}, {sT1}
        s_lshl_b32 {sT1}, {sS}, 18
        s_add_u32 {sT0}, {sT0}, {sT1}
        v_lshl_add_u32 v{vD}, {vL}, 4, {sT0}
        v_and_b32 v{T+9}, 7, {vL}
        v_lshrrev_b32 v{T+8}, 3, {vL}
        v_lshlrev_b32 v{T+8}, 4, v{T+8}
        v_mul_u32_u24 v{T+9}, {OPS}, v{T+9}
        v_add_u32 v{T+8}, v{T+9}, v{T+8}
        s_lshl_b32 {sT0}, {sW}, 7
        v_add_u32 v{T+8}, {sT0}, v{T+8}
        s_lshl_b32 s78, 0x01010101, {sS}
        s_mov_b32 s79, s78
        """)
    def mlcalc(remote):
        retry(lambda: tag2_cond(MLr, T), mlload.replace(", 0 offen", ", s4 offen") if remote else mlload)
        a(f"v_mov_b32 v{T}, v{MLr}")
        allred("v_max_f32", T, T + 1, bits=3)
        a(f"""
        v_sub_f32 v{T}, v{MLr}, v{T}
        v_mul_f32 v{T}, {CSC}, v{T}
        v_exp_f32 v{T}, v{T}
        v_mul_f32 v{T+1}, v{T}, v{MLr+1}
        """)
        allred("v_add_f32", T + 1, T + 2, bits=3)
        a(f"v_rcp_f32 v{T+1}, v{T+1}\nv_mul_f32 v{F}, v{T}, v{T+1}")
    wl = [("o", j) for j in range(4)] + [("2", j) for j in range(2)]
    def wload(kind, j):
        lb = a.newlabel("L_nw")
        a(f"s_cmp_eq_u32 {sS}, 7\ns_cbranch_scc1 {lb}")
        if kind == "2":
            a(f"s_cmp_gt_u32 {sH}, 13\ns_cbranch_scc1 {lb}")
            a(f"buffer_load_dwordx4 v[{W2r+4*j}:{W2r+4*j+3}], {vA4}, {SW2}, 0 offen offset:{896*j} {wpol}", count=False)
        else:
            a(f"buffer_load_dwordx4 v[{WOr+4*j}:{WOr+4*j+3}], {vA3}, {SWO}, 0 offen offset:{896*j} {wpol}", count=False)
        a(f"{lb}:")
    VD = ACB + 8
    chunk_read(32, vreg(0))
    NR = 32 - ndir
    for j in range(NR):
        if wl and "2" not in skip: wload(*wl.pop(0))
        if j == 12:
            a("s_waitcnt vmcnt(0)"); w2part()
        if j == 16: a(mlload, count=False)
        if j == 20:
            lds_wait(L_FRDY, f"ds_read_b32 v{FW}, v{RA} offset:{L_F}", T, "L_frdy")
            a(f"s_waitcnt vmcnt(0)\ns_cmp_lg_u32 {sREM}, 0\ns_cbranch_scc1 L_nomlc")
            if "g" not in skip and "r" not in skip: mlcalc(False)
            a("L_nomlc:")
            if dry: a("s_mov_b64 exec, 0\ns_branch L_tail\nL_dryret:\ns_mov_b64 exec, -1")
        if j == NR - dpos:
            for k in range(ndir):
                a(f"s_mov_b32 s3, {(NR+k)*8192}\nbuffer_load_dwordx4 v[{VD+4*k}:{VD+4*k+3}], v{vD}, {SV}, s3 offen {pol}", count=False)
        if j < 48 - 32 and j % dstep == dstep - 1: done(32 + j)
        else: a("s_waitcnt lgkmcnt(0)")
        if j < 24 and j + 1 < NR: chunk_read(32 + j + 1, vreg(j + 1))
        pv(j); stamp(60 + j)
        if 24 <= j < NR - 1: chunk_read(32 + j + 1, vreg(j + 1), fast=(j >= NR - 3))
    for k in range(ndir):
        a(f"s_waitcnt vmcnt({ndir-1-k})")
        pv(NR + k, VD + 4 * k)
    stamp(5)
    a.phase = "tail"
    a("L_tail:")
    def guard(txt):
        if not dry: a(txt, count=False); return
        lb = a.newlabel("L_gd")
        a(f"s_cbranch_execz {lb}\n{txt}\n{lb}:", count=False)
    for k in range(4): a(f"v_permlane32_swap_b32 v{ACC+k}, v{ACC+k+4}")
    for k in range(4): a(f"v_add_f32 v{ACC+k}, v{ACC+k}, v{ACC+k+4}")
    for k in range(4): a(f"v_mul_f32 v{ACC+k}, v{FW}, v{ACC+k}")
    B = KR + 64
    def gcheck(grans, t):
        for k, g in enumerate(grans):
            if k == 0: a(f"v_xor_b32 v{t}, {sTA}, v{g+1}\nv_xor_b32 v{t+1}, {sTB}, v{g+3}")
            else: a(f"v_bitop3_b32 v{t}, v{t}, {sTA}, v{g+1} bitop3:0xf6\nv_bitop3_b32 v{t+1}, v{t+1}, {sTB}, v{g+3} bitop3:0xf6")
        a(f"v_or_b32 v{t}, v{t}, v{t+1}\nv_cmp_ne_u32 vcc, 0, v{t}")
    def sum_pairs(lds, stride, n):
        for w in range(n): a(f"ds_read_b64 v[{B+2*w}:{B+2*w+1}], v{T+8} offset:{lds+stride*w}")
        a("s_waitcnt lgkmcnt(0)")
        for st in (1, 2):
            for w in range(0, 8, 2 * st):
                a(f"v_add_f32 v{B+2*w}, v{B+2*w}, v{B+2*(w+st)}\nv_add_f32 v{B+2*w+1}, v{B+2*w+1}, v{B+2*(w+st)+1}")
        a(f"v_add_f32 v{PG}, v{B}, v{B+8}\nv_add_f32 v{PG+2}, v{B+1}, v{B+9}")
    PG = B + 16
    O = B + 24
    a(f"""
    ds_write_b128 v{T+4}, v[{ACC}:{ACC+3}] offset:{L_OP}
    s_waitcnt lgkmcnt(0)
    """)
    guard("s_barrier")
    stamp(14)
    opl = f"buffer_load_dwordx4 v[{O}:{O+3}], {vA2}, {SWS}, 0 offen sc1"
    a(f"s_cmp_lg_u32 {sREM}, 0\ns_cbranch_scc1 L_remote\nds_read_b128 v[{B}:{B+3}], v{T+8} offset:{L_OP}")
    a(f"s_cmp_eq_u32 {sS}, 7\ns_cbranch_scc1 L_nopl")
    guard(opl)
    a("L_nopl:\ns_waitcnt lgkmcnt(0)")
    for qp in ("quad_perm:[1,0,3,2]", "quad_perm:[2,3,0,1]", "row_half_mirror"):
        for i in range(4): a(f"v_add_f32_dpp v{B+i}, v{B+i}, v{B+i} {qp} row_mask:0xf bank_mask:0xf")
    for i in range(4): a(f"v_min_u32 v{B+i}, -2, v{B+i}")
    guard(f"s_mov_b64 exec, {MOWN}\nbuffer_store_dwordx4 v[{B}:{B+3}], {vA2}, {SWS}, 0 offen\ns_mov_b64 exec, -1")
    stamp(8)
    a(f"s_cmp_eq_u32 {sS}, 7\ns_cbranch_scc1 L_fin\ns_waitcnt vmcnt(1)")
    own = "\n".join(f"v_cndmask_b32 v{O+i}, v{O+i}, v{B+i}, {MOWN}" for i in range(4))
    stamp(9)
    def h1mul(r):
        a(f"v_mul_f32 v{O+6}, v{F}, v{r+3}\nv_mul_f32 v{O+4}, v{F}, v{r+2}\nv_mul_f32 v{O+2}, v{F}, v{r+1}\nv_mul_f32 v{O}, v{F}, v{r}")
    if h1p == 1:
        def c1():
            a(own); sent_cond([O, O + 1, O + 2, O + 3], T)
        retry(c1, (f"s_sleep {bo}\n" if bo else "") + opl)
        h1mul(O)
    else:
        sent_cond([O, O + 1, O + 2, O + 3], T)
        a("s_cbranch_vccz L_h1a")
        poll_pipe(4, [O + 8 + 4 * k for k in range(h1p)], lambda r: opl.replace(f"v[{O}:{O+3}]", f"v[{r}:{r+3}]"), 1, T, h1mul)
        a("s_branch L_hop1d\nL_h1a:")
        h1mul(O)
    a("L_hop1d:")
    stamp(6)
    for qp in ("quad_perm:[1,0,3,2]", "quad_perm:[2,3,0,1]", "row_half_mirror"):
        for i in range(4): a(f"v_add_f32_dpp v{O+2*i}, v{O+2*i}, v{O+2*i} {qp} row_mask:0xf bank_mask:0xf")
    for i in range(4): a(f"v_cvt_pk_bf16_f32 v{O+2*i+1}, 0, v{O+2*i}")
    for i in range(4): a(f"v_cvt_pk_bf16_f32 v{O+2*i}, v{O+2*i}, 0")
    for j in range(4): gemv_step(ACC, WOr + 4 * j, O + 2 * j, O + 2 * j + 1, j == 0)
    red8(ACC)
    a(f"""
    ds_write_b32 v{COL}, v{ACC} offset:{L_YA}
    v_and_b32 v{T+8}, 31, {vL}
    v_lshlrev_b32 v{T+8}, 3, v{T+8}
    s_add_u32 {sT1}, {sOWN}, {YA}
    v_lshl_add_u32 v{T+9}, v{T+8}, 1, {sT1}
    v_mov_b32 v{PG+1}, {sTA}
    v_mov_b32 v{PG+3}, {sTB}
    s_waitcnt lgkmcnt(0)
    """)
    guard("s_barrier")
    stamp(15)
    if dry: a(f"s_cbranch_execnz L_nd7\ns_cmp_eq_u32 {sW}, 7\ns_cbranch_scc1 L_lsvc\nL_nd7:")
    a(f"s_cmp_lg_u32 {sW}, 0\ns_cbranch_scc1 L_fin")
    sum_pairs(L_YA, 256, 8)
    guard(f"buffer_store_dwordx4 v[{PG}:{PG+3}], v{T+9}, {SWS}, 0 offen {ypol}")
    stamp(19)
    a("s_branch L_fin")
    a(f"""
L_remote:
    s_cbranch_execz L_fin
    s_mov_b32 s4, {BOFF}
    v_mov_b32 v{PG+1}, {sTA}
    v_mov_b32 v{PG+3}, {sTB}
    s_cmp_gt_u32 {sW}, 2
    s_cbranch_scc1 L_rem1
    s_cmp_eq_u32 {sW}, 2
    s_cbranch_scc1 L_remml
    s_lshl_b32 {sT0}, {sW}, 9
    v_lshl_add_u32 v{T+8}, {vL}, 3, {sT0}
    s_add_u32 {sT1}, {sOWN}, {OP}
    v_lshl_add_u32 v{T+9}, v{T+8}, 1, {sT1}
    """)
    sum_pairs(L_OP, OPS, 8)
    a(f"""
    s_branch L_remst
L_remml:
    v_mov_b32 v{T+8}, {L_MLG}
    ds_read_b128 v[{PG}:{PG+3}], v{T+8}
    s_add_u32 {sT1}, {sOWN}, {ML}
    v_mov_b32 v{T+9}, {sT1}
    s_waitcnt lgkmcnt(0)
L_remst:
    buffer_store_dwordx4 v[{PG}:{PG+3}], v{T+9}, {SWS}, s4 offen sc1
L_rem1:
    s_cmp_eq_u32 {sS}, 7
    s_cbranch_scc1 L_fin
    v_sub_u32 v{T+8}, {vA2}, {vA1}
    v_lshl_add_u32 v{T+8}, v{T+8}, 1, {vA1}
    """, count=False)
    mlcalc(True)
    oplb = (f"buffer_load_dwordx4 v[{O}:{O+3}], v{T+8}, {SWS}, s4 offen sc1\n"
            f"buffer_load_dwordx4 v[{O+4}:{O+7}], v{T+8}, {SWS}, s4 offen offset:16 sc1")
    a(oplb + "\ns_waitcnt vmcnt(0)", count=False)
    retry(lambda: gcheck([O, O + 4], T), oplb)
    for i in range(4): a(f"v_mul_f32 v{O+2*i}, v{F}, v{O+2*i}")
    a("s_branch L_hop1d")
    a(f"""
L_lsvc:
    s_cmp_eq_u32 {sS}, 7
    s_cbranch_scc1 L_fin
    s_lshl_b32 {sOWN}, s2, 13
    v_and_b32 v{T+8}, 31, {vL}
    v_lshlrev_b32 v{T+8}, 3, v{T+8}
    s_add_u32 {sT1}, {sOWN}, {YB}
    v_lshl_add_u32 v{T+9}, v{T+8}, 1, {sT1}
    v_mov_b32 v{PG+1}, {sTA}
    v_mov_b32 v{PG+3}, {sTB}
    """)
    guard("s_barrier")
    sum_pairs(L_YB, 256, 8)
    guard(f"buffer_store_dwordx4 v[{PG}:{PG+3}], v{T+9}, {SWS}, 0 offen sc1")
    a(f"""
    s_lshl_b32 {sT0}, {sS}, 1
    s_add_u32 {sT0}, {sT0}, {sB}
    s_cmp_lg_u32 {sT0}, {sH}
    s_cbranch_scc1 L_fin
    s_and_b32 {sT0}, s2, 0xf0
    s_lshl_b32 {sT0}, {sT0}, 13
    s_add_u32 {sT0}, {sT0}, {YA}
    v_lshrrev_b32 v{T+5}, 5, {vL}
    v_lshlrev_b32 v{T}, 13, v{T+5}
    v_lshl_add_u32 v{T}, v{T+8}, 1, v{T}
    v_add_u32 {vA0}, {sT0}, v{T}
    v_mov_b32 v{T+2}, {L_G}
    ds_read_b32 v{T+3}, v{T+2}
    """, count=False)
    for k in range(1, 8): a(f"s_mov_b32 s{3+k}, {k*2*SLOT}")
    so = ["0"] + [f"s{3+k}" for k in range(1, 8)]
    mk = lambda r, off: "\n".join(f"buffer_load_dwordx4 v[{r+4*k}:{r+4*k+3}], {vA0}, {SWS}, {so[k]} offen offset:{off} {ypol}" for k in range(8))
    YBr, YAr = KR, KR + 32
    sets = [KR + 32, KR + 64, KR + 96][:npoll]
    guard(mk(YBr, YB - YA))
    a(f"""
    v_lshrrev_b32 v{T+4}, 2, v{T+8}
    v_add_u32 v{T+4}, v{T+4}, v{T+5}
    s_mul_i32 {sT0}, {sB}, 448
    s_lshl_b32 {sT1}, {sS}, 6
    s_add_u32 {sT0}, {sT0}, {sT1}
    v_add_lshl_u32 v{T+4}, v{T+4}, {sT0}, 1
    s_waitcnt lgkmcnt(0)
    v_sub_f32 v{T+6}, 1.0, v{T+3}
    v_cvt_pk_bf16_f32 v{T+6}, 0, v{T+6}
    """)
    def tree(dst, src):
        for e in range(2):
            for k in range(0, 8, 2): a(f"v_add_f32 v{dst+4*e+k//2}, v{src+4*k+2*e}, v{src+4*k+4+2*e}")
        for e in range(2):
            a(f"v_add_f32 v{dst+4*e}, v{dst+4*e}, v{dst+4*e+1}\nv_add_f32 v{dst+4*e+2}, v{dst+4*e+2}, v{dst+4*e+3}")
        for e in range(2): a(f"v_add_f32 v{dst+4*e}, v{dst+4*e}, v{dst+4*e+2}")
        a(f"v_permlane32_swap_b32 v{dst}, v{dst+4}\nv_add_f32 v{dst}, v{dst}, v{dst+4}\nv_cvt_pk_bf16_f32 v{dst}, 0, v{dst}")
    RA_, RB_ = 8, 16
    n = len(sets)
    lt, ld = "L_pp", "L_ppd"
    guard((mk(sets[0], 0) + "\n" if touch else "") + "s_barrier")
    a("s_waitcnt vmcnt(0)")
    for r in sets[:-1]: guard(mk(r, 0))
    retry(lambda: gcheck([YBr + 4 * k for k in range(8)], T), mk(YBr, YB - YA))
    tree(RB_, YBr)
    a(f"v_mul_f32 v{RB_}, v{T+6}, v{RB_}\nv_cvt_pk_bf16_f32 v{RB_}, 0, v{RB_}\n{lt}:")
    for k in range(n):
        guard(mk(sets[(k + n - 1) % n], 0))
        a(f"s_waitcnt vmcnt({(n-1)*8})")
        gcheck([sets[k] + 4 * j for j in range(8)], T)
        a(f"s_cbranch_vccz L_pph{k}")
    spin_or("L_pph0")
    if ybo: a(f"s_sleep {ybo}")
    a(f"s_branch {lt}")
    for k in range(n - 1, -1, -1):
        a(f"L_pph{k}:")
        tree(RA_, sets[k])
        if k: a(f"s_branch {ld}")
    a(f"{ld}:")
    stamp(16)
    a(f"""
    v_mul_f32 v{RA_}, v{T+3}, v{RA_}
    v_cvt_pk_bf16_f32 v{RA_}, 0, v{RA_}
    v_add_f32 v{RA_}, v{RA_}, v{RB_}
    v_cvt_pk_bf16_f32 v{RA_}, v{RA_}, 0
    s_cbranch_execz L_fin
    buffer_store_short v{RA_}, v{T+4}, {SOUT}, 0 offen
    s_cmp_lg_u32 {sS}, 0
    s_cbranch_scc1 L_fin
    s_lshl_b32 {sT0}, {sB}, 7
    s_add_u32 {sT0}, {sT0}, {GEN}
    v_mov_b32 v{T}, {sT0}
    v_mov_b32 v{T+10}, {sTA}
    v_mov_b32 v{T+11}, {sTB}
    s_mov_b64 exec, 1
    buffer_store_dwordx2 v[{T+10}:{T+11}], v{T}, {SWS}, 0 offen
    s_mov_b64 exec, -1
L_fin:
    """, count=False)
    if dry: a("s_cbranch_execz L_dryret")
    if stamps:
        a("s_waitcnt vmcnt(0)")
        stamp(7)
        a(f"""
        s_waitcnt lgkmcnt(0)
        s_lshl_b32 s3, s2, 3
        s_add_u32 s3, s3, {sW}
        s_lshl_b32 s3, s3, 6
        s_add_u32 s3, s3, {128<<20}
        v_mov_b32 v{T}, s3
        s_mov_b64 exec, 1
        """)
        for k in range(4):
            for i in range(4): a(f"v_mov_b32 v{B+4*k+i}, s{STAMP0+4*k+i}")
            a(f"global_store_dwordx4 v{T}, v[{B+4*k}:{B+4*k+3}], s[26:27] offset:{16*k}", count=False)
    a("L_end:\ns_endpgm")
    pad = "\n.fill 4096, 4, 0xbf810000\n" if cpf else ""
    return f"""{HEADER}; @launch grid=(256,1,1) block=(576,1,1) lds={L_END}
.amdgcn_target "amdgcn-amd-amdhsa--gfx950"
.text
.globl {KLABEL}
.p2align 8
.type {KLABEL},@function
{KLABEL}:
{a.text()}{pad}
.section .rodata,"a"
.p2align 6
.amdhsa_kernel {KLABEL}
  .amdhsa_next_free_vgpr 168
  .amdhsa_next_free_sgpr 102
  .amdhsa_accum_offset 168
  .amdhsa_group_segment_fixed_size 0
  .amdhsa_kernarg_size 96
  .amdhsa_user_sgpr_count 2
  .amdhsa_user_sgpr_kernarg_segment_ptr 1
  .amdhsa_system_sgpr_workgroup_id_x 1
.end_amdhsa_kernel
"""

if __name__ == "__main__":
    ap = argparse.ArgumentParser()
    ap.add_argument("-o", default="k.s")
    ap.add_argument("--stamps", default="")
    for n, d in (("w", 32), ("ng", 10), ("ngw", 2), ("npoll", 2), ("fpos", 3), ("spin", 200000), ("dstep", 2), ("lsl", 1), ("bar0", 1), ("nburst", 4), ("warm", 1), ("bo", 0), ("ndir", 1), ("dpos", 4), ("dry", 0), ("touch", 1), ("ybo", 0), ("h1p", 1), ("rinv", 0), ("cpf", 2)):
        ap.add_argument("--" + n, type=int, default=d)
    ap.add_argument("--pol", default="nt")
    ap.add_argument("--wpol", default="nt")
    ap.add_argument("--ypol", default="sc1")
    ap.add_argument("--fpol", default="sc1")
    ap.add_argument("--rpol", default="sc1")
    ap.add_argument("--wsched", default="")
    ap.add_argument("--nocpf", action="store_true")
    ap.add_argument("--skip", default="")
    x = ap.parse_args()
    open(x.o, "w").write(gen(x.w, x.ng, x.ngw, x.pol, x.wpol, [int(t) for t in x.stamps.split(',')] if x.stamps else None,
                             x.spin, (0 if x.nocpf else x.cpf), x.npoll, x.fpos, x.skip, x.dstep, x.lsl, x.bar0, x.nburst, x.warm, x.bo, x.ndir, x.dpos, x.dry, x.ypol, x.wsched, x.touch, x.ybo, x.h1p, x.fpol, x.rpol, x.rinv))
```

```python
import sys, math, struct, argparse
from asmlib import Asm
from common import NAME, KLABEL

def f32bits(x):
    return struct.unpack("<I", struct.pack("<f", x))[0]

HEADER = open("cdna_kernels/" + NAME + ".s.ref").read().split("; Override launch")[0]

SLOT = 8192
QA, QB, OP, ML = 0, 2048, 4096, 6144
YA, YB = 6656, 7168
BOFF = 256 * SLOT
GEN = 2 * BOFF
WS_BYTES = GEN + 256
L_ML, L_F, L_C1, L_C2, L_C3, L_QRDY, L_FRDY, L_G, L_REM, L_Q, L_H = 0, 64, 96, 100, 104, 108, 112, 116, 120, 128, 640
L_OP, L_YB, L_YA = 1024, 9728, 11776
OPS = 1056
L_QH = 1024
L_QG = 13312
L_MLG = 25568
L_DONE = 25600
L_LAND = 25856
RING = 32768
L_END = RING + 131072
SK, SV, SWQ, SW1, SWO, SW2, SX, SGW, SOUT, SWS = [f"s[{n}:{n+3}]" for n in range(28, 68, 4)]
sTA, sTB, sOWN = "s68", "s69", "s70"
sH, sB, sS, sW = "s72", "s73", "s74", "s75"
sT0, sT1 = "s76", "s77"
MB1, MB0 = "s[78:79]", "s[80:81]"
sOFF, sSPIN = "s82", "s83"
STAMP0 = 84
vL, vKV = "v1", "v2"
vA0, vA1, vA2, vA3, vA4 = "v3", "v4", "v5", "v6", "v7"
Q0, ACC, P0, F, COL, RA, RBv = 8, 12, 20, 24, 25, 26, 27
sLAND = "s71"
sTQ = "s29"
sMISS, sREM = "s30", "s31"
vD = 7
MOWN = "s[78:79]"
CSC = hex(f32bits(math.log2(math.e) / 16))

def gen(W=32, NG=14, NGW=3, pol="nt", wpol="nt", stamps=None, spin=200000, cpf=True, npoll=3, fpos=3, skip="", dstep=2, lsl=1, bar0=1, nburst=4, warm=1, bo=0, ndir=1, dpos=4, dry=0, ypol='sc1', wsched='', touch=1, ybo=0, h1p=1, fpol='sc1', rpol='sc1', rinv=0, nd0=0, at1=0, at2=0):
    a0 = Asm()
    class Filt:
        phase = "head"
        def __call__(self, txt, tag=None, count=True):
            out = []
            for l in txt.split("\n"):
                ls = l.strip()
                if self.phase == "head" and SWS in ls:
                    if "s" in skip and ls.startswith("buffer_store"): continue
                    if "g" in skip and ls.startswith("buffer_load"): continue
                    if "c" in skip and ls.startswith("buffer_store") and "v[8:11], v28" in ls: continue
                    if "p" in skip and ls.startswith("buffer_store") and ("v[8:11], v29" in ls or "v[12:15], v29" in ls): continue
                    if "m" in skip and ls.startswith("buffer_store") and "v[8:11], v30" in ls: continue
                    if "N" in skip and ls.startswith("buffer_store") and "sc1" not in ls: l = l + " nt"
                    if "0" in skip and ls.startswith("buffer_store") and "sc1" not in ls: l = l + " sc0"
                out.append(l)
            a0("\n".join(out), tag=tag, count=count)
        def __getattr__(self, k): return getattr(a0, k)
        def __setattr__(self, k, v):
            if k == "phase": object.__setattr__(self, k, v)
            else: setattr(a0, k, v)
    a = Filt()
    KR = 40
    NCH = 64 - ndir
    T = 28
    def stamp(i):
        if stamps and i in stamps:
            k = stamps.index(i)
            a(f"s_memrealtime s[{STAMP0+2*k}:{STAMP0+2*k+1}]")
    def srd(dst, src, size):
        n = int(dst[2:dst.index(":")])
        a(f"s_mov_b32 s{n}, s{src}\ns_mov_b32 s{n+1}, s{src+1}\ns_mov_b32 s{n+2}, {size}\ns_mov_b32 s{n+3}, 0x20000")
    SRDS = {SX: (4, 1792), SK: (6, 1 << 26), SV: (8, 1 << 26), SWQ: (10, 448 * 8192), SWO: (12, 4096 * 896), SW1: (16, 448 * 3584),
            SW2: (18, 1792 * 896), SGW: (20, 896), SOUT: (22, 1792), SWS: (26, WS_BYTES)}
    def srds(*names):
        for n in names: srd(n, *SRDS[n])
    def red8(acc):
        for k in range(4): a(f"v_permlane32_swap_b32 v{acc+k}, v{acc+k+4}")
        for k in range(4): a(f"v_add_f32 v{acc+k}, v{acc+k}, v{acc+k+4}")
        for k in range(2): a(f"v_permlane16_swap_b32 v{acc+k}, v{acc+k+2}")
        for k in range(2): a(f"v_add_f32 v{acc+k}, v{acc+k}, v{acc+k+2}")
        a(f"v_add_f32_dpp v{acc}, v{acc}, v{acc} row_ror:8 row_mask:0xf bank_mask:0x3")
        a(f"v_add_f32_dpp v{acc}, v{acc+1}, v{acc+1} row_ror:8 row_mask:0xf bank_mask:0xc")
    def gemv_step(acc, wreg, lo, hi, first, n=4):
        for i in range(n):
            a(f"v_dot2_f32_bf16 v{acc+2*i}, v{wreg+i}, v{lo}, {'0' if first else f'v{acc+2*i}'}")
            a(f"v_dot2_f32_bf16 v{acc+2*i+1}, v{wreg+i}, v{hi}, {'0' if first else f'v{acc+2*i+1}'}")
    def bc_step(acc, wreg, lo, hi, n):
        for i in range(4):
            a(f"v_dot2c_f32_bf16_dpp v{acc+2*i}, v{lo}, v{wreg+i} row_newbcast:{n} row_mask:0xf bank_mask:0xf")
            a(f"v_dot2c_f32_bf16_dpp v{acc+2*i+1}, v{hi}, v{wreg+i} row_newbcast:{n} row_mask:0xf bank_mask:0xf")
    def allred(op, v, t, bits=6):
        a(f"{op}_dpp v{v}, v{v}, v{v} quad_perm:[1,0,3,2] row_mask:0xf bank_mask:0xf")
        a(f"{op}_dpp v{v}, v{v}, v{v} quad_perm:[2,3,0,1] row_mask:0xf bank_mask:0xf")
        a(f"{op}_dpp v{v}, v{v}, v{v} row_half_mirror row_mask:0xf bank_mask:0xf")
        if bits > 3:
            a(f"{op}_dpp v{v}, v{v}, v{v} row_ror:8 row_mask:0xf bank_mask:0xf")
            a(f"v_mov_b32 v{t}, v{v}\nv_permlane16_swap_b32 v{v}, v{t}\n{op} v{v}, v{v}, v{t}")
            a(f"v_mov_b32 v{t}, v{v}\nv_permlane32_swap_b32 v{v}, v{t}\n{op} v{v}, v{v}, v{t}")
    def spin_or(ld):
        a(f"s_cmp_eq_u32 {sSPIN}, 0\ns_cbranch_scc1 {ld}\ns_sub_u32 {sSPIN}, {sSPIN}, 1")
    def retry(cond_code, reissue):
        lt, ld = a.newlabel("L_poll"), a.newlabel("L_pdone")
        a(f"{lt}:")
        cond_code()
        a(f"s_cbranch_vccz {ld}")
        spin_or(ld)
        a(reissue, count=False)
        a(f"s_waitcnt vmcnt(0)\ns_branch {lt}\n{ld}:")
    def sent_cond(regs, t):
        rs = list(regs)
        a(f"v_max3_u32 v{t}, v{rs[0]}, v{rs[1]}, v{rs[2]}"); rs = rs[3:]
        while len(rs) >= 2:
            a(f"v_max3_u32 v{t}, v{t}, v{rs[0]}, v{rs[1]}"); rs = rs[2:]
        if rs: a(f"v_max_u32 v{t}, v{t}, v{rs[0]}")
        a(f"v_cmp_eq_u32 vcc, -1, v{t}")
    def poll_sent(regs, reissue, t):
        retry(lambda: sent_cond(regs, t), reissue)
    def tag2_cond(g, t):
        a(f"v_xor_b32 v{t}, {sTA}, v{g+2}\nv_bitop3_b32 v{t}, v{t}, {sTB}, v{g+3} bitop3:0xf6\nv_cmp_ne_u32 vcc, 0, v{t}")
    def poll_pipe(nreg, sets, mk, nld, t, hit):
        n = len(sets)
        lt, ld = a.newlabel("L_pp"), a.newlabel("L_ppd")
        hits = [a.newlabel("L_pph") for _ in sets]
        for r in sets[:-1]:
            a(mk(r), count=False); a("s_nop 15\ns_nop 15")
        a(f"{lt}:")
        for k in range(n):
            a(mk(sets[(k + n - 1) % n]), count=False)
            a(f"s_waitcnt vmcnt({(n-1)*nld})")
            sent_cond(range(sets[k], sets[k] + nreg), t)
            a(f"s_cbranch_vccz {hits[k]}")
        spin_or(hits[0])
        a(f"s_branch {lt}")
        for k in range(n - 1, -1, -1):
            a(f"{hits[k]}:")
            hit(sets[k])
            if k: a(f"s_branch {ld}")
        a(f"{ld}:")
    def lds_ticket(addr, t):
        a(f"""
        v_mov_b32 v{t}, {addr}
        v_mov_b32 v{t+1}, 1
        s_waitcnt lgkmcnt(0)
        s_mov_b64 exec, 1
        ds_add_rtn_u32 v{t+1}, v{t}, v{t+1}
        s_mov_b64 exec, -1
        s_waitcnt lgkmcnt(0)
        v_readfirstlane_b32 {sT0}, v{t+1}
        """)
    def lds_wait(flag, extra, t, name):
        a(f"v_mov_b32 v{t}, {flag}\n{name}:\nds_read_b32 v{t+1}, v{t}\n{extra}\ns_waitcnt lgkmcnt(0)\nv_cmp_eq_u32 vcc, 1, v{t+1}\ns_cbranch_vccnz {name}d")
        spin_or(name + "d")
        a(f"s_sleep 1\ns_branch {name}\n{name}d:")

    def chunk_read(c, reg, fast=False):
        ok, sp = a.newlabel("L_ck"), a.newlabel("L_cs")
        a(f"""
        s_cmp_gt_u32 {sLAND}, {c}
        s_cbranch_scc1 {ok}
{sp}:
        ds_read_b32 v{T+11}, v{RA} offset:{L_LAND}
        s_waitcnt lgkmcnt(0)
        v_readfirstlane_b32 {sLAND}, v{T+11}
        s_cmp_gt_u32 {sLAND}, {c}
        s_cbranch_scc1 {ok}
        """)
        spin_or(ok)
        a(("" if fast else f"s_sleep {lsl}\n") + f"s_branch {sp}\n{ok}:")
        slot = c % 16
        a(f"ds_read_b128 v[{reg}:{reg+3}], v{vR0 if slot < 8 else vR1} offset:{(slot % 8) * 8192}")
    def done(c):
        a(f"v_mov_b32 v{T+10}, {c+1}\ns_waitcnt lgkmcnt(0)\ns_mov_b64 exec, 1\nds_write_b32 v{RBv}, v{T+10} offset:{L_DONE}\ns_mov_b64 exec, -1")
    def drain(c0, c1):
        for c in range(c0, c1):
            chunk_read(c, KR + 4 * c)
            if (c + 1) % dstep == 0 or c == c1 - 1: done(c)
    vR0, vR1 = 2, 0
    a(f"""
    s_load_dwordx4 s[36:39], s[0:1], 8
    v_readfirstlane_b32 {sW}, v0
    s_cmpk_ge_u32 s2, 256
    s_cbranch_scc1 L_end
    """)
    stamp(0)
    a(f"""
    s_lshr_b32 {sW}, {sW}, 6
    s_cbranch_scc0 L_loader
    """)
    if cpf:
        a(f"""
        s_getpc_b64 s[100:101]
        s_lshr_b32 s3, s2, 3
        s_lshl_b32 s3, s3, 9
        v_subrev_u32 v{T}, 64, v0
        v_cmp_gt_u32 vcc, 4, v{T}
        v_lshl_add_u32 v{T}, v{T}, 7, s3
        s_and_saveexec_b64 s[98:99], vcc
        s_cbranch_execz L_cons0
        global_load_dword v{F}, v{T}, s[100:101]
        """, count=False)
    DEC = f"""
    s_and_b32 {sH}, s2, 7
    s_lshl_b32 {sH}, {sH}, 1
    s_bfe_u32 {sT0}, s2, 0x10003
    s_add_u32 {sH}, {sH}, {sT0}
    s_bfe_u32 {sB}, s2, 0x10004
    s_lshr_b32 {sS}, s2, 5
    """
    a(f"""
    s_branch L_cons0
L_loader:
    {DEC}
    s_lshl_b32 {sT0}, {sB}, 4
    s_add_u32 {sT0}, {sT0}, {sH}
    s_lshl3_add_u32 {sT0}, {sT0}, {sS}
    s_lshl_b32 {sT0}, {sT0}, 18
    v_lshl_add_u32 v2, v0, 4, {sT0}
    s_lshl_b32 s30, 1, 26
    s_mov_b32 s31, 0x20000
    s_lshl_b32 m0, 1, 15
    s_mov_b32 s34, 0
    s_waitcnt lgkmcnt(0)
    s_mov_b64 s[28:29], s[36:37]
L_burst:
    """)
    assert RING == 1 << 15
    for p in range(4):
        a(f"buffer_load_dwordx4 v2, {SK}, s34 offen offset:{p*1024} {pol} lds", count=False)
    a(f"s_addk_i32 s34, 4096\ns_addk_i32 m0, 4096\ns_cmpk_lt_u32 s34, {nburst*8192}\ns_cbranch_scc1 L_burst")
    a(f"s_setprio 3\nv_mov_b32 {vL}, v0\ns_mov_b32 {sSPIN}, {spin}")
    stamp(199)
    a(f"""
    v_lshlrev_b32 v4, 2, {vL}
    v_mov_b32 v5, 0
    ds_write_b32 v4, v5 offset:{L_LAND}
    ds_write_b32 v4, v5 offset:{L_DONE}
    ds_write_b32 v4, v5 offset:{L_ML}
    v_and_b32 v6, 7, {vL}
    v_lshlrev_b32 v6, 2, v6
    s_mov_b32 s32, {nburst}                      ; chunk
    s_mov_b32 s33, 16
    s_waitcnt lgkmcnt(0)
    s_barrier
    s_branch L_ldok0
L_cons0:
    s_mov_b64 exec, -1
    s_load_dwordx16 s[4:19], s[0:1], 0
    s_load_dwordx8 s[20:27], s[0:1], 64
    {DEC}
    v_and_b32 {vL}, 63, v0
    s_mov_b32 {sSPIN}, {spin}
    s_sub_u32 {sW}, {sW}, 1
    s_mov_b32 {sLAND}, 0
    s_lshl_b32 {sT0}, {sW}, 10
    s_add_u32 {sT0}, {sT0}, {RING}
    v_lshl_add_u32 v{vR0}, {vL}, 4, {sT0}
    v_add_u32 v{vR1}, 0x10000, v{vR0}
    s_lshl_b32 {sT0}, {sW}, 2
    v_mov_b32 v{RBv}, {sT0}
    v_mov_b32 v{RA}, {sT0}
    {"s_barrier" if bar0 else ""}
    s_branch L_cons
    """)
    sched = [(int(t.split(":")[0]), int(t.split(":")[1])) for t in wsched.split(",")] if wsched else [(64, W)]
    sched[-1] = (NCH, sched[-1][1])
    for ph, (cend, Wp) in enumerate(sched):
        a(f"""
L_ld{ph}:
        s_cmp_lt_u32 s32, s33
        s_cbranch_scc1 L_ldok{ph}
L_ldfree{ph}:
        ds_read_b32 v7, v6 offset:{L_DONE}
        s_waitcnt lgkmcnt(0)
        v_min_u32_dpp v7, v7, v7 quad_perm:[1,0,3,2] row_mask:0xf bank_mask:0xf
        v_min_u32_dpp v7, v7, v7 quad_perm:[2,3,0,1] row_mask:0xf bank_mask:0xf
        v_min_u32_dpp v7, v7, v7 row_half_mirror row_mask:0xf bank_mask:0xf
        v_readfirstlane_b32 s33, v7
        s_add_u32 s33, s33, 16
        s_cmp_lt_u32 s32, s33
        s_cbranch_scc1 L_ldok{ph}
        """)
        spin_or(f"L_ldok{ph}")
        a(f"s_branch L_ldfree{ph}\nL_ldok{ph}:")
        for st in (stamps or []):
            if 200 <= st < 264:
                a(f"s_cmp_lg_u32 s32, {st-200}\ns_cbranch_scc1 L_lst{st}_{ph}"); stamp(st); a(f"L_lst{st}_{ph}:")
        pp = (Wp - 1) % 8; back = (Wp - 1 - pp) // 8 + 1
        a(f"""
        s_and_b32 s35, s32, 15
        s_lshl_b32 s35, s35, 13
        s_add_u32 s35, s35, {RING}
        s_mov_b32 m0, s35
        s_sub_u32 s40, s32, {back - 1}
        v_mov_b32 v5, s40
        """)
        for p in range(8):
            if p == 4: a("s_add_u32 s35, s35, 4096\ns_add_u32 s34, s34, 4096\ns_mov_b32 m0, s35")
            a(f"s_waitcnt vmcnt({Wp-1})")
            if p == pp: a(f"ds_write_b32 v4, v5 offset:{L_LAND}")
            else: a("s_nop 0")
            a(f"buffer_load_dwordx4 v2, {SK}, s34 offen offset:{(p%4)*1024} {pol} lds", count=False)
        a(f"""
        s_add_u32 s34, s34, 4096
        s_add_u32 s32, s32, 1
        s_cmp_lg_u32 s32, 32
        s_cbranch_scc1 L_ldnsw{ph}
        s_mov_b32 s28, s38
        s_mov_b32 s29, s39
        s_mov_b32 s34, 0
L_ldnsw{ph}:
        s_cmp_lt_u32 s32, {cend}
        s_cbranch_scc1 L_ld{ph}
        """)
    W = sched[-1][1]
    assert sched[0][1] <= nburst * 8 + 1
    stamp(13)
    a("s_load_dwordx8 s[20:27], s[0:1], 64\ns_waitcnt lgkmcnt(0)")
    a(f"s_lshl_b32 s3, {sB}, 7\ns_add_u32 s3, s3, {GEN}\ns_load_dwordx2 s[68:69], s[26:27], s3")
    srds(SWS, SOUT)
    for k in range((W + 7) // 8 - 1, -1, -1):
        a(f"v_mov_b32 v5, {NCH-k}\ns_waitcnt vmcnt({8*k})\nds_write_b32 v4, v5 offset:{L_LAND}")
    a("s_waitcnt lgkmcnt(0)")
    stamp(5)
    if stamps: a(f"s_mul_i32 {sW}, s2, 7\ns_sub_u32 {sW}, 2048, {sW}")
    a(f"s_add_u32 {sTA}, s68, 8\ns_add_u32 {sTB}, s69, 1\ns_branch L_lsvc")
    a(f"""
L_cons:
    s_waitcnt lgkmcnt(0)
    s_lshl_b32 s3, {sB}, 7
    s_add_u32 s3, s3, {GEN}
    s_load_dwordx2 s[68:69], s[26:27], s3
    s_cmp_eq_u32 {sW}, 7
    s_cbranch_scc1 L_svc
    """)
    VE = KR + 64
    WQr, W1r, XQ, XF, AQ, AF = VE, VE + 16, VE + 24, VE + 26, VE + 32, VE + 40
    srds(SWQ)
    a(f"""
    s_mul_i32 {sT0}, {sS}, 56
    s_lshl_b32 {sT1}, {sW}, 3
    s_add_u32 {sT0}, {sT0}, {sT1}
    v_lshrrev_b32 v{T}, 5, {vL}                  ; half
    v_add_u32 v{T+1}, {sT0}, v{T}
    v_lshlrev_b32 {vA2}, 13, v{T+1}
    v_and_b32 v{T+2}, 31, {vL}
    v_lshl_add_u32 {vA2}, v{T+2}, 4, {vA2}
    s_lshl_b32 {sT1}, {sH}, 9
    v_add_u32 {vA2}, {sT1}, {vA2}
    """)
    for t in range(4):
        if t: a(f"s_mov_b32 {sT1}, {t*2*8192}")
        if "1" not in skip:
            a(f"buffer_load_dwordx4 v[{WQr+4*t}:{WQr+4*t+3}], {vA2}, {SWQ}, {sT1 if t else 0} offen {wpol}", tag="w")
    srds(SX, SW1)
    a(f"""
    v_lshrrev_b32 v{T+3}, 4, {vL}                ; rho
    v_and_b32 v{T+4}, 15, {vL}                   ; n
    v_add_u32 v{T+5}, {sT0}, v{T+3}
    v_mul_u32_u24 {vA3}, 3584, v{T+5}
    v_lshl_add_u32 {vA3}, v{T+4}, 4, {vA3}
    s_lshl_b32 {sT1}, {sH}, 8
    v_add_u32 {vA3}, {sT1}, {vA3}                ; w1 address
    s_cmp_gt_u32 {sH}, 13
    s_cbranch_scc1 L_nof1
    s_mov_b32 {sT1}, {4*3584}
    """)
    if "1" not in skip:
        a(f"buffer_load_dwordx4 v[{W1r}:{W1r+3}], {vA3}, {SW1}, 0 offen {wpol}", count=False)
        a(f"buffer_load_dwordx4 v[{W1r+4}:{W1r+7}], {vA3}, {SW1}, {sT1} offen {wpol}", count=False)
    a(f"""
L_nof1:
    s_mul_i32 {sT1}, {sB}, 448
    s_add_u32 {sT1}, {sT1}, {sT0}
    v_and_b32 v{T+5}, 3, {vL}
    v_lshl_add_u32 v{T+5}, v{T+5}, 1, v{T}
    v_add_lshl_u32 {vA0}, v{T+5}, {sT1}, 1
    v_and_b32 v{T+5}, 1, {vL}
    v_lshl_add_u32 v{T+5}, v{T+5}, 2, v{T+3}
    v_add_lshl_u32 {vA1}, v{T+5}, {sT1}, 1
    """)
    a(f"buffer_load_ushort v{XQ}, {vA0}, {SX}, 0 offen", tag="w")
    a(f"buffer_load_ushort v{XF}, {vA1}, {SX}, 0 offen", tag="w")
    if not bar0: a("s_barrier")
    srds(SWS, SWO, SW2, SOUT, SGW, SV)
    for i in range(16): a(f"v_mov_b32 v{AQ+i}, 0")
    a(f"""
    s_mul_i32 {sT0}, {sW}, 1536
    v_lshlrev_b32 v{T+2}, 5, v{T+2}
    v_lshl_add_u32 v{T+2}, v{T}, 4, v{T+2}
    v_add_u32 v{T+2}, {sT0}, v{T+2}
    v_lshlrev_b32 v{T+4}, 5, v{T+4}
    v_lshl_add_u32 v{T+4}, v{T+3}, 3, v{T+4}     ; 32n + 8*rho
    v_add_u32 v{T+4}, {sT0}, v{T+4}
    """)
    stamp(10)
    drain(0, nd0)
    a.wait_vm("w")
    stamp(11)
    a(f"v_lshlrev_b32 v{XQ+1}, 16, v{XQ}\nv_lshlrev_b32 v{XF+1}, 16, v{XF}")
    for t in range(4): bc_step(AQ, WQr + 4 * t, XQ, XQ + 1, t)
    for t in range(2): bc_step(AF, W1r + 4 * t, XF, XF + 1, t)
    for k in range(4): a(f"v_permlane32_swap_b32 v{AQ+k}, v{AQ+k+4}")
    for k in range(4): a(f"v_permlane32_swap_b32 v{AF+k}, v{AF+k+4}")
    for k in range(4): a(f"v_add_f32 v{AQ+k}, v{AQ+k}, v{AQ+k+4}")
    for k in range(4): a(f"v_add_f32 v{AF+k}, v{AF+k}, v{AF+k+4}")
    a(f"ds_write_b128 v{T+2}, v[{AQ}:{AQ+3}] offset:{L_QH}")
    for k in range(2): a(f"v_permlane16_swap_b32 v{AF+k}, v{AF+k+2}")
    for k in range(2): a(f"v_add_f32 v{AF+k}, v{AF+k}, v{AF+k+2}")
    a(f"ds_write_b64 v{T+4}, v[{AF}:{AF+1}] offset:{L_QH+1024}")
    lds_ticket(L_C1, T + 6)
    TAGS = f"""
    s_add_u32 {sTA}, s68, 8
    s_add_u32 {sTB}, s69, 1
    s_getreg_b32 {sTQ}, hwreg(HW_REG_XCC_ID, 0, 3)
    s_andn2_b32 s3, {sTA}, 7
    s_or_b32 {sTQ}, {sTQ}, s3
    """
    a(TAGS)
    PBs = [8, 12]
    PR = VE
    a(f"s_cmp_lg_u32 {sT0}, 6\ns_cbranch_scc1 L_k2\nv_lshlrev_b32 v{T}, 2, {vL}")
    for u in range(2):
        for th in range(3):
            for w in range(7):
                a(f"ds_read_b32 v{PR+24*u+8*th+w}, v{T} offset:{L_QH+1536*w+512*th+256*u}")
    a(f"s_lshl_b32 {sT0}, s2, 13\nv_lshl_add_u32 v{T+1}, {vL}, 4, {sT0}")
    for u in range(2): a(f"v_mov_b32 v{PBs[u]+3}, {sTQ}")
    a("s_waitcnt lgkmcnt(0)")
    for u in range(2):
        for th in range(3):
            b = PR + 24 * u + 8 * th
            a(f"v_add_f32 v{b}, v{b}, v{b+1}\nv_add_f32 v{b+2}, v{b+2}, v{b+3}\nv_add_f32 v{b+4}, v{b+4}, v{b+5}")
        for th in range(3):
            b = PR + 24 * u + 8 * th
            a(f"v_add_f32 v{b}, v{b}, v{b+2}\nv_add_f32 v{b+4}, v{b+4}, v{b+6}")
        for th in range(3):
            b = PR + 24 * u + 8 * th
            a(f"v_add_f32 v{PBs[u]+th}, v{b}, v{b+4}")
        a(f"buffer_store_dwordx4 v[{PBs[u]}:{PBs[u]+3}], v{T+1}, {SWS}, 0 offen offset:{QA+1024*u}", count=False)
    stamp(1)
    a("s_branch L_k2")
    a("L_svc:")
    a.vm = []
    GX = VE
    srds(SWS, SX, SGW)
    a(f"""
    s_mul_i32 s3, {sB}, 896
    v_lshlrev_b32 v{T+7}, 4, {vL}
    v_add_u32 v{T+8}, s3, v{T+7}
    v_cmp_gt_u32 vcc, 56, {vL}
    v_mov_b32 v{T+6}, 0x10000
    v_cndmask_b32 v{T+8}, v{T+6}, v{T+8}, vcc
    """)
    a(f"buffer_load_dwordx4 v[{GX}:{GX+3}], v{T+8}, {SX}, 0 offen", tag="w")
    a(f"buffer_load_dwordx4 v[{GX+4}:{GX+7}], v{T+7}, {SGW}, 0 offen", tag="w")
    a(f"""
    s_waitcnt lgkmcnt(0)
    """)
    if not bar0: a("s_barrier")
    a(TAGS)
    srds(SWO, SW2, SOUT, SWQ, SW1, SV)
    drain(0, nd0)
    a(f"""
    s_waitcnt vmcnt(0)
    """, count=False)
    G = T
    a(f"v_mov_b32 v{G}, 0")
    for i in range(4):
        x, g = GX + i, GX + 4 + i
        a(f"""
        v_lshlrev_b32 v{G+1}, 16, v{x}
        v_lshlrev_b32 v{G+2}, 16, v{g}
        v_and_b32 v{G+3}, 0xffff0000, v{x}
        v_and_b32 v{G+4}, 0xffff0000, v{g}
        v_mul_f32 v{G+1}, v{G+1}, v{G+2}
        v_mul_f32 v{G+3}, v{G+3}, v{G+4}
        v_cvt_pk_bf16_f32 v{G+1}, v{G+1}, v{G+3}
        v_lshlrev_b32 v{G+2}, 16, v{G+1}
        v_and_b32 v{G+3}, 0xffff0000, v{G+1}
        v_add_f32 v{G}, v{G}, v{G+2}
        v_add_f32 v{G}, v{G}, v{G+3}
        """)
    allred("v_add_f32", G, G + 1)
    a(f"""
    v_cvt_pk_bf16_f32 v{G}, 0, v{G}
    v_mul_f32 v{G}, {hex(f32bits(-math.log2(math.e)))}, v{G}
    v_exp_f32 v{G}, v{G}
    v_add_f32 v{G}, 1.0, v{G}
    v_rcp_f32 v{G}, v{G}
    v_cvt_pk_bf16_f32 v{G}, 0, v{G}
    v_mov_b32 v{G+1}, {L_G}
    ds_write_b32 v{G+1}, v{G}
L_k2:
    """)
    a.vm = []
    ADDRS = f"""
    s_mov_b32 s78, 0xcccccccc
    s_mov_b32 s79, 0xcccccccc
    s_mov_b32 s80, 0xaaaaaaaa
    s_mov_b32 s81, 0xaaaaaaaa
    s_lshl_b32 {sOWN}, s2, 13
    v_and_b32 v{T+1}, 7, {vL}
    v_lshrrev_b32 v{T}, 3, {vL}
    v_lshlrev_b32 v{COL}, 5, v{T+1}
    v_lshrrev_b32 v{T+2}, 5, {vL}
    v_lshl_add_u32 v{COL}, v{T+2}, 4, v{COL}
    v_bfe_u32 v{T+2}, {vL}, 4, 1
    v_lshl_add_u32 v{COL}, v{T+2}, 3, v{COL}
    v_bfe_u32 v{T+2}, {vL}, 3, 1
    v_lshl_add_u32 v{COL}, v{T+2}, 2, v{COL}
    s_lshl_b32 {sT1}, {sW}, 8
    v_add_u32 v{COL}, {sT1}, v{COL}
    s_and_b32 {sT0}, s2, 31
    s_lshl_b32 {sT0}, {sT0}, 13
    s_add_u32 {sT0}, {sT0}, {OP}
    v_lshlrev_b32 {vA1}, 18, v{T+1}
    v_add_u32 {vA1}, {sT0}, {vA1}
    v_lshl_add_u32 {vA2}, v{T}, 4, {vA1}
    s_lshl_b32 {sT1}, {sW}, 7
    v_add_u32 {vA2}, {sT1}, {vA2}
    s_lshl_b32 {sT1}, {sS}, 7
    v_lshl_add_u32 v{T+1}, v{T+1}, 4, {sT1}
    s_lshl_b32 {sT0}, {sH}, 8
    s_lshl_b32 {sT1}, {sW}, 5
    s_add_u32 {sT0}, {sT0}, {sT1}
    v_lshl_add_u32 v{T+2}, v{T}, 2, {sT0}
    v_mul_u32_u24 v{T+2}, 896, v{T+2}
    v_add_u32 {vA3}, v{T+2}, v{T+1}
    s_lshr_b32 {sT0}, {sT0}, 1
    v_lshl_add_u32 v{T+2}, v{T}, 1, {sT0}
    v_mul_u32_u24 v{T+2}, 896, v{T+2}
    v_add_u32 {vA4}, v{T+2}, v{T+1}              ; w2 rows 128h+16w+2r+j
    v_and_b32 v{T}, 31, {vL}
    v_lshlrev_b32 {vA0}, 4, v{T}
    s_and_b32 {sT0}, s2, 31
    s_lshl_b32 {sT0}, {sT0}, 13
    s_lshl_b32 {sT1}, {sW}, 18
    s_add_u32 {sT0}, {sT0}, {sT1}
    v_lshl_add_u32 v8, {vL}, 4, {sT0}
    v_lshl_add_u32 v12, {vL}, 4, {sOWN}
    s_mul_i32 {sT1}, {sW}, 1536
    v_lshl_add_u32 v9, {vL}, 2, {sT1}
    """
    a(ADDRS)
    drain(nd0, NG)
    GB = KR + 96
    gl = "\n".join(f"buffer_load_dwordx4 v[{GB+4*u}:{GB+4*u+3}], v8, {SWS}, 0 offen offset:{QA+1024*u} sc1" for u in range(2))
    glb = gl.replace(f"offset:{QA} ", f"offset:{QB} ").replace(f"offset:{QA+1024} ", f"offset:{QB+1024} ")
    def wt_copy(must):
        lt, ld = a.newlabel("L_wt"), a.newlabel("L_wtd")
        a(f"""
{lt}:
        buffer_load_dwordx4 v[{GB+8}:{GB+11}], v12, {SWS}, 0 offen offset:{QA} sc1
        buffer_load_dwordx4 v[{GB+12}:{GB+15}], v12, {SWS}, 0 offen offset:{QA+1024} sc1
        s_waitcnt vmcnt(0)
        v_xor_b32 v10, {sTQ}, v{GB+11}
        v_bitop3_b32 v10, v10, {sTQ}, v{GB+15} bitop3:0xf6
        v_cmp_ne_u32 vcc, 0, v10
        s_cbranch_vccz {ld}s
        """, count=False)
        if must:
            spin_or(ld); a(f"s_branch {lt}")
        else:
            a(f"s_branch {ld}")
        a(f"""
{ld}s:
        buffer_store_dwordx4 v[{GB+8}:{GB+11}], v12, {SWS}, 0 offen offset:{QB} sc1
        buffer_store_dwordx4 v[{GB+12}:{GB+15}], v12, {SWS}, 0 offen offset:{QB+1024} sc1
{ld}:
        """, count=False)
    a(gl, count=False)
    drain(NG, NG + NGW)
    assert NG + NGW <= 24
    a("s_waitcnt vmcnt(0)")
    if "g" in skip or "r" in skip: a("s_branch L_gd")
    a(f"""
    s_mov_b32 {sMISS}, 0
L_g:
    v_xor_b32 v10, {sTQ}, v{GB+3}
    v_bitop3_b32 v10, v10, {sTQ}, v{GB+7} bitop3:0xf6
    v_cmp_ne_u32 vcc, 0, v10
    s_cbranch_vccz L_gd
    v_cmp_lt_u32 vcc, 7, v10
    s_cbranch_vccz L_grem
    """)
    spin_or("L_gd")
    a(f"s_add_u32 {sMISS}, {sMISS}, 1\ns_and_b32 s3, {sMISS}, 15\ns_cbranch_scc0 L_gfb\n{gl}\ns_waitcnt vmcnt(0)\ns_branch L_g\nL_gfb:", count=False)
    wt_copy(False)
    a(f"{glb}\ns_waitcnt vmcnt(0)\ns_branch L_g\nL_grem:", count=False)
    a(f"v_mov_b32 v10, {L_REM}\nv_mov_b32 v11, 1\nds_write_b32 v10, v11")
    wt_copy(True)
    a("L_gd:")
    stamp(12)
    for u in range(2):
        for th in range(3):
            a(f"ds_write_b32 v9, v{GB+4*u+th} offset:{L_QG+512*th+256*u}")
    lds_ticket(L_C3, 10)
    a(f"s_cmp_lg_u32 {sT0}, 7\ns_cbranch_scc1 L_noq\nv_lshlrev_b32 v9, 3, {vL}")
    a(f"v_lshlrev_b32 v8, 2, {vL}\nv_mov_b32 v11, 1\nv_mov_b32 v12, {L_QRDY}")
    def qreads(th):
        for w in range(8):
            a(f"ds_read_b64 v[{GB+16*(th%2)+2*w}:{GB+16*(th%2)+2*w+1}], v9 offset:{L_QG+1536*w+512*th}")
    qreads(0); qreads(1)
    for th in range(3):
        b = GB + 16 * (th % 2)
        a("s_waitcnt lgkmcnt(0)")
        for st in (1, 2, 4):
            for w in range(0, 8, 2 * st):
                for e in range(2): a(f"v_add_f32 v{b+2*w+e}, v{b+2*w+e}, v{b+2*(w+st)+e}")
        if th == 2: a(f"v_maximum3_f32 v{b}, v{b}, 0, 0\nv_maximum3_f32 v{b+1}, v{b+1}, 0, 0")
        a(f"v_cvt_pk_bf16_f32 v{13+th}, v{b}, v{b+1}\nds_write_b32 v8, v{13+th} offset:{L_Q+256*th}")
        if th == 0: qreads(2)
    a("s_waitcnt lgkmcnt(0)\nds_write_b32 v12, v11")
    stamp(17)
    a(f"""
L_noq:
    s_cmp_lg_u32 {sW}, 0
    s_cbranch_scc1 L_noclr
    s_add_u32 {sT0}, {sOWN}, {OP}
    v_lshl_add_u32 v{T}, {vL}, 4, {sT0}
    v_mov_b32 v8, -1
    v_mov_b32 v9, -1
    v_mov_b32 v10, -1
    v_mov_b32 v11, -1
    buffer_store_dwordx4 v[8:11], v{T}, {SWS}, 0 offen
L_noclr:
    """, count=False)
    drain(NG + NGW, 32)
    a("s_waitcnt vmcnt(0)")
    stamp(2)
    lds_wait(L_QRDY, f"ds_read_b128 v[{Q0}:{Q0+3}], {vA0} offset:{L_Q}\nds_read_b32 v{T+2}, v{T} offset:{L_REM-L_QRDY}", T, "L_rdy")
    a(f"v_readfirstlane_b32 {sREM}, v{T+2}")
    stamp(3)
    def R(j): return KR + 4 * j
    for g0 in range(0, 32, 8):
        for i in range(4):
            for j in range(g0, g0 + 8):
                a(f"v_dot2_f32_bf16 v{R(j)}, v{R(j)+i}, v{Q0+i}, {'0' if i == 0 else f'v{R(j)}'}")
    for j in range(0, 32, 2): a(f"v_permlane16_swap_b32 v{R(j)}, v{R(j+1)}")
    for j in range(0, 32, 2): a(f"v_add_f32 v{R(j)}, v{R(j)}, v{R(j+1)}")
    for st, ctl, m0, m1 in ((2, "row_ror:8", 3, 12), (4, "row_half_mirror", 5, 10)):
        for j in range(0, 32, 2 * st):
            a(f"v_add_f32_dpp v{R(j)}, v{R(j)}, v{R(j)} {ctl} row_mask:0xf bank_mask:{m0}")
        for j in range(0, 32, 2 * st):
            a(f"v_add_f32_dpp v{R(j)}, v{R(j+st)}, v{R(j+st)} {ctl} row_mask:0xf bank_mask:{m1}")
    for st, qp, m in ((8, "[2,3,0,1]", MB1), (16, "[1,0,3,2]", MB0)):
        for j in range(0, 32, st):
            a(f"v_add_f32_dpp v{R(j)}, v{R(j)}, v{R(j)} quad_perm:{qp} row_mask:0xf bank_mask:0xf")
        for j in range(0, 32, 2 * st):
            a(f"v_cndmask_b32 v{R(j)}, v{R(j)}, v{R(j+st)}, {m}")
    S = T + 8
    a(f"v_cvt_pk_bf16_f32 v{S}, 0, v{R(0)}\nv_mov_b32 v{T}, v{S}")
    allred("v_max_f32", T, T + 1)
    a(f"""
    v_sub_f32 v{S}, v{S}, v{T}
    v_mul_f32 v{S}, {CSC}, v{S}
    v_exp_f32 v{S}, v{S}
    v_mov_b32 v{T+1}, v{S}
    """)
    allred("v_add_f32", T + 1, T + 2)
    a(f"""
    s_lshl_b32 {sT0}, {sW}, 3
    v_mov_b32 v{T+2}, {sT0}
    ds_write_b64 v{T+2}, v[{T}:{T+1}] offset:{L_ML}
    v_cvt_pk_bf16_f32 v{P0}, v{S}, 0
    v_cvt_pk_bf16_f32 v{P0+1}, 0, v{S}
    v_mov_b32 v{P0+2}, v{P0}
    v_mov_b32 v{P0+3}, v{P0+1}
    v_permlane16_swap_b32 v{P0}, v{P0+2}
    v_permlane16_swap_b32 v{P0+1}, v{P0+3}
    """)
    lds_ticket(L_C2, T + 2)
    M4 = Q0
    a(f"""
    s_cmp_lg_u32 {sT0}, 7
    s_cbranch_scc1 L_noml
    v_and_b32 v{T+2}, 7, {vL}
    v_lshlrev_b32 v{T+3}, 3, v{T+2}
    ds_read_b64 v[{T+4}:{T+5}], v{T+3} offset:{L_ML}
    v_lshlrev_b32 v{T+3}, 2, v{T+2}
    v_mov_b32 v{T+2}, {sOWN}
    s_waitcnt lgkmcnt(0)
    v_mov_b32 v{M4}, v{T+4}
    """)
    allred("v_max_f32", M4, T + 1, bits=3)
    a(f"""
    v_sub_f32 v{T+4}, v{T+4}, v{M4}
    v_mul_f32 v{T+4}, {CSC}, v{T+4}
    v_exp_f32 v{T+4}, v{T+4}
    v_mul_f32 v{M4+1}, v{T+4}, v{T+5}
    ds_write_b32 v{T+3}, v{T+4} offset:{L_F}
    v_mov_b32 v{T+3}, {L_FRDY}
    v_mov_b32 v{T+7}, 1
    s_waitcnt lgkmcnt(0)
    ds_write_b32 v{T+3}, v{T+7}
    """)
    allred("v_add_f32", M4 + 1, T + 6, bits=3)
    a(f"""
    v_mov_b32 v{M4+2}, {sTA}
    v_mov_b32 v{M4+3}, {sTB}
    s_mov_b64 exec, 1
    v_add_u32 v{T+2}, {ML}, v{T+2}
    buffer_store_dwordx4 v[{M4}:{M4+3}], v{T+2}, {SWS}, 0 offen
    v_mov_b32 v{T+3}, {L_MLG}
    ds_write_b128 v{T+3}, v[{M4}:{M4+3}]
    s_mov_b64 exec, -1
    s_nop 1
L_noml:
    """, count=False)
    stamp(4)
    NVT = 4
    VL = KR + 4
    WOr = VL + 4 * NVT; W2r = WOr + 16; MLr = W2r + 8; EV = MLr + 4
    for i in range(8): a(f"v_mov_b32 v{ACC+i}, 0")
    def vreg(j): return VL + 4 * (j % NVT)
    def pv(j, reg=None):
        pr = P0 + 2 * (j & 1)
        n = ((j >> 1) & 1) << 3 | ((j >> 2) & 1) << 2 | ((j >> 3) & 1) << 1 | ((j >> 4) & 1)
        bc_step(ACC, vreg(j) if reg is None else reg, pr, pr + 1, n)
    mlload = f"buffer_load_dwordx4 v[{MLr}:{MLr+3}], {vA1}, {SWS}, 0 offen offset:{ML-OP} sc1"
    ACB = EV + 4
    FW = T + 7
    def w2part():
        a(f"""
        v_mov_b32 v{ACB}, 0
        s_cmp_eq_u32 {sS}, 7
        s_cbranch_scc1 L_now2b
        s_cmp_gt_u32 {sH}, 13
        s_cbranch_scc1 L_now2c
        v_lshrrev_b32 v{T}, 3, {vL}
        s_lshl_b32 {sT0}, {sW}, 5
        v_lshl_add_u32 v{T}, v{T}, 2, {sT0}
        ds_read_b32 v{T+4}, v{T} offset:{L_H}
        s_waitcnt lgkmcnt(0)
        v_and_b32 v{T}, 0xffff, v{T+4}
        v_lshlrev_b32 v{T+1}, 16, v{T+4}
        v_lshrrev_b32 v{T+2}, 16, v{T+4}
        v_and_b32 v{T+3}, 0xffff0000, v{T+4}
        """)
        gemv_step(ACB, W2r, T, T + 1, True)
        gemv_step(ACB, W2r + 4, T + 2, T + 3, False)
        red8(ACB)
        a(f"L_now2c:\nds_write_b32 v{COL}, v{ACB} offset:{L_YB}\nL_now2b:")
        a(f"""
        v_and_b32 v{T+4}, 31, {vL}
        v_lshlrev_b32 v{T+4}, 5, v{T+4}
        v_lshrrev_b32 v{T+5}, 5, {vL}
        v_lshl_add_u32 v{T+4}, v{T+5}, 4, v{T+4}
        s_mul_i32 {sT0}, {sW}, {OPS}
        v_add_u32 v{T+4}, {sT0}, v{T+4}
        s_lshl_b32 {sT0}, {sW}, 10
        s_lshl_b32 {sT1}, {sB}, 25
        s_add_u32 {sT0}, {sT0}, {sT1}
        s_lshl_b32 {sT1}, {sH}, 21
        s_add_u32 {sT0}, {sT0}, {sT1}
        s_lshl_b32 {sT1}, {sS}, 18
        s_add_u32 {sT0}, {sT0}, {sT1}
        v_lshl_add_u32 v{vD}, {vL}, 4, {sT0}
        v_and_b32 v{T+9}, 7, {vL}
        v_lshrrev_b32 v{T+8}, 3, {vL}
        v_lshlrev_b32 v{T+8}, 4, v{T+8}
        v_mul_u32_u24 v{T+9}, {OPS}, v{T+9}
        v_add_u32 v{T+8}, v{T+9}, v{T+8}
        s_lshl_b32 {sT0}, {sW}, 7
        v_add_u32 v{T+8}, {sT0}, v{T+8}
        s_lshl_b32 s78, 0x01010101, {sS}
        s_mov_b32 s79, s78
        """)
    def mlcalc(remote):
        retry(lambda: tag2_cond(MLr, T), mlload.replace(", 0 offen", ", s4 offen") if remote else mlload)
        a(f"v_mov_b32 v{T}, v{MLr}")
        allred("v_max_f32", T, T + 1, bits=3)
        a(f"""
        v_sub_f32 v{T}, v{MLr}, v{T}
        v_mul_f32 v{T}, {CSC}, v{T}
        v_exp_f32 v{T}, v{T}
        v_mul_f32 v{T+1}, v{T}, v{MLr+1}
        """)
        allred("v_add_f32", T + 1, T + 2, bits=3)
        a(f"v_rcp_f32 v{T+1}, v{T+1}\nv_mul_f32 v{F}, v{T}, v{T+1}")
    wl = [("o", j) for j in range(4)] + [("2", j) for j in range(2)]
    def wload(kind, j):
        lb = a.newlabel("L_nw")
        a(f"s_cmp_eq_u32 {sS}, 7\ns_cbranch_scc1 {lb}")
        if kind == "2":
            a(f"s_cmp_gt_u32 {sH}, 13\ns_cbranch_scc1 {lb}")
            a(f"buffer_load_dwordx4 v[{W2r+4*j}:{W2r+4*j+3}], {vA4}, {SW2}, 0 offen offset:{896*j} {wpol}", count=False)
        else:
            a(f"buffer_load_dwordx4 v[{WOr+4*j}:{WOr+4*j+3}], {vA3}, {SWO}, 0 offen offset:{896*j} {wpol}", count=False)
        a(f"{lb}:")
    VD = ACB + 8
    chunk_read(32, vreg(0))
    NR = 32 - ndir
    for j in range(NR):
        if wl and "2" not in skip: wload(*wl.pop(0))
        if j == 12:
            a("s_waitcnt vmcnt(0)"); w2part()
        if j == 16: a(mlload, count=False)
        if j == 20:
            lds_wait(L_FRDY, f"ds_read_b32 v{FW}, v{RA} offset:{L_F}", T, "L_frdy")
            a(f"s_waitcnt vmcnt(0)\ns_cmp_lg_u32 {sREM}, 0\ns_cbranch_scc1 L_nomlc")
            if "g" not in skip and "r" not in skip: mlcalc(False)
            a("L_nomlc:")
            if dry: a("s_mov_b64 exec, 0\ns_branch L_tail\nL_dryret:\ns_mov_b64 exec, -1")
        if j == NR - dpos:
            for k in range(ndir):
                a(f"s_mov_b32 s3, {(NR+k)*8192}\nbuffer_load_dwordx4 v[{VD+4*k}:{VD+4*k+3}], v{vD}, {SV}, s3 offen {pol}", count=False)
        if j < 48 - 32 and j % dstep == dstep - 1: done(32 + j)
        else: a("s_waitcnt lgkmcnt(0)")
        if j < 24 and j + 1 < NR: chunk_read(32 + j + 1, vreg(j + 1))
        pv(j); stamp(60 + j)
        if 24 <= j < NR - 1: chunk_read(32 + j + 1, vreg(j + 1), fast=(j >= NR - 3))
    for k in range(ndir):
        a(f"s_waitcnt vmcnt({ndir-1-k})")
        pv(NR + k, VD + 4 * k)
    stamp(5)
    a.phase = "tail"
    a("L_tail:")
    def guard(txt):
        if not dry: a(txt, count=False); return
        lb = a.newlabel("L_gd")
        a(f"s_cbranch_execz {lb}\n{txt}\n{lb}:", count=False)
    for k in range(4): a(f"v_permlane32_swap_b32 v{ACC+k}, v{ACC+k+4}")
    for k in range(4): a(f"v_add_f32 v{ACC+k}, v{ACC+k}, v{ACC+k+4}")
    for k in range(4): a(f"v_mul_f32 v{ACC+k}, v{FW}, v{ACC+k}")
    B = KR + 64
    def gcheck(grans, t):
        for k, g in enumerate(grans):
            if k == 0: a(f"v_xor_b32 v{t}, {sTA}, v{g+1}\nv_xor_b32 v{t+1}, {sTB}, v{g+3}")
            else: a(f"v_bitop3_b32 v{t}, v{t}, {sTA}, v{g+1} bitop3:0xf6\nv_bitop3_b32 v{t+1}, v{t+1}, {sTB}, v{g+3} bitop3:0xf6")
        a(f"v_or_b32 v{t}, v{t}, v{t+1}\nv_cmp_ne_u32 vcc, 0, v{t}")
    def sum_pairs(lds, stride, n):
        for w in range(n): a(f"ds_read_b64 v[{B+2*w}:{B+2*w+1}], v{T+8} offset:{lds+stride*w}")
        a("s_waitcnt lgkmcnt(0)")
        for st in (1, 2):
            for w in range(0, 8, 2 * st):
                a(f"v_add_f32 v{B+2*w}, v{B+2*w}, v{B+2*(w+st)}\nv_add_f32 v{B+2*w+1}, v{B+2*w+1}, v{B+2*(w+st)+1}")
        a(f"v_add_f32 v{PG}, v{B}, v{B+8}\nv_add_f32 v{PG+2}, v{B+1}, v{B+9}")
    PG = B + 16
    O = B + 24
    a(f"""
    ds_write_b128 v{T+4}, v[{ACC}:{ACC+3}] offset:{L_OP}
    s_waitcnt lgkmcnt(0)
    """)
    guard("s_barrier")
    stamp(14)
    opl = f"buffer_load_dwordx4 v[{O}:{O+3}], {vA2}, {SWS}, 0 offen sc1"
    a(f"s_cmp_lg_u32 {sREM}, 0\ns_cbranch_scc1 L_remote\nds_read_b128 v[{B}:{B+3}], v{T+8} offset:{L_OP}")
    a(f"s_cmp_eq_u32 {sS}, 7\ns_cbranch_scc1 L_nopl")
    guard(opl)
    a("L_nopl:\ns_waitcnt lgkmcnt(0)")
    for qp in ("quad_perm:[1,0,3,2]", "quad_perm:[2,3,0,1]", "row_half_mirror"):
        for i in range(4): a(f"v_add_f32_dpp v{B+i}, v{B+i}, v{B+i} {qp} row_mask:0xf bank_mask:0xf")
    for i in range(4): a(f"v_min_u32 v{B+i}, -2, v{B+i}")
    if at1:
        guard(f"s_mov_b64 exec, {MOWN}\nbuffer_atomic_swap_x2 v[{B}:{B+1}], {vA2}, {SWS}, 0 offen\nbuffer_atomic_swap_x2 v[{B+2}:{B+3}], {vA2}, {SWS}, 0 offen offset:8\ns_mov_b64 exec, -1")
    else:
        guard(f"s_mov_b64 exec, {MOWN}\nbuffer_store_dwordx4 v[{B}:{B+3}], {vA2}, {SWS}, 0 offen\ns_mov_b64 exec, -1")
    stamp(8)
    a(f"s_cmp_eq_u32 {sS}, 7\ns_cbranch_scc1 L_fin\ns_waitcnt vmcnt({2 if at1 else 1})")
    own = "\n".join(f"v_cndmask_b32 v{O+i}, v{O+i}, v{B+i}, {MOWN}" for i in range(4))
    stamp(9)
    def h1mul(r):
        a(f"v_mul_f32 v{O+6}, v{F}, v{r+3}\nv_mul_f32 v{O+4}, v{F}, v{r+2}\nv_mul_f32 v{O+2}, v{F}, v{r+1}\nv_mul_f32 v{O}, v{F}, v{r}")
    if h1p == 1:
        def c1():
            a(own); sent_cond([O, O + 1, O + 2, O + 3], T)
        retry(c1, (f"s_sleep {bo}\n" if bo else "") + opl)
        h1mul(O)
    else:
        sent_cond([O, O + 1, O + 2, O + 3], T)
        a("s_cbranch_vccz L_h1a")
        poll_pipe(4, [O + 8 + 4 * k for k in range(h1p)], lambda r: opl.replace(f"v[{O}:{O+3}]", f"v[{r}:{r+3}]"), 1, T, h1mul)
        a("s_branch L_hop1d\nL_h1a:")
        h1mul(O)
    a("L_hop1d:")
    stamp(6)
    for qp in ("quad_perm:[1,0,3,2]", "quad_perm:[2,3,0,1]", "row_half_mirror"):
        for i in range(4): a(f"v_add_f32_dpp v{O+2*i}, v{O+2*i}, v{O+2*i} {qp} row_mask:0xf bank_mask:0xf")
    for i in range(4): a(f"v_cvt_pk_bf16_f32 v{O+2*i+1}, 0, v{O+2*i}")
    for i in range(4): a(f"v_cvt_pk_bf16_f32 v{O+2*i}, v{O+2*i}, 0")
    for j in range(4): gemv_step(ACC, WOr + 4 * j, O + 2 * j, O + 2 * j + 1, j == 0)
    red8(ACC)
    a(f"""
    ds_write_b32 v{COL}, v{ACC} offset:{L_YA}
    v_and_b32 v{T+8}, 31, {vL}
    v_lshlrev_b32 v{T+8}, 3, v{T+8}
    s_add_u32 {sT1}, {sOWN}, {YA}
    v_lshl_add_u32 v{T+9}, v{T+8}, 1, {sT1}
    v_mov_b32 v{PG+1}, {sTA}
    v_mov_b32 v{PG+3}, {sTB}
    s_waitcnt lgkmcnt(0)
    """)
    guard("s_barrier")
    stamp(15)
    if dry: a(f"s_cbranch_execnz L_nd7\ns_cmp_eq_u32 {sW}, 7\ns_cbranch_scc1 L_lsvc\nL_nd7:")
    a(f"s_cmp_lg_u32 {sW}, 0\ns_cbranch_scc1 L_fin")
    sum_pairs(L_YA, 256, 8)
    if at2:
        guard(f"s_mov_b32 exec_hi, 0\nbuffer_atomic_swap_x2 v[{PG}:{PG+1}], v{T+9}, {SWS}, 0 offen sc1\nbuffer_atomic_swap_x2 v[{PG+2}:{PG+3}], v{T+9}, {SWS}, 0 offen offset:8 sc1\ns_mov_b64 exec, -1")
    else:
        guard(f"buffer_store_dwordx4 v[{PG}:{PG+3}], v{T+9}, {SWS}, 0 offen {ypol}")
    stamp(19)
    a("s_branch L_fin")
    a(f"""
L_remote:
    s_cbranch_execz L_fin
    s_mov_b32 s4, {BOFF}
    v_mov_b32 v{PG+1}, {sTA}
    v_mov_b32 v{PG+3}, {sTB}
    s_cmp_gt_u32 {sW}, 2
    s_cbranch_scc1 L_rem1
    s_cmp_eq_u32 {sW}, 2
    s_cbranch_scc1 L_remml
    s_lshl_b32 {sT0}, {sW}, 9
    v_lshl_add_u32 v{T+8}, {vL}, 3, {sT0}
    s_add_u32 {sT1}, {sOWN}, {OP}
    v_lshl_add_u32 v{T+9}, v{T+8}, 1, {sT1}
    """)
    sum_pairs(L_OP, OPS, 8)
    a(f"""
    s_branch L_remst
L_remml:
    v_mov_b32 v{T+8}, {L_MLG}
    ds_read_b128 v[{PG}:{PG+3}], v{T+8}
    s_add_u32 {sT1}, {sOWN}, {ML}
    v_mov_b32 v{T+9}, {sT1}
    s_waitcnt lgkmcnt(0)
L_remst:
    buffer_store_dwordx4 v[{PG}:{PG+3}], v{T+9}, {SWS}, s4 offen sc1
L_rem1:
    s_cmp_eq_u32 {sS}, 7
    s_cbranch_scc1 L_fin
    v_sub_u32 v{T+8}, {vA2}, {vA1}
    v_lshl_add_u32 v{T+8}, v{T+8}, 1, {vA1}
    """, count=False)
    mlcalc(True)
    oplb = (f"buffer_load_dwordx4 v[{O}:{O+3}], v{T+8}, {SWS}, s4 offen sc1\n"
            f"buffer_load_dwordx4 v[{O+4}:{O+7}], v{T+8}, {SWS}, s4 offen offset:16 sc1")
    a(oplb + "\ns_waitcnt vmcnt(0)", count=False)
    retry(lambda: gcheck([O, O + 4], T), oplb)
    for i in range(4): a(f"v_mul_f32 v{O+2*i}, v{F}, v{O+2*i}")
    a("s_branch L_hop1d")
    a(f"""
L_lsvc:
    s_cmp_eq_u32 {sS}, 7
    s_cbranch_scc1 L_fin
    s_lshl_b32 {sOWN}, s2, 13
    v_and_b32 v{T+8}, 31, {vL}
    v_lshlrev_b32 v{T+8}, 3, v{T+8}
    s_add_u32 {sT1}, {sOWN}, {YB}
    v_lshl_add_u32 v{T+9}, v{T+8}, 1, {sT1}
    v_mov_b32 v{PG+1}, {sTA}
    v_mov_b32 v{PG+3}, {sTB}
    """)
    guard("s_barrier")
    sum_pairs(L_YB, 256, 8)
    guard(f"buffer_store_dwordx4 v[{PG}:{PG+3}], v{T+9}, {SWS}, 0 offen sc1")
    a(f"""
    s_lshl_b32 {sT0}, {sS}, 1
    s_add_u32 {sT0}, {sT0}, {sB}
    s_cmp_lg_u32 {sT0}, {sH}
    s_cbranch_scc1 L_fin
    s_and_b32 {sT0}, s2, 0xf0
    s_lshl_b32 {sT0}, {sT0}, 13
    s_add_u32 {sT0}, {sT0}, {YA}
    v_lshrrev_b32 v{T+5}, 5, {vL}
    v_lshlrev_b32 v{T}, 13, v{T+5}
    v_lshl_add_u32 v{T}, v{T+8}, 1, v{T}
    v_add_u32 {vA0}, {sT0}, v{T}
    v_mov_b32 v{T+2}, {L_G}
    ds_read_b32 v{T+3}, v{T+2}
    """, count=False)
    for k in range(1, 8): a(f"s_mov_b32 s{3+k}, {k*2*SLOT}")
    so = ["0"] + [f"s{3+k}" for k in range(1, 8)]
    mk = lambda r, off: "\n".join(f"buffer_load_dwordx4 v[{r+4*k}:{r+4*k+3}], {vA0}, {SWS}, {so[k]} offen offset:{off} {ypol}" for k in range(8))
    YBr, YAr = KR, KR + 32
    sets = [KR + 32, KR + 64, KR + 96][:npoll]
    guard(mk(YBr, YB - YA))
    a(f"""
    v_lshrrev_b32 v{T+4}, 2, v{T+8}
    v_add_u32 v{T+4}, v{T+4}, v{T+5}
    s_mul_i32 {sT0}, {sB}, 448
    s_lshl_b32 {sT1}, {sS}, 6
    s_add_u32 {sT0}, {sT0}, {sT1}
    v_add_lshl_u32 v{T+4}, v{T+4}, {sT0}, 1
    s_waitcnt lgkmcnt(0)
    v_sub_f32 v{T+6}, 1.0, v{T+3}
    v_cvt_pk_bf16_f32 v{T+6}, 0, v{T+6}
    """)
    def tree(dst, src):
        for e in range(2):
            for k in range(0, 8, 2): a(f"v_add_f32 v{dst+4*e+k//2}, v{src+4*k+2*e}, v{src+4*k+4+2*e}")
        for e in range(2):
            a(f"v_add_f32 v{dst+4*e}, v{dst+4*e}, v{dst+4*e+1}\nv_add_f32 v{dst+4*e+2}, v{dst+4*e+2}, v{dst+4*e+3}")
        for e in range(2): a(f"v_add_f32 v{dst+4*e}, v{dst+4*e}, v{dst+4*e+2}")
        a(f"v_permlane32_swap_b32 v{dst}, v{dst+4}\nv_add_f32 v{dst}, v{dst}, v{dst+4}\nv_cvt_pk_bf16_f32 v{dst}, 0, v{dst}")
    RA_, RB_ = 8, 16
    n = len(sets)
    lt, ld = "L_pp", "L_ppd"
    guard((mk(sets[0], 0) + "\n" if touch else "") + "s_barrier")
    a("s_waitcnt vmcnt(0)")
    for r in sets[:-1]: guard(mk(r, 0))
    retry(lambda: gcheck([YBr + 4 * k for k in range(8)], T), mk(YBr, YB - YA))
    tree(RB_, YBr)
    a(f"v_mul_f32 v{RB_}, v{T+6}, v{RB_}\nv_cvt_pk_bf16_f32 v{RB_}, 0, v{RB_}\n{lt}:")
    for k in range(n):
        guard(mk(sets[(k + n - 1) % n], 0))
        a(f"s_waitcnt vmcnt({(n-1)*8})")
        gcheck([sets[k] + 4 * j for j in range(8)], T)
        a(f"s_cbranch_vccz L_pph{k}")
    spin_or("L_pph0")
    if ybo: a(f"s_sleep {ybo}")
    a(f"s_branch {lt}")
    for k in range(n - 1, -1, -1):
        a(f"L_pph{k}:")
        tree(RA_, sets[k])
        if k: a(f"s_branch {ld}")
    a(f"{ld}:")
    stamp(16)
    a(f"""
    v_mul_f32 v{RA_}, v{T+3}, v{RA_}
    v_cvt_pk_bf16_f32 v{RA_}, 0, v{RA_}
    v_add_f32 v{RA_}, v{RA_}, v{RB_}
    v_cvt_pk_bf16_f32 v{RA_}, v{RA_}, 0
    s_cbranch_execz L_fin
    buffer_store_short v{RA_}, v{T+4}, {SOUT}, 0 offen
    s_cmp_lg_u32 {sS}, 0
    s_cbranch_scc1 L_fin
    s_lshl_b32 {sT0}, {sB}, 7
    s_add_u32 {sT0}, {sT0}, {GEN}
    v_mov_b32 v{T}, {sT0}
    v_mov_b32 v{T+10}, {sTA}
    v_mov_b32 v{T+11}, {sTB}
    s_mov_b64 exec, 1
    buffer_store_dwordx2 v[{T+10}:{T+11}], v{T}, {SWS}, 0 offen
    s_mov_b64 exec, -1
L_fin:
    """, count=False)
    if dry: a("s_cbranch_execz L_dryret")
    if stamps:
        a("s_waitcnt vmcnt(0)")
        stamp(7)
        a(f"""
        s_waitcnt lgkmcnt(0)
        s_lshl_b32 s3, s2, 3
        s_add_u32 s3, s3, {sW}
        s_lshl_b32 s3, s3, 6
        s_add_u32 s3, s3, {128<<20}
        v_mov_b32 v{T}, s3
        s_mov_b64 exec, 1
        """)
        for k in range(4):
            for i in range(4): a(f"v_mov_b32 v{B+4*k+i}, s{STAMP0+4*k+i}")
            a(f"global_store_dwordx4 v{T}, v[{B+4*k}:{B+4*k+3}], s[26:27] offset:{16*k}", count=False)
    a("L_end:\ns_endpgm")
    pad = "\n.fill 4096, 4, 0xbf810000\n" if cpf else ""
    return f"""{HEADER}; @launch grid=(256,1,1) block=(576,1,1) lds={L_END}
.amdgcn_target "amdgcn-amd-amdhsa--gfx950"
.text
.globl {KLABEL}
.p2align 8
.type {KLABEL},@function
{KLABEL}:
{a.text()}{pad}
.section .rodata,"a"
.p2align 6
.amdhsa_kernel {KLABEL}
  .amdhsa_next_free_vgpr 168
  .amdhsa_next_free_sgpr 102
  .amdhsa_accum_offset 168
  .amdhsa_group_segment_fixed_size 0
  .amdhsa_kernarg_size 96
  .amdhsa_user_sgpr_count 2
  .amdhsa_user_sgpr_kernarg_segment_ptr 1
  .amdhsa_system_sgpr_workgroup_id_x 1
.end_amdhsa_kernel
"""

if __name__ == "__main__":
    ap = argparse.ArgumentParser()
    ap.add_argument("-o", default="k.s")
    ap.add_argument("--stamps", default="")
    for n, d in (("w", 32), ("ng", 10), ("ngw", 2), ("npoll", 2), ("fpos", 3), ("spin", 200000), ("dstep", 2), ("lsl", 1), ("bar0", 1), ("nburst", 4), ("warm", 1), ("bo", 0), ("ndir", 1), ("dpos", 4), ("dry", 0), ("touch", 1), ("ybo", 0), ("h1p", 1), ("rinv", 0), ("cpf", 2), ("nd0", 4), ("at1", 0), ("at2", 0)):
        ap.add_argument("--" + n, type=int, default=d)
    ap.add_argument("--pol", default="nt")
    ap.add_argument("--wpol", default="nt")
    ap.add_argument("--ypol", default="sc1")
    ap.add_argument("--fpol", default="sc1")
    ap.add_argument("--rpol", default="sc1")
    ap.add_argument("--wsched", default="")
    ap.add_argument("--nocpf", action="store_true")
    ap.add_argument("--skip", default="")
    x = ap.parse_args()
    open(x.o, "w").write(gen(x.w, x.ng, x.ngw, x.pol, x.wpol, [int(t) for t in x.stamps.split(',')] if x.stamps else None,
                             x.spin, (0 if x.nocpf else x.cpf), x.npoll, x.fpos, x.skip, x.dstep, x.lsl, x.bar0, x.nburst, x.warm, x.bo, x.ndir, x.dpos, x.dry, x.ypol, x.wsched, x.touch, x.ybo, x.h1p, x.fpol, x.rpol, x.rinv, x.nd0, x.at1, x.at2))
```

```python
import sys, math, struct, argparse
from asmlib import Asm
from common import NAME, KLABEL

def f32bits(x):
    return struct.unpack("<I", struct.pack("<f", x))[0]

HEADER = open("cdna_kernels/" + NAME + ".s.ref").read().split("; Override launch")[0]

SLOT = 8192
QA, QB, OP, ML = 0, 2048, 4096, 6144
YA, YB = 6656, 7168
BOFF = 256 * SLOT
GEN = 2 * BOFF
WS_BYTES = GEN + 256
L_ML, L_F, L_C1, L_C2, L_C3, L_QRDY, L_FRDY, L_G, L_REM, L_Q, L_H = 0, 64, 96, 100, 104, 108, 112, 116, 120, 128, 640
L_OP, L_YB, L_YA = 1024, 9728, 11776
OPS = 1056
L_QH = 1024
L_QG = 13312
L_MLG = 25568
L_DONE = 25600
L_LAND = 25856
RING = 32768
L_END = RING + 131072
SK, SV, SWQ, SW1, SWO, SW2, SX, SGW, SOUT, SWS = [f"s[{n}:{n+3}]" for n in range(28, 68, 4)]
sTA, sTB, sOWN = "s68", "s69", "s70"
sH, sB, sS, sW = "s72", "s73", "s74", "s75"
sT0, sT1 = "s76", "s77"
MB1, MB0 = "s[78:79]", "s[80:81]"
sOFF, sSPIN = "s82", "s83"
STAMP0 = 84
vL, vKV = "v1", "v2"
vA0, vA1, vA2, vA3, vA4 = "v3", "v4", "v5", "v6", "v7"
Q0, ACC, P0, F, COL, RA, RBv = 8, 12, 20, 24, 25, 26, 27
sLAND = "s71"
sTQ = "s29"
sMISS, sREM = "s30", "s31"
vD = 7
MOWN = "s[78:79]"
CSC = hex(f32bits(math.log2(math.e) / 16))

def gen(W=32, NG=14, NGW=3, pol="nt", wpol="nt", stamps=None, spin=200000, cpf=True, npoll=3, fpos=3, skip="", dstep=2, lsl=1, bar0=1, nburst=4, warm=1, bo=0, ndir=1, dpos=4, dry=0, ypol='sc1', wsched='', touch=1, ybo=0, h1p=1, fpol='sc1', rpol='sc1', rinv=0, nd0=0, at1=0, at2=0, dbg=0):
    a0 = Asm()
    class Filt:
        phase = "head"
        def __call__(self, txt, tag=None, count=True):
            out = []
            for l in txt.split("\n"):
                ls = l.strip()
                if self.phase == "head" and SWS in ls:
                    if "s" in skip and ls.startswith("buffer_store"): continue
                    if "g" in skip and ls.startswith("buffer_load"): continue
                    if "c" in skip and ls.startswith("buffer_store") and "v[8:11], v28" in ls: continue
                    if "p" in skip and ls.startswith("buffer_store") and ("v[8:11], v29" in ls or "v[12:15], v29" in ls): continue
                    if "m" in skip and ls.startswith("buffer_store") and "v[8:11], v30" in ls: continue
                    if "N" in skip and ls.startswith("buffer_store") and "sc1" not in ls: l = l + " nt"
                    if "0" in skip and ls.startswith("buffer_store") and "sc1" not in ls: l = l + " sc0"
                out.append(l)
            a0("\n".join(out), tag=tag, count=count)
        def __getattr__(self, k): return getattr(a0, k)
        def __setattr__(self, k, v):
            if k == "phase": object.__setattr__(self, k, v)
            else: setattr(a0, k, v)
    a = Filt()
    KR = 40
    NCH = 64 - ndir
    T = 28
    def stamp(i):
        if stamps and i in stamps:
            k = stamps.index(i)
            a(f"s_memrealtime s[{STAMP0+2*k}:{STAMP0+2*k+1}]")
    def srd(dst, src, size):
        n = int(dst[2:dst.index(":")])
        a(f"s_mov_b32 s{n}, s{src}\ns_mov_b32 s{n+1}, s{src+1}\ns_mov_b32 s{n+2}, {size}\ns_mov_b32 s{n+3}, 0x20000")
    SRDS = {SX: (4, 1792), SK: (6, 1 << 26), SV: (8, 1 << 26), SWQ: (10, 448 * 8192), SWO: (12, 4096 * 896), SW1: (16, 448 * 3584),
            SW2: (18, 1792 * 896), SGW: (20, 896), SOUT: (22, 1792), SWS: (26, WS_BYTES)}
    def srds(*names):
        for n in names: srd(n, *SRDS[n])
    def red8(acc):
        for k in range(4): a(f"v_permlane32_swap_b32 v{acc+k}, v{acc+k+4}")
        for k in range(4): a(f"v_add_f32 v{acc+k}, v{acc+k}, v{acc+k+4}")
        for k in range(2): a(f"v_permlane16_swap_b32 v{acc+k}, v{acc+k+2}")
        for k in range(2): a(f"v_add_f32 v{acc+k}, v{acc+k}, v{acc+k+2}")
        a(f"v_add_f32_dpp v{acc}, v{acc}, v{acc} row_ror:8 row_mask:0xf bank_mask:0x3")
        a(f"v_add_f32_dpp v{acc}, v{acc+1}, v{acc+1} row_ror:8 row_mask:0xf bank_mask:0xc")
    def gemv_step(acc, wreg, lo, hi, first, n=4):
        for i in range(n):
            a(f"v_dot2_f32_bf16 v{acc+2*i}, v{wreg+i}, v{lo}, {'0' if first else f'v{acc+2*i}'}")
            a(f"v_dot2_f32_bf16 v{acc+2*i+1}, v{wreg+i}, v{hi}, {'0' if first else f'v{acc+2*i+1}'}")
    def bc_step(acc, wreg, lo, hi, n):
        for i in range(4):
            a(f"v_dot2c_f32_bf16_dpp v{acc+2*i}, v{lo}, v{wreg+i} row_newbcast:{n} row_mask:0xf bank_mask:0xf")
            a(f"v_dot2c_f32_bf16_dpp v{acc+2*i+1}, v{hi}, v{wreg+i} row_newbcast:{n} row_mask:0xf bank_mask:0xf")
    def allred(op, v, t, bits=6):
        a(f"{op}_dpp v{v}, v{v}, v{v} quad_perm:[1,0,3,2] row_mask:0xf bank_mask:0xf")
        a(f"{op}_dpp v{v}, v{v}, v{v} quad_perm:[2,3,0,1] row_mask:0xf bank_mask:0xf")
        a(f"{op}_dpp v{v}, v{v}, v{v} row_half_mirror row_mask:0xf bank_mask:0xf")
        if bits > 3:
            a(f"{op}_dpp v{v}, v{v}, v{v} row_ror:8 row_mask:0xf bank_mask:0xf")
            a(f"v_mov_b32 v{t}, v{v}\nv_permlane16_swap_b32 v{v}, v{t}\n{op} v{v}, v{v}, v{t}")
            a(f"v_mov_b32 v{t}, v{v}\nv_permlane32_swap_b32 v{v}, v{t}\n{op} v{v}, v{v}, v{t}")
    def spin_or(ld):
        a(f"s_cmp_eq_u32 {sSPIN}, 0\ns_cbranch_scc1 {ld}\ns_sub_u32 {sSPIN}, {sSPIN}, 1")
    def retry(cond_code, reissue):
        lt, ld = a.newlabel("L_poll"), a.newlabel("L_pdone")
        a(f"{lt}:")
        cond_code()
        a(f"s_cbranch_vccz {ld}")
        spin_or(ld)
        a(reissue, count=False)
        a(f"s_waitcnt vmcnt(0)\ns_branch {lt}\n{ld}:")
    def sent_cond(regs, t):
        rs = list(regs)
        a(f"v_max3_u32 v{t}, v{rs[0]}, v{rs[1]}, v{rs[2]}"); rs = rs[3:]
        while len(rs) >= 2:
            a(f"v_max3_u32 v{t}, v{t}, v{rs[0]}, v{rs[1]}"); rs = rs[2:]
        if rs: a(f"v_max_u32 v{t}, v{t}, v{rs[0]}")
        a(f"v_cmp_eq_u32 vcc, -1, v{t}")
    def poll_sent(regs, reissue, t):
        retry(lambda: sent_cond(regs, t), reissue)
    def tag2_cond(g, t):
        a(f"v_xor_b32 v{t}, {sTA}, v{g+2}\nv_bitop3_b32 v{t}, v{t}, {sTB}, v{g+3} bitop3:0xf6\nv_cmp_ne_u32 vcc, 0, v{t}")
    def poll_pipe(nreg, sets, mk, nld, t, hit):
        n = len(sets)
        lt, ld = a.newlabel("L_pp"), a.newlabel("L_ppd")
        hits = [a.newlabel("L_pph") for _ in sets]
        for r in sets[:-1]:
            a(mk(r), count=False); a("s_nop 15\ns_nop 15")
        a(f"{lt}:")
        for k in range(n):
            a(mk(sets[(k + n - 1) % n]), count=False)
            a(f"s_waitcnt vmcnt({(n-1)*nld})")
            sent_cond(range(sets[k], sets[k] + nreg), t)
            a(f"s_cbranch_vccz {hits[k]}")
        spin_or(hits[0])
        a(f"s_branch {lt}")
        for k in range(n - 1, -1, -1):
            a(f"{hits[k]}:")
            hit(sets[k])
            if k: a(f"s_branch {ld}")
        a(f"{ld}:")
    def lds_ticket(addr, t):
        a(f"""
        v_mov_b32 v{t}, {addr}
        v_mov_b32 v{t+1}, 1
        s_waitcnt lgkmcnt(0)
        s_mov_b64 exec, 1
        ds_add_rtn_u32 v{t+1}, v{t}, v{t+1}
        s_mov_b64 exec, -1
        s_waitcnt lgkmcnt(0)
        v_readfirstlane_b32 {sT0}, v{t+1}
        """)
    def lds_wait(flag, extra, t, name):
        a(f"v_mov_b32 v{t}, {flag}\n{name}:\nds_read_b32 v{t+1}, v{t}\n{extra}\ns_waitcnt lgkmcnt(0)\nv_cmp_eq_u32 vcc, 1, v{t+1}\ns_cbranch_vccnz {name}d")
        spin_or(name + "d")
        a(f"s_sleep 1\ns_branch {name}\n{name}d:")

    def chunk_read(c, reg, fast=False):
        ok, sp = a.newlabel("L_ck"), a.newlabel("L_cs")
        a(f"""
        s_cmp_gt_u32 {sLAND}, {c}
        s_cbranch_scc1 {ok}
{sp}:
        ds_read_b32 v{T+11}, v{RA} offset:{L_LAND}
        s_waitcnt lgkmcnt(0)
        v_readfirstlane_b32 {sLAND}, v{T+11}
        s_cmp_gt_u32 {sLAND}, {c}
        s_cbranch_scc1 {ok}
        """)
        spin_or(ok)
        a(("" if fast else f"s_sleep {lsl}\n") + f"s_branch {sp}\n{ok}:")
        slot = c % 16
        a(f"ds_read_b128 v[{reg}:{reg+3}], v{vR0 if slot < 8 else vR1} offset:{(slot % 8) * 8192}")
    def done(c):
        a(f"v_mov_b32 v{T+10}, {c+1}\ns_waitcnt lgkmcnt(0)\ns_mov_b64 exec, 1\nds_write_b32 v{RBv}, v{T+10} offset:{L_DONE}\ns_mov_b64 exec, -1")
    def drain(c0, c1):
        for c in range(c0, c1):
            chunk_read(c, KR + 4 * c)
            if (c + 1) % dstep == 0 or c == c1 - 1: done(c)
    vR0, vR1 = 2, 0
    a(f"""
    s_load_dwordx4 s[36:39], s[0:1], 8
    v_readfirstlane_b32 {sW}, v0
    s_cmpk_ge_u32 s2, 256
    s_cbranch_scc1 L_end
    """)
    stamp(0)
    a(f"""
    s_lshr_b32 {sW}, {sW}, 6
    s_cbranch_scc0 L_loader
    """)
    if cpf:
        a(f"""
        s_getpc_b64 s[100:101]
        s_lshr_b32 s3, s2, 3
        s_lshl_b32 s3, s3, 9
        v_subrev_u32 v{T}, 64, v0
        v_cmp_gt_u32 vcc, 4, v{T}
        v_lshl_add_u32 v{T}, v{T}, 7, s3
        s_and_saveexec_b64 s[98:99], vcc
        s_cbranch_execz L_cons0
        global_load_dword v{F}, v{T}, s[100:101]
        """, count=False)
    DEC = f"""
    s_and_b32 {sH}, s2, 7
    s_lshl_b32 {sH}, {sH}, 1
    s_bfe_u32 {sT0}, s2, 0x10003
    s_add_u32 {sH}, {sH}, {sT0}
    s_bfe_u32 {sB}, s2, 0x10004
    s_lshr_b32 {sS}, s2, 5
    """
    a(f"""
    s_branch L_cons0
L_loader:
    {DEC}
    s_lshl_b32 {sT0}, {sB}, 4
    s_add_u32 {sT0}, {sT0}, {sH}
    s_lshl3_add_u32 {sT0}, {sT0}, {sS}
    s_lshl_b32 {sT0}, {sT0}, 18
    v_lshl_add_u32 v2, v0, 4, {sT0}
    s_lshl_b32 s30, 1, 26
    s_mov_b32 s31, 0x20000
    s_lshl_b32 m0, 1, 15
    s_mov_b32 s34, 0
    s_waitcnt lgkmcnt(0)
    s_mov_b64 s[28:29], s[36:37]
L_burst:
    """)
    assert RING == 1 << 15
    for p in range(4):
        a(f"buffer_load_dwordx4 v2, {SK}, s34 offen offset:{p*1024} {pol} lds", count=False)
    a(f"s_addk_i32 s34, 4096\ns_addk_i32 m0, 4096\ns_cmpk_lt_u32 s34, {nburst*8192}\ns_cbranch_scc1 L_burst")
    a(f"s_setprio 3\nv_mov_b32 {vL}, v0\ns_mov_b32 {sSPIN}, {spin}")
    stamp(199)
    a(f"""
    v_lshlrev_b32 v4, 2, {vL}
    v_mov_b32 v5, 0
    ds_write_b32 v4, v5 offset:{L_LAND}
    ds_write_b32 v4, v5 offset:{L_DONE}
    ds_write_b32 v4, v5 offset:{L_ML}
    v_and_b32 v6, 7, {vL}
    v_lshlrev_b32 v6, 2, v6
    s_mov_b32 s32, {nburst}                      ; chunk
    s_mov_b32 s33, 16
    s_waitcnt lgkmcnt(0)
    s_barrier
    s_branch L_ldok0
L_cons0:
    s_mov_b64 exec, -1
    s_load_dwordx16 s[4:19], s[0:1], 0
    s_load_dwordx8 s[20:27], s[0:1], 64
    {DEC}
    v_and_b32 {vL}, 63, v0
    s_mov_b32 {sSPIN}, {spin}
    s_sub_u32 {sW}, {sW}, 1
    s_mov_b32 {sLAND}, 0
    s_lshl_b32 {sT0}, {sW}, 10
    s_add_u32 {sT0}, {sT0}, {RING}
    v_lshl_add_u32 v{vR0}, {vL}, 4, {sT0}
    v_add_u32 v{vR1}, 0x10000, v{vR0}
    s_lshl_b32 {sT0}, {sW}, 2
    v_mov_b32 v{RBv}, {sT0}
    v_mov_b32 v{RA}, {sT0}
    {"s_barrier" if bar0 else ""}
    s_branch L_cons
    """)
    sched = [(int(t.split(":")[0]), int(t.split(":")[1])) for t in wsched.split(",")] if wsched else [(64, W)]
    sched[-1] = (NCH, sched[-1][1])
    for ph, (cend, Wp) in enumerate(sched):
        a(f"""
L_ld{ph}:
        s_cmp_lt_u32 s32, s33
        s_cbranch_scc1 L_ldok{ph}
L_ldfree{ph}:
        ds_read_b32 v7, v6 offset:{L_DONE}
        s_waitcnt lgkmcnt(0)
        v_min_u32_dpp v7, v7, v7 quad_perm:[1,0,3,2] row_mask:0xf bank_mask:0xf
        v_min_u32_dpp v7, v7, v7 quad_perm:[2,3,0,1] row_mask:0xf bank_mask:0xf
        v_min_u32_dpp v7, v7, v7 row_half_mirror row_mask:0xf bank_mask:0xf
        v_readfirstlane_b32 s33, v7
        s_add_u32 s33, s33, 16
        s_cmp_lt_u32 s32, s33
        s_cbranch_scc1 L_ldok{ph}
        """)
        spin_or(f"L_ldok{ph}")
        a(f"s_branch L_ldfree{ph}\nL_ldok{ph}:")
        for st in (stamps or []):
            if 200 <= st < 264:
                a(f"s_cmp_lg_u32 s32, {st-200}\ns_cbranch_scc1 L_lst{st}_{ph}"); stamp(st); a(f"L_lst{st}_{ph}:")
        pp = (Wp - 1) % 8; back = (Wp - 1 - pp) // 8 + 1
        a(f"""
        s_and_b32 s35, s32, 15
        s_lshl_b32 s35, s35, 13
        s_add_u32 s35, s35, {RING}
        s_mov_b32 m0, s35
        s_sub_u32 s40, s32, {back - 1}
        v_mov_b32 v5, s40
        """)
        for p in range(8):
            if p == 4: a("s_add_u32 s35, s35, 4096\ns_add_u32 s34, s34, 4096\ns_mov_b32 m0, s35")
            a(f"s_waitcnt vmcnt({Wp-1})")
            if p == pp: a(f"ds_write_b32 v4, v5 offset:{L_LAND}")
            else: a("s_nop 0")
            a(f"buffer_load_dwordx4 v2, {SK}, s34 offen offset:{(p%4)*1024} {pol} lds", count=False)
        a(f"""
        s_add_u32 s34, s34, 4096
        s_add_u32 s32, s32, 1
        s_cmp_lg_u32 s32, 32
        s_cbranch_scc1 L_ldnsw{ph}
        s_mov_b32 s28, s38
        s_mov_b32 s29, s39
        s_mov_b32 s34, 0
L_ldnsw{ph}:
        s_cmp_lt_u32 s32, {cend}
        s_cbranch_scc1 L_ld{ph}
        """)
    W = sched[-1][1]
    assert sched[0][1] <= nburst * 8 + 1
    stamp(13)
    a("s_load_dwordx8 s[20:27], s[0:1], 64\ns_waitcnt lgkmcnt(0)")
    a(f"s_lshl_b32 s3, {sB}, 7\ns_add_u32 s3, s3, {GEN}\ns_load_dwordx2 s[68:69], s[26:27], s3")
    srds(SWS, SOUT)
    for k in range((W + 7) // 8 - 1, -1, -1):
        a(f"v_mov_b32 v5, {NCH-k}\ns_waitcnt vmcnt({8*k})\nds_write_b32 v4, v5 offset:{L_LAND}")
    a("s_waitcnt lgkmcnt(0)")
    stamp(5)
    if stamps: a(f"s_mul_i32 {sW}, s2, 7\ns_sub_u32 {sW}, 2048, {sW}")
    a(f"s_add_u32 {sTA}, s68, 8\ns_add_u32 {sTB}, s69, 1\ns_branch L_lsvc")
    a(f"""
L_cons:
    s_waitcnt lgkmcnt(0)
    s_lshl_b32 s3, {sB}, 7
    s_add_u32 s3, s3, {GEN}
    s_load_dwordx2 s[68:69], s[26:27], s3
    s_cmp_eq_u32 {sW}, 7
    s_cbranch_scc1 L_svc
    """)
    VE = KR + 64
    WQr, W1r, XQ, XF, AQ, AF = VE, VE + 16, VE + 24, VE + 26, VE + 32, VE + 40
    srds(SWQ)
    a(f"""
    s_mul_i32 {sT0}, {sS}, 56
    s_lshl_b32 {sT1}, {sW}, 3
    s_add_u32 {sT0}, {sT0}, {sT1}
    v_lshrrev_b32 v{T}, 5, {vL}                  ; half
    v_add_u32 v{T+1}, {sT0}, v{T}
    v_lshlrev_b32 {vA2}, 13, v{T+1}
    v_and_b32 v{T+2}, 31, {vL}
    v_lshl_add_u32 {vA2}, v{T+2}, 4, {vA2}
    s_lshl_b32 {sT1}, {sH}, 9
    v_add_u32 {vA2}, {sT1}, {vA2}
    """)
    for t in range(4):
        if t: a(f"s_mov_b32 {sT1}, {t*2*8192}")
        if "1" not in skip:
            a(f"buffer_load_dwordx4 v[{WQr+4*t}:{WQr+4*t+3}], {vA2}, {SWQ}, {sT1 if t else 0} offen {wpol}", tag="w")
    srds(SX, SW1)
    a(f"""
    v_lshrrev_b32 v{T+3}, 4, {vL}                ; rho
    v_and_b32 v{T+4}, 15, {vL}                   ; n
    v_add_u32 v{T+5}, {sT0}, v{T+3}
    v_mul_u32_u24 {vA3}, 3584, v{T+5}
    v_lshl_add_u32 {vA3}, v{T+4}, 4, {vA3}
    s_lshl_b32 {sT1}, {sH}, 8
    v_add_u32 {vA3}, {sT1}, {vA3}                ; w1 address
    s_cmp_gt_u32 {sH}, 13
    s_cbranch_scc1 L_nof1
    s_mov_b32 {sT1}, {4*3584}
    """)
    if "1" not in skip:
        a(f"buffer_load_dwordx4 v[{W1r}:{W1r+3}], {vA3}, {SW1}, 0 offen {wpol}", count=False)
        a(f"buffer_load_dwordx4 v[{W1r+4}:{W1r+7}], {vA3}, {SW1}, {sT1} offen {wpol}", count=False)
    a(f"""
L_nof1:
    s_mul_i32 {sT1}, {sB}, 448
    s_add_u32 {sT1}, {sT1}, {sT0}
    v_and_b32 v{T+5}, 3, {vL}
    v_lshl_add_u32 v{T+5}, v{T+5}, 1, v{T}
    v_add_lshl_u32 {vA0}, v{T+5}, {sT1}, 1
    v_and_b32 v{T+5}, 1, {vL}
    v_lshl_add_u32 v{T+5}, v{T+5}, 2, v{T+3}
    v_add_lshl_u32 {vA1}, v{T+5}, {sT1}, 1
    """)
    a(f"buffer_load_ushort v{XQ}, {vA0}, {SX}, 0 offen", tag="w")
    a(f"buffer_load_ushort v{XF}, {vA1}, {SX}, 0 offen", tag="w")
    if not bar0: a("s_barrier")
    srds(SWS, SWO, SW2, SOUT, SGW, SV)
    for i in range(16): a(f"v_mov_b32 v{AQ+i}, 0")
    a(f"""
    s_mul_i32 {sT0}, {sW}, 1536
    v_lshlrev_b32 v{T+2}, 5, v{T+2}
    v_lshl_add_u32 v{T+2}, v{T}, 4, v{T+2}
    v_add_u32 v{T+2}, {sT0}, v{T+2}
    v_lshlrev_b32 v{T+4}, 5, v{T+4}
    v_lshl_add_u32 v{T+4}, v{T+3}, 3, v{T+4}     ; 32n + 8*rho
    v_add_u32 v{T+4}, {sT0}, v{T+4}
    """)
    stamp(10)
    drain(0, nd0)
    a.wait_vm("w")
    stamp(11)
    a(f"v_lshlrev_b32 v{XQ+1}, 16, v{XQ}\nv_lshlrev_b32 v{XF+1}, 16, v{XF}")
    for t in range(4): bc_step(AQ, WQr + 4 * t, XQ, XQ + 1, t)
    for t in range(2): bc_step(AF, W1r + 4 * t, XF, XF + 1, t)
    for k in range(4): a(f"v_permlane32_swap_b32 v{AQ+k}, v{AQ+k+4}")
    for k in range(4): a(f"v_permlane32_swap_b32 v{AF+k}, v{AF+k+4}")
    for k in range(4): a(f"v_add_f32 v{AQ+k}, v{AQ+k}, v{AQ+k+4}")
    for k in range(4): a(f"v_add_f32 v{AF+k}, v{AF+k}, v{AF+k+4}")
    a(f"ds_write_b128 v{T+2}, v[{AQ}:{AQ+3}] offset:{L_QH}")
    for k in range(2): a(f"v_permlane16_swap_b32 v{AF+k}, v{AF+k+2}")
    for k in range(2): a(f"v_add_f32 v{AF+k}, v{AF+k}, v{AF+k+2}")
    a(f"ds_write_b64 v{T+4}, v[{AF}:{AF+1}] offset:{L_QH+1024}")
    lds_ticket(L_C1, T + 6)
    TAGS = f"""
    s_add_u32 {sTA}, s68, 8
    s_add_u32 {sTB}, s69, 1
    s_getreg_b32 {sTQ}, hwreg(HW_REG_XCC_ID, 0, 3)
    s_andn2_b32 s3, {sTA}, 7
    s_or_b32 {sTQ}, {sTQ}, s3
    """
    a(TAGS)
    PBs = [8, 12]
    PR = VE
    a(f"s_cmp_lg_u32 {sT0}, 6\ns_cbranch_scc1 L_k2\nv_lshlrev_b32 v{T}, 2, {vL}")
    for u in range(2):
        for th in range(3):
            for w in range(7):
                a(f"ds_read_b32 v{PR+24*u+8*th+w}, v{T} offset:{L_QH+1536*w+512*th+256*u}")
    a(f"s_lshl_b32 {sT0}, s2, 13\nv_lshl_add_u32 v{T+1}, {vL}, 4, {sT0}")
    for u in range(2): a(f"v_mov_b32 v{PBs[u]+3}, {sTQ}")
    a("s_waitcnt lgkmcnt(0)")
    for u in range(2):
        for th in range(3):
            b = PR + 24 * u + 8 * th
            a(f"v_add_f32 v{b}, v{b}, v{b+1}\nv_add_f32 v{b+2}, v{b+2}, v{b+3}\nv_add_f32 v{b+4}, v{b+4}, v{b+5}")
        for th in range(3):
            b = PR + 24 * u + 8 * th
            a(f"v_add_f32 v{b}, v{b}, v{b+2}\nv_add_f32 v{b+4}, v{b+4}, v{b+6}")
        for th in range(3):
            b = PR + 24 * u + 8 * th
            a(f"v_add_f32 v{PBs[u]+th}, v{b}, v{b+4}")
        a(f"buffer_store_dwordx4 v[{PBs[u]}:{PBs[u]+3}], v{T+1}, {SWS}, 0 offen offset:{QA+1024*u}", count=False)
    stamp(1)
    a("s_branch L_k2")
    a("L_svc:")
    a.vm = []
    GX = VE
    srds(SWS, SX, SGW)
    a(f"""
    s_mul_i32 s3, {sB}, 896
    v_lshlrev_b32 v{T+7}, 4, {vL}
    v_add_u32 v{T+8}, s3, v{T+7}
    v_cmp_gt_u32 vcc, 56, {vL}
    v_mov_b32 v{T+6}, 0x10000
    v_cndmask_b32 v{T+8}, v{T+6}, v{T+8}, vcc
    """)
    a(f"buffer_load_dwordx4 v[{GX}:{GX+3}], v{T+8}, {SX}, 0 offen", tag="w")
    a(f"buffer_load_dwordx4 v[{GX+4}:{GX+7}], v{T+7}, {SGW}, 0 offen", tag="w")
    a(f"""
    s_waitcnt lgkmcnt(0)
    """)
    if not bar0: a("s_barrier")
    a(TAGS)
    srds(SWO, SW2, SOUT, SWQ, SW1, SV)
    drain(0, nd0)
    a(f"""
    s_waitcnt vmcnt(0)
    """, count=False)
    G = T
    a(f"v_mov_b32 v{G}, 0")
    for i in range(4):
        x, g = GX + i, GX + 4 + i
        a(f"""
        v_lshlrev_b32 v{G+1}, 16, v{x}
        v_lshlrev_b32 v{G+2}, 16, v{g}
        v_and_b32 v{G+3}, 0xffff0000, v{x}
        v_and_b32 v{G+4}, 0xffff0000, v{g}
        v_mul_f32 v{G+1}, v{G+1}, v{G+2}
        v_mul_f32 v{G+3}, v{G+3}, v{G+4}
        v_cvt_pk_bf16_f32 v{G+1}, v{G+1}, v{G+3}
        v_lshlrev_b32 v{G+2}, 16, v{G+1}
        v_and_b32 v{G+3}, 0xffff0000, v{G+1}
        v_add_f32 v{G}, v{G}, v{G+2}
        v_add_f32 v{G}, v{G}, v{G+3}
        """)
    allred("v_add_f32", G, G + 1)
    a(f"""
    v_cvt_pk_bf16_f32 v{G}, 0, v{G}
    v_mul_f32 v{G}, {hex(f32bits(-math.log2(math.e)))}, v{G}
    v_exp_f32 v{G}, v{G}
    v_add_f32 v{G}, 1.0, v{G}
    v_rcp_f32 v{G}, v{G}
    v_cvt_pk_bf16_f32 v{G}, 0, v{G}
    v_mov_b32 v{G+1}, {L_G}
    ds_write_b32 v{G+1}, v{G}
L_k2:
    """)
    a.vm = []
    ADDRS = f"""
    s_mov_b32 s78, 0xcccccccc
    s_mov_b32 s79, 0xcccccccc
    s_mov_b32 s80, 0xaaaaaaaa
    s_mov_b32 s81, 0xaaaaaaaa
    s_lshl_b32 {sOWN}, s2, 13
    v_and_b32 v{T+1}, 7, {vL}
    v_lshrrev_b32 v{T}, 3, {vL}
    v_lshlrev_b32 v{COL}, 5, v{T+1}
    v_lshrrev_b32 v{T+2}, 5, {vL}
    v_lshl_add_u32 v{COL}, v{T+2}, 4, v{COL}
    v_bfe_u32 v{T+2}, {vL}, 4, 1
    v_lshl_add_u32 v{COL}, v{T+2}, 3, v{COL}
    v_bfe_u32 v{T+2}, {vL}, 3, 1
    v_lshl_add_u32 v{COL}, v{T+2}, 2, v{COL}
    s_lshl_b32 {sT1}, {sW}, 8
    v_add_u32 v{COL}, {sT1}, v{COL}
    s_and_b32 {sT0}, s2, 31
    s_lshl_b32 {sT0}, {sT0}, 13
    s_add_u32 {sT0}, {sT0}, {OP}
    v_lshlrev_b32 {vA1}, 18, v{T+1}
    v_add_u32 {vA1}, {sT0}, {vA1}
    v_lshl_add_u32 {vA2}, v{T}, 4, {vA1}
    s_lshl_b32 {sT1}, {sW}, 7
    v_add_u32 {vA2}, {sT1}, {vA2}
    s_lshl_b32 {sT1}, {sS}, 7
    v_lshl_add_u32 v{T+1}, v{T+1}, 4, {sT1}
    s_lshl_b32 {sT0}, {sH}, 8
    s_lshl_b32 {sT1}, {sW}, 5
    s_add_u32 {sT0}, {sT0}, {sT1}
    v_lshl_add_u32 v{T+2}, v{T}, 2, {sT0}
    v_mul_u32_u24 v{T+2}, 896, v{T+2}
    v_add_u32 {vA3}, v{T+2}, v{T+1}
    s_lshr_b32 {sT0}, {sT0}, 1
    v_lshl_add_u32 v{T+2}, v{T}, 1, {sT0}
    v_mul_u32_u24 v{T+2}, 896, v{T+2}
    v_add_u32 {vA4}, v{T+2}, v{T+1}              ; w2 rows 128h+16w+2r+j
    v_and_b32 v{T}, 31, {vL}
    v_lshlrev_b32 {vA0}, 4, v{T}
    s_and_b32 {sT0}, s2, 31
    s_lshl_b32 {sT0}, {sT0}, 13
    s_lshl_b32 {sT1}, {sW}, 18
    s_add_u32 {sT0}, {sT0}, {sT1}
    v_lshl_add_u32 v8, {vL}, 4, {sT0}
    v_lshl_add_u32 v12, {vL}, 4, {sOWN}
    s_mul_i32 {sT1}, {sW}, 1536
    v_lshl_add_u32 v9, {vL}, 2, {sT1}
    """
    a(ADDRS)
    drain(nd0, NG)
    GB = KR + 96
    gl = "\n".join(f"buffer_load_dwordx4 v[{GB+4*u}:{GB+4*u+3}], v8, {SWS}, 0 offen offset:{QA+1024*u} sc1" for u in range(2))
    glb = gl.replace(f"offset:{QA} ", f"offset:{QB} ").replace(f"offset:{QA+1024} ", f"offset:{QB+1024} ")
    def wt_copy(must):
        lt, ld = a.newlabel("L_wt"), a.newlabel("L_wtd")
        a(f"""
{lt}:
        buffer_load_dwordx4 v[{GB+8}:{GB+11}], v12, {SWS}, 0 offen offset:{QA} sc1
        buffer_load_dwordx4 v[{GB+12}:{GB+15}], v12, {SWS}, 0 offen offset:{QA+1024} sc1
        s_waitcnt vmcnt(0)
        v_xor_b32 v10, {sTQ}, v{GB+11}
        v_bitop3_b32 v10, v10, {sTQ}, v{GB+15} bitop3:0xf6
        v_cmp_ne_u32 vcc, 0, v10
        s_cbranch_vccz {ld}s
        """, count=False)
        if must:
            spin_or(ld); a(f"s_branch {lt}")
        else:
            a(f"s_branch {ld}")
        a(f"""
{ld}s:
        buffer_store_dwordx4 v[{GB+8}:{GB+11}], v12, {SWS}, 0 offen offset:{QB} sc1
        buffer_store_dwordx4 v[{GB+12}:{GB+15}], v12, {SWS}, 0 offen offset:{QB+1024} sc1
{ld}:
        """, count=False)
    a(gl, count=False)
    drain(NG, NG + NGW)
    assert NG + NGW <= 24
    a("s_waitcnt vmcnt(0)")
    if "g" in skip or "r" in skip: a("s_branch L_gd")
    a(f"""
    s_mov_b32 {sMISS}, 0
L_g:
    v_xor_b32 v10, {sTQ}, v{GB+3}
    v_bitop3_b32 v10, v10, {sTQ}, v{GB+7} bitop3:0xf6
    v_cmp_ne_u32 vcc, 0, v10
    s_cbranch_vccz L_gd
    v_cmp_lt_u32 vcc, 7, v10
    s_cbranch_vccz L_grem
    """)
    spin_or("L_gd")
    a(f"s_add_u32 {sMISS}, {sMISS}, 1\ns_and_b32 s3, {sMISS}, 15\ns_cbranch_scc0 L_gfb\n{gl}\ns_waitcnt vmcnt(0)\ns_branch L_g\nL_gfb:", count=False)
    wt_copy(False)
    a(f"{glb}\ns_waitcnt vmcnt(0)\ns_branch L_g\nL_grem:", count=False)
    a(f"v_mov_b32 v10, {L_REM}\nv_mov_b32 v11, 1\nds_write_b32 v10, v11")
    wt_copy(True)
    a("L_gd:")
    stamp(12)
    for u in range(2):
        for th in range(3):
            a(f"ds_write_b32 v9, v{GB+4*u+th} offset:{L_QG+512*th+256*u}")
    lds_ticket(L_C3, 10)
    a(f"s_cmp_lg_u32 {sT0}, 7\ns_cbranch_scc1 L_noq\nv_lshlrev_b32 v9, 3, {vL}")
    a(f"v_lshlrev_b32 v8, 2, {vL}\nv_mov_b32 v11, 1\nv_mov_b32 v12, {L_QRDY}")
    def qreads(th):
        for w in range(8):
            a(f"ds_read_b64 v[{GB+16*(th%2)+2*w}:{GB+16*(th%2)+2*w+1}], v9 offset:{L_QG+1536*w+512*th}")
    qreads(0); qreads(1)
    for th in range(3):
        b = GB + 16 * (th % 2)
        a("s_waitcnt lgkmcnt(0)")
        for st in (1, 2, 4):
            for w in range(0, 8, 2 * st):
                for e in range(2): a(f"v_add_f32 v{b+2*w+e}, v{b+2*w+e}, v{b+2*(w+st)+e}")
        if th == 2: a(f"v_maximum3_f32 v{b}, v{b}, 0, 0\nv_maximum3_f32 v{b+1}, v{b+1}, 0, 0")
        a(f"v_cvt_pk_bf16_f32 v{13+th}, v{b}, v{b+1}\nds_write_b32 v8, v{13+th} offset:{L_Q+256*th}")
        if th == 0: qreads(2)
    a("s_waitcnt lgkmcnt(0)\nds_write_b32 v12, v11")
    stamp(17)
    a(f"""
L_noq:
    s_cmp_lg_u32 {sW}, 0
    s_cbranch_scc1 L_noclr
    s_add_u32 {sT0}, {sOWN}, {OP}
    v_lshl_add_u32 v{T}, {vL}, 4, {sT0}
    v_mov_b32 v8, -1
    v_mov_b32 v9, -1
    v_mov_b32 v10, -1
    v_mov_b32 v11, -1
    buffer_store_dwordx4 v[8:11], v{T}, {SWS}, 0 offen
L_noclr:
    """, count=False)
    drain(NG + NGW, 32)
    a("s_waitcnt vmcnt(0)")
    stamp(2)
    lds_wait(L_QRDY, f"ds_read_b128 v[{Q0}:{Q0+3}], {vA0} offset:{L_Q}\nds_read_b32 v{T+2}, v{T} offset:{L_REM-L_QRDY}", T, "L_rdy")
    a(f"v_readfirstlane_b32 {sREM}, v{T+2}")
    stamp(3)
    def R(j): return KR + 4 * j
    for g0 in range(0, 32, 8):
        for i in range(4):
            for j in range(g0, g0 + 8):
                a(f"v_dot2_f32_bf16 v{R(j)}, v{R(j)+i}, v{Q0+i}, {'0' if i == 0 else f'v{R(j)}'}")
    for j in range(0, 32, 2): a(f"v_permlane16_swap_b32 v{R(j)}, v{R(j+1)}")
    for j in range(0, 32, 2): a(f"v_add_f32 v{R(j)}, v{R(j)}, v{R(j+1)}")
    for st, ctl, m0, m1 in ((2, "row_ror:8", 3, 12), (4, "row_half_mirror", 5, 10)):
        for j in range(0, 32, 2 * st):
            a(f"v_add_f32_dpp v{R(j)}, v{R(j)}, v{R(j)} {ctl} row_mask:0xf bank_mask:{m0}")
        for j in range(0, 32, 2 * st):
            a(f"v_add_f32_dpp v{R(j)}, v{R(j+st)}, v{R(j+st)} {ctl} row_mask:0xf bank_mask:{m1}")
    for st, qp, m in ((8, "[2,3,0,1]", MB1), (16, "[1,0,3,2]", MB0)):
        for j in range(0, 32, st):
            a(f"v_add_f32_dpp v{R(j)}, v{R(j)}, v{R(j)} quad_perm:{qp} row_mask:0xf bank_mask:0xf")
        for j in range(0, 32, 2 * st):
            a(f"v_cndmask_b32 v{R(j)}, v{R(j)}, v{R(j+st)}, {m}")
    S = T + 8
    a(f"v_cvt_pk_bf16_f32 v{S}, 0, v{R(0)}\nv_mov_b32 v{T}, v{S}")
    allred("v_max_f32", T, T + 1)
    a(f"""
    v_sub_f32 v{S}, v{S}, v{T}
    v_mul_f32 v{S}, {CSC}, v{S}
    v_exp_f32 v{S}, v{S}
    v_mov_b32 v{T+1}, v{S}
    """)
    allred("v_add_f32", T + 1, T + 2)
    a(f"""
    s_lshl_b32 {sT0}, {sW}, 3
    v_mov_b32 v{T+2}, {sT0}
    ds_write_b64 v{T+2}, v[{T}:{T+1}] offset:{L_ML}
    v_cvt_pk_bf16_f32 v{P0}, v{S}, 0
    v_cvt_pk_bf16_f32 v{P0+1}, 0, v{S}
    v_mov_b32 v{P0+2}, v{P0}
    v_mov_b32 v{P0+3}, v{P0+1}
    v_permlane16_swap_b32 v{P0}, v{P0+2}
    v_permlane16_swap_b32 v{P0+1}, v{P0+3}
    """)
    lds_ticket(L_C2, T + 2)
    M4 = Q0
    a(f"""
    s_cmp_lg_u32 {sT0}, 7
    s_cbranch_scc1 L_noml
    v_and_b32 v{T+2}, 7, {vL}
    v_lshlrev_b32 v{T+3}, 3, v{T+2}
    ds_read_b64 v[{T+4}:{T+5}], v{T+3} offset:{L_ML}
    v_lshlrev_b32 v{T+3}, 2, v{T+2}
    v_mov_b32 v{T+2}, {sOWN}
    s_waitcnt lgkmcnt(0)
    v_mov_b32 v{M4}, v{T+4}
    """)
    allred("v_max_f32", M4, T + 1, bits=3)
    a(f"""
    v_sub_f32 v{T+4}, v{T+4}, v{M4}
    v_mul_f32 v{T+4}, {CSC}, v{T+4}
    v_exp_f32 v{T+4}, v{T+4}
    v_mul_f32 v{M4+1}, v{T+4}, v{T+5}
    ds_write_b32 v{T+3}, v{T+4} offset:{L_F}
    v_mov_b32 v{T+3}, {L_FRDY}
    v_mov_b32 v{T+7}, 1
    s_waitcnt lgkmcnt(0)
    ds_write_b32 v{T+3}, v{T+7}
    """)
    allred("v_add_f32", M4 + 1, T + 6, bits=3)
    a(f"""
    v_mov_b32 v{M4+2}, {sTA}
    v_mov_b32 v{M4+3}, {sTB}
    s_mov_b64 exec, 1
    v_add_u32 v{T+2}, {ML}, v{T+2}
    buffer_store_dwordx4 v[{M4}:{M4+3}], v{T+2}, {SWS}, 0 offen
    v_mov_b32 v{T+3}, {L_MLG}
    ds_write_b128 v{T+3}, v[{M4}:{M4+3}]
    s_mov_b64 exec, -1
    s_nop 1
L_noml:
    """, count=False)
    stamp(4)
    NVT = 4
    VL = KR + 4
    WOr = VL + 4 * NVT; W2r = WOr + 16; MLr = W2r + 8; EV = MLr + 4
    for i in range(8): a(f"v_mov_b32 v{ACC+i}, 0")
    def vreg(j): return VL + 4 * (j % NVT)
    def pv(j, reg=None):
        pr = P0 + 2 * (j & 1)
        n = ((j >> 1) & 1) << 3 | ((j >> 2) & 1) << 2 | ((j >> 3) & 1) << 1 | ((j >> 4) & 1)
        bc_step(ACC, vreg(j) if reg is None else reg, pr, pr + 1, n)
    mlload = f"buffer_load_dwordx4 v[{MLr}:{MLr+3}], {vA1}, {SWS}, 0 offen offset:{ML-OP} sc1"
    ACB = EV + 4
    FW = T + 7
    def w2part():
        a(f"""
        v_mov_b32 v{ACB}, 0
        s_cmp_eq_u32 {sS}, 7
        s_cbranch_scc1 L_now2b
        s_cmp_gt_u32 {sH}, 13
        s_cbranch_scc1 L_now2c
        v_lshrrev_b32 v{T}, 3, {vL}
        s_lshl_b32 {sT0}, {sW}, 5
        v_lshl_add_u32 v{T}, v{T}, 2, {sT0}
        ds_read_b32 v{T+4}, v{T} offset:{L_H}
        s_waitcnt lgkmcnt(0)
        v_and_b32 v{T}, 0xffff, v{T+4}
        v_lshlrev_b32 v{T+1}, 16, v{T+4}
        v_lshrrev_b32 v{T+2}, 16, v{T+4}
        v_and_b32 v{T+3}, 0xffff0000, v{T+4}
        """)
        gemv_step(ACB, W2r, T, T + 1, True)
        gemv_step(ACB, W2r + 4, T + 2, T + 3, False)
        red8(ACB)
        a(f"L_now2c:\nds_write_b32 v{COL}, v{ACB} offset:{L_YB}\nL_now2b:")
        a(f"""
        v_and_b32 v{T+4}, 31, {vL}
        v_lshlrev_b32 v{T+4}, 5, v{T+4}
        v_lshrrev_b32 v{T+5}, 5, {vL}
        v_lshl_add_u32 v{T+4}, v{T+5}, 4, v{T+4}
        s_mul_i32 {sT0}, {sW}, {OPS}
        v_add_u32 v{T+4}, {sT0}, v{T+4}
        s_lshl_b32 {sT0}, {sW}, 10
        s_lshl_b32 {sT1}, {sB}, 25
        s_add_u32 {sT0}, {sT0}, {sT1}
        s_lshl_b32 {sT1}, {sH}, 21
        s_add_u32 {sT0}, {sT0}, {sT1}
        s_lshl_b32 {sT1}, {sS}, 18
        s_add_u32 {sT0}, {sT0}, {sT1}
        v_lshl_add_u32 v{vD}, {vL}, 4, {sT0}
        v_and_b32 v{T+9}, 7, {vL}
        v_lshrrev_b32 v{T+8}, 3, {vL}
        v_lshlrev_b32 v{T+8}, 4, v{T+8}
        v_mul_u32_u24 v{T+9}, {OPS}, v{T+9}
        v_add_u32 v{T+8}, v{T+9}, v{T+8}
        s_lshl_b32 {sT0}, {sW}, 7
        v_add_u32 v{T+8}, {sT0}, v{T+8}
        s_lshl_b32 s78, 0x01010101, {sS}
        s_mov_b32 s79, s78
        """)
    def mlcalc(remote):
        retry(lambda: tag2_cond(MLr, T), mlload.replace(", 0 offen", ", s4 offen") if remote else mlload)
        a(f"v_mov_b32 v{T}, v{MLr}")
        allred("v_max_f32", T, T + 1, bits=3)
        a(f"""
        v_sub_f32 v{T}, v{MLr}, v{T}
        v_mul_f32 v{T}, {CSC}, v{T}
        v_exp_f32 v{T}, v{T}
        v_mul_f32 v{T+1}, v{T}, v{MLr+1}
        """)
        allred("v_add_f32", T + 1, T + 2, bits=3)
        a(f"v_rcp_f32 v{T+1}, v{T+1}\nv_mul_f32 v{F}, v{T}, v{T+1}")
    wl = [("o", j) for j in range(4)] + [("2", j) for j in range(2)]
    def wload(kind, j):
        lb = a.newlabel("L_nw")
        a(f"s_cmp_eq_u32 {sS}, 7\ns_cbranch_scc1 {lb}")
        if kind == "2":
            a(f"s_cmp_gt_u32 {sH}, 13\ns_cbranch_scc1 {lb}")
            a(f"buffer_load_dwordx4 v[{W2r+4*j}:{W2r+4*j+3}], {vA4}, {SW2}, 0 offen offset:{896*j} {wpol}", count=False)
        else:
            a(f"buffer_load_dwordx4 v[{WOr+4*j}:{WOr+4*j+3}], {vA3}, {SWO}, 0 offen offset:{896*j} {wpol}", count=False)
        a(f"{lb}:")
    VD = ACB + 8
    chunk_read(32, vreg(0))
    NR = 32 - ndir
    for j in range(NR):
        if wl and "2" not in skip: wload(*wl.pop(0))
        if j == 12:
            a("s_waitcnt vmcnt(0)"); w2part()
        if j == 16: a(mlload, count=False)
        if j == 20:
            lds_wait(L_FRDY, f"ds_read_b32 v{FW}, v{RA} offset:{L_F}", T, "L_frdy")
            a(f"s_waitcnt vmcnt(0)\ns_cmp_lg_u32 {sREM}, 0\ns_cbranch_scc1 L_nomlc")
            if "g" not in skip and "r" not in skip: mlcalc(False)
            a("L_nomlc:")
            if dry: a("s_mov_b64 exec, 0\ns_branch L_tail\nL_dryret:\ns_mov_b64 exec, -1")
        if j == NR - dpos:
            for k in range(ndir):
                a(f"s_mov_b32 s3, {(NR+k)*8192}\nbuffer_load_dwordx4 v[{VD+4*k}:{VD+4*k+3}], v{vD}, {SV}, s3 offen {pol}", count=False)
        if j < 48 - 32 and j % dstep == dstep - 1: done(32 + j)
        else: a("s_waitcnt lgkmcnt(0)")
        if j < 24 and j + 1 < NR: chunk_read(32 + j + 1, vreg(j + 1))
        pv(j); stamp(60 + j)
        if 24 <= j < NR - 1: chunk_read(32 + j + 1, vreg(j + 1), fast=(j >= NR - 3))
    for k in range(ndir):
        a(f"s_waitcnt vmcnt({ndir-1-k})")
        pv(NR + k, VD + 4 * k)
    stamp(5)
    a.phase = "tail"
    a("L_tail:")
    def guard(txt):
        if not dry: a(txt, count=False); return
        lb = a.newlabel("L_gd")
        a(f"s_cbranch_execz {lb}\n{txt}\n{lb}:", count=False)
    for k in range(4): a(f"v_permlane32_swap_b32 v{ACC+k}, v{ACC+k+4}")
    for k in range(4): a(f"v_add_f32 v{ACC+k}, v{ACC+k}, v{ACC+k+4}")
    for k in range(4): a(f"v_mul_f32 v{ACC+k}, v{FW}, v{ACC+k}")
    B = KR + 64
    def gcheck(grans, t):
        for k, g in enumerate(grans):
            if k == 0: a(f"v_xor_b32 v{t}, {sTA}, v{g+1}\nv_xor_b32 v{t+1}, {sTB}, v{g+3}")
            else: a(f"v_bitop3_b32 v{t}, v{t}, {sTA}, v{g+1} bitop3:0xf6\nv_bitop3_b32 v{t+1}, v{t+1}, {sTB}, v{g+3} bitop3:0xf6")
        a(f"v_or_b32 v{t}, v{t}, v{t+1}\nv_cmp_ne_u32 vcc, 0, v{t}")
    def sum_pairs(lds, stride, n):
        for w in range(n): a(f"ds_read_b64 v[{B+2*w}:{B+2*w+1}], v{T+8} offset:{lds+stride*w}")
        a("s_waitcnt lgkmcnt(0)")
        for st in (1, 2):
            for w in range(0, 8, 2 * st):
                a(f"v_add_f32 v{B+2*w}, v{B+2*w}, v{B+2*(w+st)}\nv_add_f32 v{B+2*w+1}, v{B+2*w+1}, v{B+2*(w+st)+1}")
        a(f"v_add_f32 v{PG}, v{B}, v{B+8}\nv_add_f32 v{PG+2}, v{B+1}, v{B+9}")
    PG = B + 16
    O = B + 24
    a(f"""
    ds_write_b128 v{T+4}, v[{ACC}:{ACC+3}] offset:{L_OP}
    s_waitcnt lgkmcnt(0)
    """)
    guard("s_barrier")
    stamp(14)
    opl = f"buffer_load_dwordx4 v[{O}:{O+3}], {vA2}, {SWS}, 0 offen sc1"
    a(f"s_cmp_lg_u32 {sREM}, 0\ns_cbranch_scc1 L_remote\nds_read_b128 v[{B}:{B+3}], v{T+8} offset:{L_OP}")
    a(f"s_cmp_eq_u32 {sS}, 7\ns_cbranch_scc1 L_nopl")
    guard(opl)
    a("L_nopl:\ns_waitcnt lgkmcnt(0)")
    for qp in ("quad_perm:[1,0,3,2]", "quad_perm:[2,3,0,1]", "row_half_mirror"):
        for i in range(4): a(f"v_add_f32_dpp v{B+i}, v{B+i}, v{B+i} {qp} row_mask:0xf bank_mask:0xf")
    for i in range(4): a(f"v_min_u32 v{B+i}, -2, v{B+i}")
    if at1:
        guard(f"s_mov_b64 exec, {MOWN}\nbuffer_atomic_swap_x2 v[{B}:{B+1}], {vA2}, {SWS}, 0 offen\nbuffer_atomic_swap_x2 v[{B+2}:{B+3}], {vA2}, {SWS}, 0 offen offset:8\ns_mov_b64 exec, -1")
    else:
        guard(f"s_mov_b64 exec, {MOWN}\nbuffer_store_dwordx4 v[{B}:{B+3}], {vA2}, {SWS}, 0 offen\ns_mov_b64 exec, -1")
    stamp(8)
    a(f"s_cmp_eq_u32 {sS}, 7\ns_cbranch_scc1 L_fin\ns_waitcnt vmcnt({2 if at1 else 1})")
    own = "\n".join(f"v_cndmask_b32 v{O+i}, v{O+i}, v{B+i}, {MOWN}" for i in range(4))
    stamp(9)
    def h1mul(r):
        a(f"v_mul_f32 v{O+6}, v{F}, v{r+3}\nv_mul_f32 v{O+4}, v{F}, v{r+2}\nv_mul_f32 v{O+2}, v{F}, v{r+1}\nv_mul_f32 v{O}, v{F}, v{r}")
    if h1p == 1:
        def c1():
            a(own); sent_cond([O, O + 1, O + 2, O + 3], T)
        retry(c1, (f"s_sleep {bo}\n" if bo else "") + opl)
        h1mul(O)
    else:
        sent_cond([O, O + 1, O + 2, O + 3], T)
        a("s_cbranch_vccz L_h1a")
        poll_pipe(4, [O + 8 + 4 * k for k in range(h1p)], lambda r: opl.replace(f"v[{O}:{O+3}]", f"v[{r}:{r+3}]"), 1, T, h1mul)
        a("s_branch L_hop1d\nL_h1a:")
        h1mul(O)
    a("L_hop1d:")
    stamp(6)
    for qp in ("quad_perm:[1,0,3,2]", "quad_perm:[2,3,0,1]", "row_half_mirror"):
        for i in range(4): a(f"v_add_f32_dpp v{O+2*i}, v{O+2*i}, v{O+2*i} {qp} row_mask:0xf bank_mask:0xf")
    for i in range(4): a(f"v_cvt_pk_bf16_f32 v{O+2*i+1}, 0, v{O+2*i}")
    for i in range(4): a(f"v_cvt_pk_bf16_f32 v{O+2*i}, v{O+2*i}, 0")
    for j in range(4): gemv_step(ACC, WOr + 4 * j, O + 2 * j, O + 2 * j + 1, j == 0)
    red8(ACC)
    a(f"""
    ds_write_b32 v{COL}, v{ACC} offset:{L_YA}
    v_and_b32 v{T+8}, 31, {vL}
    v_lshlrev_b32 v{T+8}, 3, v{T+8}
    s_add_u32 {sT1}, {sOWN}, {YA}
    v_lshl_add_u32 v{T+9}, v{T+8}, 1, {sT1}
    v_mov_b32 v{PG+1}, {sTA}
    v_mov_b32 v{PG+3}, {sTB}
    s_waitcnt lgkmcnt(0)
    """)
    guard("s_barrier")
    stamp(15)
    if dry: a(f"s_cbranch_execnz L_nd7\ns_cmp_eq_u32 {sW}, 7\ns_cbranch_scc1 L_lsvc\nL_nd7:")
    a(f"s_cmp_lg_u32 {sW}, 0\ns_cbranch_scc1 L_fin")
    sum_pairs(L_YA, 256, 8)
    if at2:
        guard(f"s_mov_b32 exec_hi, 0\nbuffer_atomic_swap_x2 v[{PG}:{PG+1}], v{T+9}, {SWS}, 0 offen sc1\nbuffer_atomic_swap_x2 v[{PG+2}:{PG+3}], v{T+9}, {SWS}, 0 offen offset:8 sc1\ns_mov_b64 exec, -1")
    else:
        guard(f"buffer_store_dwordx4 v[{PG}:{PG+3}], v{T+9}, {SWS}, 0 offen {ypol}")
    stamp(19)
    a("s_branch L_fin")
    a(f"""
L_remote:
    s_cbranch_execz L_fin
    s_mov_b32 s4, {BOFF}
    v_mov_b32 v{PG+1}, {sTA}
    v_mov_b32 v{PG+3}, {sTB}
    s_cmp_gt_u32 {sW}, 2
    s_cbranch_scc1 L_rem1
    s_cmp_eq_u32 {sW}, 2
    s_cbranch_scc1 L_remml
    s_lshl_b32 {sT0}, {sW}, 9
    v_lshl_add_u32 v{T+8}, {vL}, 3, {sT0}
    s_add_u32 {sT1}, {sOWN}, {OP}
    v_lshl_add_u32 v{T+9}, v{T+8}, 1, {sT1}
    """)
    sum_pairs(L_OP, OPS, 8)
    a(f"""
    s_branch L_remst
L_remml:
    v_mov_b32 v{T+8}, {L_MLG}
    ds_read_b128 v[{PG}:{PG+3}], v{T+8}
    s_add_u32 {sT1}, {sOWN}, {ML}
    v_mov_b32 v{T+9}, {sT1}
    s_waitcnt lgkmcnt(0)
L_remst:
    buffer_store_dwordx4 v[{PG}:{PG+3}], v{T+9}, {SWS}, s4 offen sc1
L_rem1:
    s_cmp_eq_u32 {sS}, 7
    s_cbranch_scc1 L_fin
    v_sub_u32 v{T+8}, {vA2}, {vA1}
    v_lshl_add_u32 v{T+8}, v{T+8}, 1, {vA1}
    """, count=False)
    mlcalc(True)
    oplb = (f"buffer_load_dwordx4 v[{O}:{O+3}], v{T+8}, {SWS}, s4 offen sc1\n"
            f"buffer_load_dwordx4 v[{O+4}:{O+7}], v{T+8}, {SWS}, s4 offen offset:16 sc1")
    a(oplb + "\ns_waitcnt vmcnt(0)", count=False)
    retry(lambda: gcheck([O, O + 4], T), oplb)
    for i in range(4): a(f"v_mul_f32 v{O+2*i}, v{F}, v{O+2*i}")
    a("s_branch L_hop1d")
    a(f"""
L_lsvc:
    s_cmp_eq_u32 {sS}, 7
    s_cbranch_scc1 L_fin
    s_lshl_b32 {sOWN}, s2, 13
    v_and_b32 v{T+8}, 31, {vL}
    v_lshlrev_b32 v{T+8}, 3, v{T+8}
    s_add_u32 {sT1}, {sOWN}, {YB}
    v_lshl_add_u32 v{T+9}, v{T+8}, 1, {sT1}
    v_mov_b32 v{PG+1}, {sTA}
    v_mov_b32 v{PG+3}, {sTB}
    """)
    guard("s_barrier")
    sum_pairs(L_YB, 256, 8)
    guard(f"buffer_store_dwordx4 v[{PG}:{PG+3}], v{T+9}, {SWS}, 0 offen sc1")
    a(f"""
    s_lshl_b32 {sT0}, {sS}, 1
    s_add_u32 {sT0}, {sT0}, {sB}
    s_cmp_lg_u32 {sT0}, {sH}
    s_cbranch_scc1 L_fin
    s_and_b32 {sT0}, s2, 0xf0
    s_lshl_b32 {sT0}, {sT0}, 13
    s_add_u32 {sT0}, {sT0}, {YA}
    v_lshrrev_b32 v{T+5}, 5, {vL}
    v_lshlrev_b32 v{T}, 13, v{T+5}
    v_lshl_add_u32 v{T}, v{T+8}, 1, v{T}
    v_add_u32 {vA0}, {sT0}, v{T}
    v_mov_b32 v{T+2}, {L_G}
    ds_read_b32 v{T+3}, v{T+2}
    """, count=False)
    for k in range(1, 8): a(f"s_mov_b32 s{3+k}, {k*2*SLOT}")
    so = ["0"] + [f"s{3+k}" for k in range(1, 8)]
    mk = lambda r, off: "\n".join(f"buffer_load_dwordx4 v[{r+4*k}:{r+4*k+3}], {vA0}, {SWS}, {so[k]} offen offset:{off} {ypol}" for k in range(8))
    YBr, YAr = KR, KR + 32
    sets = [KR + 32, KR + 64, KR + 96][:npoll]
    guard(mk(YBr, YB - YA))
    a(f"""
    v_lshrrev_b32 v{T+4}, 2, v{T+8}
    v_add_u32 v{T+4}, v{T+4}, v{T+5}
    s_mul_i32 {sT0}, {sB}, 448
    s_lshl_b32 {sT1}, {sS}, 6
    s_add_u32 {sT0}, {sT0}, {sT1}
    v_add_lshl_u32 v{T+4}, v{T+4}, {sT0}, 1
    s_waitcnt lgkmcnt(0)
    v_sub_f32 v{T+6}, 1.0, v{T+3}
    v_cvt_pk_bf16_f32 v{T+6}, 0, v{T+6}
    """)
    def tree(dst, src):
        for e in range(2):
            for k in range(0, 8, 2): a(f"v_add_f32 v{dst+4*e+k//2}, v{src+4*k+2*e}, v{src+4*k+4+2*e}")
        for e in range(2):
            a(f"v_add_f32 v{dst+4*e}, v{dst+4*e}, v{dst+4*e+1}\nv_add_f32 v{dst+4*e+2}, v{dst+4*e+2}, v{dst+4*e+3}")
        for e in range(2): a(f"v_add_f32 v{dst+4*e}, v{dst+4*e}, v{dst+4*e+2}")
        a(f"v_permlane32_swap_b32 v{dst}, v{dst+4}\nv_add_f32 v{dst}, v{dst}, v{dst+4}\nv_cvt_pk_bf16_f32 v{dst}, 0, v{dst}")
    RA_, RB_ = 8, 16
    n = len(sets)
    lt, ld = "L_pp", "L_ppd"
    guard((mk(sets[0], 0) + "\n" if touch else "") + "s_barrier")
    a("s_waitcnt vmcnt(0)")
    for r in sets[:-1]: guard(mk(r, 0))
    retry(lambda: gcheck([YBr + 4 * k for k in range(8)], T), mk(YBr, YB - YA))
    tree(RB_, YBr)
    a(f"v_mul_f32 v{RB_}, v{T+6}, v{RB_}\nv_cvt_pk_bf16_f32 v{RB_}, 0, v{RB_}\n{lt}:")
    for k in range(n):
        guard(mk(sets[(k + n - 1) % n], 0))
        a(f"s_waitcnt vmcnt({(n-1)*8})")
        gcheck([sets[k] + 4 * j for j in range(8)], T)
        a(f"s_cbranch_vccz L_pph{k}")
    spin_or("L_pph0")
    if ybo: a(f"s_sleep {ybo}")
    a(f"s_branch {lt}")
    for k in range(n - 1, -1, -1):
        a(f"L_pph{k}:")
        tree(RA_, sets[k])
        if k: a(f"s_branch {ld}")
    a(f"{ld}:")
    stamp(16)
    a(f"""
    v_mul_f32 v{RA_}, v{T+3}, v{RA_}
    v_cvt_pk_bf16_f32 v{RA_}, 0, v{RA_}
    v_add_f32 v{RA_}, v{RA_}, v{RB_}
    v_cvt_pk_bf16_f32 v{RA_}, v{RA_}, 0
    s_cbranch_execz L_fin
    buffer_store_short v{RA_}, v{T+4}, {SOUT}, 0 offen
    s_cmp_lg_u32 {sS}, 0
    s_cbranch_scc1 L_fin
    s_lshl_b32 {sT0}, {sB}, 7
    s_add_u32 {sT0}, {sT0}, {GEN}
    v_mov_b32 v{T}, {sT0}
    v_mov_b32 v{T+10}, {sTA}
    v_mov_b32 v{T+11}, {sTB}
    s_mov_b64 exec, 1
    buffer_store_dwordx2 v[{T+10}:{T+11}], v{T}, {SWS}, 0 offen
    s_mov_b64 exec, -1
L_fin:
    """, count=False)
    if dry: a("s_cbranch_execz L_dryret")
    if stamps and dbg:
        a(f"""
        s_cmp_lt_u32 {sW}, 8
        s_cbranch_scc1 L_end
        s_waitcnt vmcnt(0)
        s_memrealtime s[90:91]
        s_waitcnt lgkmcnt(0)
        s_not_b32 s84, s84
        v_mov_b32 v8, 0
        v_mov_b32 v9, s84
        v_writelane_b32 v9, s86, 1
        v_writelane_b32 v9, s88, 2
        v_writelane_b32 v9, s90, 3
        v_lshlrev_b32 v8, 2, v0
        s_mov_b64 exec, 15
        global_atomic_umax v8, v9, s[24:25] sc1
        s_waitcnt vmcnt(0)
        s_endpgm
        """, count=False)
    elif stamps:
        a("s_waitcnt vmcnt(0)")
        stamp(7)
        a(f"""
        s_waitcnt lgkmcnt(0)
        s_lshl_b32 s3, s2, 3
        s_add_u32 s3, s3, {sW}
        s_lshl_b32 s3, s3, 6
        s_add_u32 s3, s3, {128<<20}
        v_mov_b32 v{T}, s3
        s_mov_b64 exec, 1
        """)
        for k in range(4):
            for i in range(4): a(f"v_mov_b32 v{B+4*k+i}, s{STAMP0+4*k+i}")
            a(f"global_store_dwordx4 v{T}, v[{B+4*k}:{B+4*k+3}], s[26:27] offset:{16*k}", count=False)
    a("L_end:\ns_endpgm")
    pad = "\n.fill 4096, 4, 0xbf810000\n" if cpf else ""
    return f"""{HEADER}; @launch grid=(256,1,1) block=(576,1,1) lds={L_END}
.amdgcn_target "amdgcn-amd-amdhsa--gfx950"
.text
.globl {KLABEL}
.p2align 8
.type {KLABEL},@function
{KLABEL}:
{a.text()}{pad}
.section .rodata,"a"
.p2align 6
.amdhsa_kernel {KLABEL}
  .amdhsa_next_free_vgpr 168
  .amdhsa_next_free_sgpr 102
  .amdhsa_accum_offset 168
  .amdhsa_group_segment_fixed_size 0
  .amdhsa_kernarg_size 96
  .amdhsa_user_sgpr_count 2
  .amdhsa_user_sgpr_kernarg_segment_ptr 1
  .amdhsa_system_sgpr_workgroup_id_x 1
.end_amdhsa_kernel
"""

if __name__ == "__main__":
    ap = argparse.ArgumentParser()
    ap.add_argument("-o", default="k.s")
    ap.add_argument("--stamps", default="")
    for n, d in (("w", 32), ("ng", 10), ("ngw", 2), ("npoll", 2), ("fpos", 3), ("spin", 200000), ("dstep", 2), ("lsl", 1), ("bar0", 1), ("nburst", 4), ("warm", 1), ("bo", 0), ("ndir", 1), ("dpos", 4), ("dry", 0), ("touch", 1), ("ybo", 0), ("h1p", 1), ("rinv", 0), ("cpf", 2), ("nd0", 4), ("at1", 0), ("at2", 0), ("dbg", 0)):
        ap.add_argument("--" + n, type=int, default=d)
    ap.add_argument("--pol", default="nt")
    ap.add_argument("--wpol", default="nt")
    ap.add_argument("--ypol", default="sc1")
    ap.add_argument("--fpol", default="sc1")
    ap.add_argument("--rpol", default="sc1")
    ap.add_argument("--wsched", default="")
    ap.add_argument("--nocpf", action="store_true")
    ap.add_argument("--skip", default="")
    x = ap.parse_args()
    open(x.o, "w").write(gen(x.w, x.ng, x.ngw, x.pol, x.wpol, [int(t) for t in x.stamps.split(',')] if x.stamps else None,
                             x.spin, (0 if x.nocpf else x.cpf), x.npoll, x.fpos, x.skip, x.dstep, x.lsl, x.bar0, x.nburst, x.warm, x.bo, x.ndir, x.dpos, x.dry, x.ypol, x.wsched, x.touch, x.ybo, x.h1p, x.fpol, x.rpol, x.rinv, x.nd0, x.at1, x.at2, x.dbg))
```

```python
import sys, math, struct, argparse
from asmlib import Asm
from common import NAME, KLABEL

def f32bits(x):
    return struct.unpack("<I", struct.pack("<f", x))[0]

HEADER = open("cdna_kernels/" + NAME + ".s.ref").read().split("; Override launch")[0]

SLOT = 8192
QA, QB, OP, ML = 0, 2048, 4096, 6144
YA, YB = 6656, 7168
BOFF = 256 * SLOT
GEN = 2 * BOFF
WS_BYTES = GEN + 256
L_ML, L_F, L_C1, L_C2, L_C3, L_QRDY, L_FRDY, L_G, L_REM, L_Q, L_H = 0, 64, 96, 100, 104, 108, 112, 116, 120, 128, 640
L_OP, L_YB, L_YA = 1024, 9728, 11776
OPS = 1056
L_QH = 1024
L_QG = 13312
L_MLG = 25568
L_DONE = 25600
L_LAND = 25856
RING = 32768
L_END = RING + 131072
SK, SV, SWQ, SW1, SWO, SW2, SX, SGW, SOUT, SWS = [f"s[{n}:{n+3}]" for n in range(28, 68, 4)]
sTA, sTB, sOWN = "s68", "s69", "s70"
sH, sB, sS, sW = "s72", "s73", "s74", "s75"
sT0, sT1 = "s76", "s77"
MB1, MB0 = "s[78:79]", "s[80:81]"
sOFF, sSPIN = "s82", "s83"
STAMP0 = 84
vL, vKV = "v1", "v2"
vA0, vA1, vA2, vA3, vA4 = "v3", "v4", "v5", "v6", "v7"
Q0, ACC, P0, F, COL, RA, RBv = 8, 12, 20, 24, 25, 26, 27
sLAND = "s71"
sTQ = "s29"
sMISS, sREM = "s30", "s31"
vD = 7
MOWN = "s[78:79]"
CSC = hex(f32bits(math.log2(math.e) / 16))


DOC = """; -----------------------------------------------------------------------------------------------
; One launch, 256 workgroups (one per CU) x 9 waves.  Workgroup i: head h = 2*(i&7) + ((i>>3)&1),
; -----------------------------------------------------------------------------------------------
"""

def gen(W=32, NG=14, NGW=3, pol="nt", wpol="nt", stamps=None, spin=200000, cpf=True, npoll=3, fpos=3, skip="", dstep=2, lsl=1, bar0=1, nburst=4, warm=1, bo=0, ndir=1, dpos=4, dry=0, ypol='sc1', wsched='', touch=1, ybo=0, h1p=1, fpol='sc1', rpol='sc1', rinv=0, nd0=0, at1=0, at2=0, dbg=0):
    a0 = Asm()
    class Filt:
        phase = "head"
        def __call__(self, txt, tag=None, count=True):
            out = []
            for l in txt.split("\n"):
                ls = l.strip()
                if self.phase == "head" and SWS in ls:
                    if "s" in skip and ls.startswith("buffer_store"): continue
                    if "g" in skip and ls.startswith("buffer_load"): continue
                    if "c" in skip and ls.startswith("buffer_store") and "v[8:11], v28" in ls: continue
                    if "p" in skip and ls.startswith("buffer_store") and ("v[8:11], v29" in ls or "v[12:15], v29" in ls): continue
                    if "m" in skip and ls.startswith("buffer_store") and "v[8:11], v30" in ls: continue
                    if "N" in skip and ls.startswith("buffer_store") and "sc1" not in ls: l = l + " nt"
                    if "0" in skip and ls.startswith("buffer_store") and "sc1" not in ls: l = l + " sc0"
                out.append(l)
            a0("\n".join(out), tag=tag, count=count)
        def __getattr__(self, k): return getattr(a0, k)
        def __setattr__(self, k, v):
            if k == "phase": object.__setattr__(self, k, v)
            else: setattr(a0, k, v)
    a = Filt()
    KR = 40
    NCH = 64 - ndir
    T = 28
    def stamp(i):
        if stamps and i in stamps:
            k = stamps.index(i)
            a(f"s_memrealtime s[{STAMP0+2*k}:{STAMP0+2*k+1}]")
    def srd(dst, src, size):
        n = int(dst[2:dst.index(":")])
        a(f"s_mov_b32 s{n}, s{src}\ns_mov_b32 s{n+1}, s{src+1}\ns_mov_b32 s{n+2}, {size}\ns_mov_b32 s{n+3}, 0x20000")
    SRDS = {SX: (4, 1792), SK: (6, 1 << 26), SV: (8, 1 << 26), SWQ: (10, 448 * 8192), SWO: (12, 4096 * 896), SW1: (16, 448 * 3584),
            SW2: (18, 1792 * 896), SGW: (20, 896), SOUT: (22, 1792), SWS: (26, WS_BYTES)}
    def srds(*names):
        for n in names: srd(n, *SRDS[n])
    def red8(acc):
        for k in range(4): a(f"v_permlane32_swap_b32 v{acc+k}, v{acc+k+4}")
        for k in range(4): a(f"v_add_f32 v{acc+k}, v{acc+k}, v{acc+k+4}")
        for k in range(2): a(f"v_permlane16_swap_b32 v{acc+k}, v{acc+k+2}")
        for k in range(2): a(f"v_add_f32 v{acc+k}, v{acc+k}, v{acc+k+2}")
        a(f"v_add_f32_dpp v{acc}, v{acc}, v{acc} row_ror:8 row_mask:0xf bank_mask:0x3")
        a(f"v_add_f32_dpp v{acc}, v{acc+1}, v{acc+1} row_ror:8 row_mask:0xf bank_mask:0xc")
    def gemv_step(acc, wreg, lo, hi, first, n=4):
        for i in range(n):
            a(f"v_dot2_f32_bf16 v{acc+2*i}, v{wreg+i}, v{lo}, {'0' if first else f'v{acc+2*i}'}")
            a(f"v_dot2_f32_bf16 v{acc+2*i+1}, v{wreg+i}, v{hi}, {'0' if first else f'v{acc+2*i+1}'}")
    def bc_step(acc, wreg, lo, hi, n):
        for i in range(4):
            a(f"v_dot2c_f32_bf16_dpp v{acc+2*i}, v{lo}, v{wreg+i} row_newbcast:{n} row_mask:0xf bank_mask:0xf")
            a(f"v_dot2c_f32_bf16_dpp v{acc+2*i+1}, v{hi}, v{wreg+i} row_newbcast:{n} row_mask:0xf bank_mask:0xf")
    def allred(op, v, t, bits=6):
        a(f"{op}_dpp v{v}, v{v}, v{v} quad_perm:[1,0,3,2] row_mask:0xf bank_mask:0xf")
        a(f"{op}_dpp v{v}, v{v}, v{v} quad_perm:[2,3,0,1] row_mask:0xf bank_mask:0xf")
        a(f"{op}_dpp v{v}, v{v}, v{v} row_half_mirror row_mask:0xf bank_mask:0xf")
        if bits > 3:
            a(f"{op}_dpp v{v}, v{v}, v{v} row_ror:8 row_mask:0xf bank_mask:0xf")
            a(f"v_mov_b32 v{t}, v{v}\nv_permlane16_swap_b32 v{v}, v{t}\n{op} v{v}, v{v}, v{t}")
            a(f"v_mov_b32 v{t}, v{v}\nv_permlane32_swap_b32 v{v}, v{t}\n{op} v{v}, v{v}, v{t}")
    def spin_or(ld):
        a(f"s_cmp_eq_u32 {sSPIN}, 0\ns_cbranch_scc1 {ld}\ns_sub_u32 {sSPIN}, {sSPIN}, 1")
    def retry(cond_code, reissue):
        lt, ld = a.newlabel("L_poll"), a.newlabel("L_pdone")
        a(f"{lt}:")
        cond_code()
        a(f"s_cbranch_vccz {ld}")
        spin_or(ld)
        a(reissue, count=False)
        a(f"s_waitcnt vmcnt(0)\ns_branch {lt}\n{ld}:")
    def sent_cond(regs, t):
        rs = list(regs)
        a(f"v_max3_u32 v{t}, v{rs[0]}, v{rs[1]}, v{rs[2]}"); rs = rs[3:]
        while len(rs) >= 2:
            a(f"v_max3_u32 v{t}, v{t}, v{rs[0]}, v{rs[1]}"); rs = rs[2:]
        if rs: a(f"v_max_u32 v{t}, v{t}, v{rs[0]}")
        a(f"v_cmp_eq_u32 vcc, -1, v{t}")
    def poll_sent(regs, reissue, t):
        retry(lambda: sent_cond(regs, t), reissue)
    def tag2_cond(g, t):
        a(f"v_xor_b32 v{t}, {sTA}, v{g+2}\nv_bitop3_b32 v{t}, v{t}, {sTB}, v{g+3} bitop3:0xf6\nv_cmp_ne_u32 vcc, 0, v{t}")
    def poll_pipe(nreg, sets, mk, nld, t, hit):
        n = len(sets)
        lt, ld = a.newlabel("L_pp"), a.newlabel("L_ppd")
        hits = [a.newlabel("L_pph") for _ in sets]
        for r in sets[:-1]:
            a(mk(r), count=False); a("s_nop 15\ns_nop 15")
        a(f"{lt}:")
        for k in range(n):
            a(mk(sets[(k + n - 1) % n]), count=False)
            a(f"s_waitcnt vmcnt({(n-1)*nld})")
            sent_cond(range(sets[k], sets[k] + nreg), t)
            a(f"s_cbranch_vccz {hits[k]}")
        spin_or(hits[0])
        a(f"s_branch {lt}")
        for k in range(n - 1, -1, -1):
            a(f"{hits[k]}:")
            hit(sets[k])
            if k: a(f"s_branch {ld}")
        a(f"{ld}:")
    def lds_ticket(addr, t):
        a(f"""
        v_mov_b32 v{t}, {addr}
        v_mov_b32 v{t+1}, 1
        s_waitcnt lgkmcnt(0)
        s_mov_b64 exec, 1
        ds_add_rtn_u32 v{t+1}, v{t}, v{t+1}
        s_mov_b64 exec, -1
        s_waitcnt lgkmcnt(0)
        v_readfirstlane_b32 {sT0}, v{t+1}
        """)
    def lds_wait(flag, extra, t, name):
        a(f"v_mov_b32 v{t}, {flag}\n{name}:\nds_read_b32 v{t+1}, v{t}\n{extra}\ns_waitcnt lgkmcnt(0)\nv_cmp_eq_u32 vcc, 1, v{t+1}\ns_cbranch_vccnz {name}d")
        spin_or(name + "d")
        a(f"s_sleep 1\ns_branch {name}\n{name}d:")

    def chunk_read(c, reg, fast=False):
        ok, sp = a.newlabel("L_ck"), a.newlabel("L_cs")
        a(f"""
        s_cmp_gt_u32 {sLAND}, {c}
        s_cbranch_scc1 {ok}
{sp}:
        ds_read_b32 v{T+11}, v{RA} offset:{L_LAND}
        s_waitcnt lgkmcnt(0)
        v_readfirstlane_b32 {sLAND}, v{T+11}
        s_cmp_gt_u32 {sLAND}, {c}
        s_cbranch_scc1 {ok}
        """)
        spin_or(ok)
        a(("" if fast else f"s_sleep {lsl}\n") + f"s_branch {sp}\n{ok}:")
        slot = c % 16
        a(f"ds_read_b128 v[{reg}:{reg+3}], v{vR0 if slot < 8 else vR1} offset:{(slot % 8) * 8192}")
    def done(c):
        a(f"v_mov_b32 v{T+10}, {c+1}\ns_waitcnt lgkmcnt(0)\ns_mov_b64 exec, 1\nds_write_b32 v{RBv}, v{T+10} offset:{L_DONE}\ns_mov_b64 exec, -1")
    def drain(c0, c1):
        for c in range(c0, c1):
            chunk_read(c, KR + 4 * c)
            if (c + 1) % dstep == 0 or c == c1 - 1: done(c)
    vR0, vR1 = 2, 0
    a(f"""
    s_load_dwordx4 s[36:39], s[0:1], 8
    v_readfirstlane_b32 {sW}, v0
    s_cmpk_ge_u32 s2, 256
    s_cbranch_scc1 L_end
    """)
    stamp(0)
    a(f"""
    s_lshr_b32 {sW}, {sW}, 6
    s_cbranch_scc0 L_loader
    """)
    if cpf:
        a(f"""
        s_getpc_b64 s[100:101]
        s_lshr_b32 s3, s2, 3
        s_lshl_b32 s3, s3, 9
        v_subrev_u32 v{T}, 64, v0
        v_cmp_gt_u32 vcc, 4, v{T}
        v_lshl_add_u32 v{T}, v{T}, 7, s3
        s_and_saveexec_b64 s[98:99], vcc
        s_cbranch_execz L_cons0
        global_load_dword v{F}, v{T}, s[100:101]
        """, count=False)
    DEC = f"""
    s_and_b32 {sH}, s2, 7
    s_lshl_b32 {sH}, {sH}, 1
    s_bfe_u32 {sT0}, s2, 0x10003
    s_add_u32 {sH}, {sH}, {sT0}
    s_bfe_u32 {sB}, s2, 0x10004
    s_lshr_b32 {sS}, s2, 5
    """
    a(f"""
    s_branch L_cons0
L_loader:
    {DEC}
    s_lshl_b32 {sT0}, {sB}, 4
    s_add_u32 {sT0}, {sT0}, {sH}
    s_lshl3_add_u32 {sT0}, {sT0}, {sS}
    s_lshl_b32 {sT0}, {sT0}, 18
    v_lshl_add_u32 v2, v0, 4, {sT0}
    s_lshl_b32 s30, 1, 26
    s_mov_b32 s31, 0x20000
    s_lshl_b32 m0, 1, 15
    s_mov_b32 s34, 0
    s_waitcnt lgkmcnt(0)
    s_mov_b64 s[28:29], s[36:37]
L_burst:
    """)
    assert RING == 1 << 15
    for p in range(4):
        a(f"buffer_load_dwordx4 v2, {SK}, s34 offen offset:{p*1024} {pol} lds", count=False)
    a(f"s_addk_i32 s34, 4096\ns_addk_i32 m0, 4096\ns_cmpk_lt_u32 s34, {nburst*8192}\ns_cbranch_scc1 L_burst")
    a(f"s_setprio 3\nv_mov_b32 {vL}, v0\ns_mov_b32 {sSPIN}, {spin}")
    stamp(199)
    a(f"""
    v_lshlrev_b32 v4, 2, {vL}
    v_mov_b32 v5, 0
    ds_write_b32 v4, v5 offset:{L_LAND}
    ds_write_b32 v4, v5 offset:{L_DONE}
    ds_write_b32 v4, v5 offset:{L_ML}
    v_and_b32 v6, 7, {vL}
    v_lshlrev_b32 v6, 2, v6
    s_mov_b32 s32, {nburst}                      ; chunk
    s_mov_b32 s33, 16
    s_waitcnt lgkmcnt(0)
    s_barrier
    s_branch L_ldok0
L_cons0:
    s_mov_b64 exec, -1
    s_load_dwordx16 s[4:19], s[0:1], 0
    s_load_dwordx8 s[20:27], s[0:1], 64
    {DEC}
    v_and_b32 {vL}, 63, v0
    s_mov_b32 {sSPIN}, {spin}
    s_sub_u32 {sW}, {sW}, 1
    s_mov_b32 {sLAND}, 0
    s_lshl_b32 {sT0}, {sW}, 10
    s_add_u32 {sT0}, {sT0}, {RING}
    v_lshl_add_u32 v{vR0}, {vL}, 4, {sT0}
    v_add_u32 v{vR1}, 0x10000, v{vR0}
    s_lshl_b32 {sT0}, {sW}, 2
    v_mov_b32 v{RBv}, {sT0}
    v_mov_b32 v{RA}, {sT0}
    {"s_barrier" if bar0 else ""}
    s_branch L_cons
    """)
    sched = [(int(t.split(":")[0]), int(t.split(":")[1])) for t in wsched.split(",")] if wsched else [(64, W)]
    sched[-1] = (NCH, sched[-1][1])
    for ph, (cend, Wp) in enumerate(sched):
        a(f"""
L_ld{ph}:
        s_cmp_lt_u32 s32, s33
        s_cbranch_scc1 L_ldok{ph}
L_ldfree{ph}:
        ds_read_b32 v7, v6 offset:{L_DONE}
        s_waitcnt lgkmcnt(0)
        v_min_u32_dpp v7, v7, v7 quad_perm:[1,0,3,2] row_mask:0xf bank_mask:0xf
        v_min_u32_dpp v7, v7, v7 quad_perm:[2,3,0,1] row_mask:0xf bank_mask:0xf
        v_min_u32_dpp v7, v7, v7 row_half_mirror row_mask:0xf bank_mask:0xf
        v_readfirstlane_b32 s33, v7
        s_add_u32 s33, s33, 16
        s_cmp_lt_u32 s32, s33
        s_cbranch_scc1 L_ldok{ph}
        """)
        spin_or(f"L_ldok{ph}")
        a(f"s_branch L_ldfree{ph}\nL_ldok{ph}:")
        for st in (stamps or []):
            if 200 <= st < 264:
                a(f"s_cmp_lg_u32 s32, {st-200}\ns_cbranch_scc1 L_lst{st}_{ph}"); stamp(st); a(f"L_lst{st}_{ph}:")
        pp = (Wp - 1) % 8; back = (Wp - 1 - pp) // 8 + 1
        a(f"""
        s_and_b32 s35, s32, 15
        s_lshl_b32 s35, s35, 13
        s_add_u32 s35, s35, {RING}
        s_mov_b32 m0, s35
        s_sub_u32 s40, s32, {back - 1}
        v_mov_b32 v5, s40
        """)
        for p in range(8):
            if p == 4: a("s_add_u32 s35, s35, 4096\ns_add_u32 s34, s34, 4096\ns_mov_b32 m0, s35")
            a(f"s_waitcnt vmcnt({Wp-1})")
            if p == pp: a(f"ds_write_b32 v4, v5 offset:{L_LAND}")
            a(f"buffer_load_dwordx4 v2, {SK}, s34 offen offset:{(p%4)*1024} {pol} lds", count=False)
        a(f"""
        s_add_u32 s34, s34, 4096
        s_add_u32 s32, s32, 1
        s_cmp_lg_u32 s32, 32
        s_cbranch_scc1 L_ldnsw{ph}
        s_mov_b32 s28, s38
        s_mov_b32 s29, s39
        s_mov_b32 s34, 0
L_ldnsw{ph}:
        s_cmp_lt_u32 s32, {cend}
        s_cbranch_scc1 L_ld{ph}
        """)
    W = sched[-1][1]
    assert sched[0][1] <= nburst * 8 + 1
    stamp(13)
    a("s_load_dwordx8 s[20:27], s[0:1], 64\ns_waitcnt lgkmcnt(0)")
    a(f"s_lshl_b32 s3, {sB}, 7\ns_add_u32 s3, s3, {GEN}\ns_load_dwordx2 s[68:69], s[26:27], s3")
    srds(SWS, SOUT)
    for k in range((W + 7) // 8 - 1, -1, -1):
        a(f"v_mov_b32 v5, {NCH-k}\ns_waitcnt vmcnt({8*k})\nds_write_b32 v4, v5 offset:{L_LAND}")
    a("s_waitcnt lgkmcnt(0)")
    stamp(5)
    if stamps: a(f"s_mul_i32 {sW}, s2, 7\ns_sub_u32 {sW}, 2048, {sW}")
    a(f"s_add_u32 {sTA}, s68, 8\ns_add_u32 {sTB}, s69, 1\ns_branch L_lsvc")
    a(f"""
L_cons:
    s_waitcnt lgkmcnt(0)
    s_lshl_b32 s3, {sB}, 7
    s_add_u32 s3, s3, {GEN}
    s_load_dwordx2 s[68:69], s[26:27], s3
    s_cmp_eq_u32 {sW}, 7
    s_cbranch_scc1 L_svc
    """)
    VE = KR + 64
    WQr, W1r, XQ, XF, AQ, AF = VE, VE + 16, VE + 24, VE + 26, VE + 32, VE + 40
    srds(SWQ)
    a(f"""
    s_mul_i32 {sT0}, {sS}, 56
    s_lshl_b32 {sT1}, {sW}, 3
    s_add_u32 {sT0}, {sT0}, {sT1}
    v_lshrrev_b32 v{T}, 5, {vL}                  ; half
    v_add_u32 v{T+1}, {sT0}, v{T}
    v_lshlrev_b32 {vA2}, 13, v{T+1}
    v_and_b32 v{T+2}, 31, {vL}
    v_lshl_add_u32 {vA2}, v{T+2}, 4, {vA2}
    s_lshl_b32 {sT1}, {sH}, 9
    v_add_u32 {vA2}, {sT1}, {vA2}
    """)
    for t in range(4):
        if t: a(f"s_mov_b32 {sT1}, {t*2*8192}")
        if "1" not in skip:
            a(f"buffer_load_dwordx4 v[{WQr+4*t}:{WQr+4*t+3}], {vA2}, {SWQ}, {sT1 if t else 0} offen {wpol}", tag="w")
    srds(SX, SW1)
    a(f"""
    v_lshrrev_b32 v{T+3}, 4, {vL}                ; rho
    v_and_b32 v{T+4}, 15, {vL}                   ; n
    v_add_u32 v{T+5}, {sT0}, v{T+3}
    v_mul_u32_u24 {vA3}, 3584, v{T+5}
    v_lshl_add_u32 {vA3}, v{T+4}, 4, {vA3}
    s_lshl_b32 {sT1}, {sH}, 8
    v_add_u32 {vA3}, {sT1}, {vA3}                ; w1 address
    s_cmp_gt_u32 {sH}, 13
    s_cbranch_scc1 L_nof1
    s_mov_b32 {sT1}, {4*3584}
    """)
    if "1" not in skip:
        a(f"buffer_load_dwordx4 v[{W1r}:{W1r+3}], {vA3}, {SW1}, 0 offen {wpol}", count=False)
        a(f"buffer_load_dwordx4 v[{W1r+4}:{W1r+7}], {vA3}, {SW1}, {sT1} offen {wpol}", count=False)
    a(f"""
L_nof1:
    s_mul_i32 {sT1}, {sB}, 448
    s_add_u32 {sT1}, {sT1}, {sT0}
    v_and_b32 v{T+5}, 3, {vL}
    v_lshl_add_u32 v{T+5}, v{T+5}, 1, v{T}
    v_add_lshl_u32 {vA0}, v{T+5}, {sT1}, 1
    v_and_b32 v{T+5}, 1, {vL}
    v_lshl_add_u32 v{T+5}, v{T+5}, 2, v{T+3}
    v_add_lshl_u32 {vA1}, v{T+5}, {sT1}, 1
    """)
    a(f"buffer_load_ushort v{XQ}, {vA0}, {SX}, 0 offen", tag="w")
    a(f"buffer_load_ushort v{XF}, {vA1}, {SX}, 0 offen", tag="w")
    if not bar0: a("s_barrier")
    srds(SWS, SWO, SW2, SOUT, SGW, SV)
    for i in range(16): a(f"v_mov_b32 v{AQ+i}, 0")
    a(f"""
    s_mul_i32 {sT0}, {sW}, 1536
    v_lshlrev_b32 v{T+2}, 5, v{T+2}
    v_lshl_add_u32 v{T+2}, v{T}, 4, v{T+2}
    v_add_u32 v{T+2}, {sT0}, v{T+2}
    v_lshlrev_b32 v{T+4}, 5, v{T+4}
    v_lshl_add_u32 v{T+4}, v{T+3}, 3, v{T+4}     ; 32n + 8*rho
    v_add_u32 v{T+4}, {sT0}, v{T+4}
    """)
    stamp(10)
    drain(0, nd0)
    a.wait_vm("w")
    stamp(11)
    a(f"v_lshlrev_b32 v{XQ+1}, 16, v{XQ}\nv_lshlrev_b32 v{XF+1}, 16, v{XF}")
    for t in range(4): bc_step(AQ, WQr + 4 * t, XQ, XQ + 1, t)
    for t in range(2): bc_step(AF, W1r + 4 * t, XF, XF + 1, t)
    for k in range(4): a(f"v_permlane32_swap_b32 v{AQ+k}, v{AQ+k+4}")
    for k in range(4): a(f"v_permlane32_swap_b32 v{AF+k}, v{AF+k+4}")
    for k in range(4): a(f"v_add_f32 v{AQ+k}, v{AQ+k}, v{AQ+k+4}")
    for k in range(4): a(f"v_add_f32 v{AF+k}, v{AF+k}, v{AF+k+4}")
    a(f"ds_write_b128 v{T+2}, v[{AQ}:{AQ+3}] offset:{L_QH}")
    for k in range(2): a(f"v_permlane16_swap_b32 v{AF+k}, v{AF+k+2}")
    for k in range(2): a(f"v_add_f32 v{AF+k}, v{AF+k}, v{AF+k+2}")
    a(f"ds_write_b64 v{T+4}, v[{AF}:{AF+1}] offset:{L_QH+1024}")
    lds_ticket(L_C1, T + 6)
    TAGS = f"""
    s_add_u32 {sTA}, s68, 8
    s_add_u32 {sTB}, s69, 1
    s_getreg_b32 {sTQ}, hwreg(HW_REG_XCC_ID, 0, 3)
    s_andn2_b32 s3, {sTA}, 7
    s_or_b32 {sTQ}, {sTQ}, s3
    """
    a(TAGS)
    PBs = [8, 12]
    PR = VE
    a(f"s_cmp_lg_u32 {sT0}, 6\ns_cbranch_scc1 L_k2\nv_lshlrev_b32 v{T}, 2, {vL}")
    for u in range(2):
        for th in range(3):
            for w in range(7):
                a(f"ds_read_b32 v{PR+24*u+8*th+w}, v{T} offset:{L_QH+1536*w+512*th+256*u}")
    a(f"s_lshl_b32 {sT0}, s2, 13\nv_lshl_add_u32 v{T+1}, {vL}, 4, {sT0}")
    for u in range(2): a(f"v_mov_b32 v{PBs[u]+3}, {sTQ}")
    a("s_waitcnt lgkmcnt(0)")
    for u in range(2):
        for th in range(3):
            b = PR + 24 * u + 8 * th
            a(f"v_add_f32 v{b}, v{b}, v{b+1}\nv_add_f32 v{b+2}, v{b+2}, v{b+3}\nv_add_f32 v{b+4}, v{b+4}, v{b+5}")
        for th in range(3):
            b = PR + 24 * u + 8 * th
            a(f"v_add_f32 v{b}, v{b}, v{b+2}\nv_add_f32 v{b+4}, v{b+4}, v{b+6}")
        for th in range(3):
            b = PR + 24 * u + 8 * th
            a(f"v_add_f32 v{PBs[u]+th}, v{b}, v{b+4}")
        a(f"buffer_store_dwordx4 v[{PBs[u]}:{PBs[u]+3}], v{T+1}, {SWS}, 0 offen offset:{QA+1024*u}", count=False)
    stamp(1)
    a("s_branch L_k2")
    a("L_svc:")
    a.vm = []
    GX = VE
    srds(SWS, SX, SGW)
    a(f"""
    s_mul_i32 s3, {sB}, 896
    v_lshlrev_b32 v{T+7}, 4, {vL}
    v_add_u32 v{T+8}, s3, v{T+7}
    v_cmp_gt_u32 vcc, 56, {vL}
    v_mov_b32 v{T+6}, 0x10000
    v_cndmask_b32 v{T+8}, v{T+6}, v{T+8}, vcc
    """)
    a(f"buffer_load_dwordx4 v[{GX}:{GX+3}], v{T+8}, {SX}, 0 offen", tag="w")
    a(f"buffer_load_dwordx4 v[{GX+4}:{GX+7}], v{T+7}, {SGW}, 0 offen", tag="w")
    a(f"""
    s_waitcnt lgkmcnt(0)
    """)
    if not bar0: a("s_barrier")
    a(TAGS)
    srds(SWO, SW2, SOUT, SWQ, SW1, SV)
    drain(0, nd0)
    a(f"""
    s_waitcnt vmcnt(0)
    """, count=False)
    G = T
    a(f"v_mov_b32 v{G}, 0")
    for i in range(4):
        x, g = GX + i, GX + 4 + i
        a(f"""
        v_lshlrev_b32 v{G+1}, 16, v{x}
        v_lshlrev_b32 v{G+2}, 16, v{g}
        v_and_b32 v{G+3}, 0xffff0000, v{x}
        v_and_b32 v{G+4}, 0xffff0000, v{g}
        v_mul_f32 v{G+1}, v{G+1}, v{G+2}
        v_mul_f32 v{G+3}, v{G+3}, v{G+4}
        v_cvt_pk_bf16_f32 v{G+1}, v{G+1}, v{G+3}
        v_lshlrev_b32 v{G+2}, 16, v{G+1}
        v_and_b32 v{G+3}, 0xffff0000, v{G+1}
        v_add_f32 v{G}, v{G}, v{G+2}
        v_add_f32 v{G}, v{G}, v{G+3}
        """)
    allred("v_add_f32", G, G + 1)
    a(f"""
    v_cvt_pk_bf16_f32 v{G}, 0, v{G}
    v_mul_f32 v{G}, {hex(f32bits(-math.log2(math.e)))}, v{G}
    v_exp_f32 v{G}, v{G}
    v_add_f32 v{G}, 1.0, v{G}
    v_rcp_f32 v{G}, v{G}
    v_cvt_pk_bf16_f32 v{G}, 0, v{G}
    v_mov_b32 v{G+1}, {L_G}
    ds_write_b32 v{G+1}, v{G}
L_k2:
    """)
    a.vm = []
    ADDRS = f"""
    s_mov_b32 s78, 0xcccccccc
    s_mov_b32 s79, 0xcccccccc
    s_mov_b32 s80, 0xaaaaaaaa
    s_mov_b32 s81, 0xaaaaaaaa
    s_lshl_b32 {sOWN}, s2, 13
    v_and_b32 v{T+1}, 7, {vL}
    v_lshrrev_b32 v{T}, 3, {vL}
    v_lshlrev_b32 v{COL}, 5, v{T+1}
    v_lshrrev_b32 v{T+2}, 5, {vL}
    v_lshl_add_u32 v{COL}, v{T+2}, 4, v{COL}
    v_bfe_u32 v{T+2}, {vL}, 4, 1
    v_lshl_add_u32 v{COL}, v{T+2}, 3, v{COL}
    v_bfe_u32 v{T+2}, {vL}, 3, 1
    v_lshl_add_u32 v{COL}, v{T+2}, 2, v{COL}
    s_lshl_b32 {sT1}, {sW}, 8
    v_add_u32 v{COL}, {sT1}, v{COL}
    s_and_b32 {sT0}, s2, 31
    s_lshl_b32 {sT0}, {sT0}, 13
    s_add_u32 {sT0}, {sT0}, {OP}
    v_lshlrev_b32 {vA1}, 18, v{T+1}
    v_add_u32 {vA1}, {sT0}, {vA1}
    v_lshl_add_u32 {vA2}, v{T}, 4, {vA1}
    s_lshl_b32 {sT1}, {sW}, 7
    v_add_u32 {vA2}, {sT1}, {vA2}
    s_lshl_b32 {sT1}, {sS}, 7
    v_lshl_add_u32 v{T+1}, v{T+1}, 4, {sT1}
    s_lshl_b32 {sT0}, {sH}, 8
    s_lshl_b32 {sT1}, {sW}, 5
    s_add_u32 {sT0}, {sT0}, {sT1}
    v_lshl_add_u32 v{T+2}, v{T}, 2, {sT0}
    v_mul_u32_u24 v{T+2}, 896, v{T+2}
    v_add_u32 {vA3}, v{T+2}, v{T+1}
    s_lshr_b32 {sT0}, {sT0}, 1
    v_lshl_add_u32 v{T+2}, v{T}, 1, {sT0}
    v_mul_u32_u24 v{T+2}, 896, v{T+2}
    v_add_u32 {vA4}, v{T+2}, v{T+1}              ; w2 rows 128h+16w+2r+j
    v_and_b32 v{T}, 31, {vL}
    v_lshlrev_b32 {vA0}, 4, v{T}
    s_and_b32 {sT0}, s2, 31
    s_lshl_b32 {sT0}, {sT0}, 13
    s_lshl_b32 {sT1}, {sW}, 18
    s_add_u32 {sT0}, {sT0}, {sT1}
    v_lshl_add_u32 v8, {vL}, 4, {sT0}
    v_lshl_add_u32 v12, {vL}, 4, {sOWN}
    s_mul_i32 {sT1}, {sW}, 1536
    v_lshl_add_u32 v9, {vL}, 2, {sT1}
    """
    a(ADDRS)
    drain(nd0, NG)
    GB = KR + 96
    gl = "\n".join(f"buffer_load_dwordx4 v[{GB+4*u}:{GB+4*u+3}], v8, {SWS}, 0 offen offset:{QA+1024*u} sc1" for u in range(2))
    glb = gl.replace(f"offset:{QA} ", f"offset:{QB} ").replace(f"offset:{QA+1024} ", f"offset:{QB+1024} ")
    def wt_copy(must):
        lt, ld = a.newlabel("L_wt"), a.newlabel("L_wtd")
        a(f"""
{lt}:
        buffer_load_dwordx4 v[{GB+8}:{GB+11}], v12, {SWS}, 0 offen offset:{QA} sc1
        buffer_load_dwordx4 v[{GB+12}:{GB+15}], v12, {SWS}, 0 offen offset:{QA+1024} sc1
        s_waitcnt vmcnt(0)
        v_xor_b32 v10, {sTQ}, v{GB+11}
        v_bitop3_b32 v10, v10, {sTQ}, v{GB+15} bitop3:0xf6
        v_cmp_ne_u32 vcc, 0, v10
        s_cbranch_vccz {ld}s
        """, count=False)
        if must:
            spin_or(ld); a(f"s_branch {lt}")
        else:
            a(f"s_branch {ld}")
        a(f"""
{ld}s:
        buffer_store_dwordx4 v[{GB+8}:{GB+11}], v12, {SWS}, 0 offen offset:{QB} sc1
        buffer_store_dwordx4 v[{GB+12}:{GB+15}], v12, {SWS}, 0 offen offset:{QB+1024} sc1
{ld}:
        """, count=False)
    a(gl, count=False)
    drain(NG, NG + NGW)
    assert NG + NGW <= 24
    a("s_waitcnt vmcnt(0)")
    if "g" in skip or "r" in skip: a("s_branch L_gd")
    a(f"""
    s_mov_b32 {sMISS}, 0
L_g:
    v_xor_b32 v10, {sTQ}, v{GB+3}
    v_bitop3_b32 v10, v10, {sTQ}, v{GB+7} bitop3:0xf6
    v_cmp_ne_u32 vcc, 0, v10
    s_cbranch_vccz L_gd
    v_cmp_lt_u32 vcc, 7, v10
    s_cbranch_vccz L_grem
    """)
    spin_or("L_gd")
    a(f"s_add_u32 {sMISS}, {sMISS}, 1\ns_and_b32 s3, {sMISS}, 15\ns_cbranch_scc0 L_gfb\n{gl}\ns_waitcnt vmcnt(0)\ns_branch L_g\nL_gfb:", count=False)
    wt_copy(False)
    a(f"{glb}\ns_waitcnt vmcnt(0)\ns_branch L_g\nL_grem:", count=False)
    a(f"v_mov_b32 v10, {L_REM}\nv_mov_b32 v11, 1\nds_write_b32 v10, v11")
    wt_copy(True)
    a("L_gd:")
    stamp(12)
    for u in range(2):
        for th in range(3):
            a(f"ds_write_b32 v9, v{GB+4*u+th} offset:{L_QG+512*th+256*u}")
    lds_ticket(L_C3, 10)
    a(f"s_cmp_lg_u32 {sT0}, 7\ns_cbranch_scc1 L_noq\nv_lshlrev_b32 v9, 3, {vL}")
    a(f"v_lshlrev_b32 v8, 2, {vL}\nv_mov_b32 v11, 1\nv_mov_b32 v12, {L_QRDY}")
    def qreads(th):
        for w in range(8):
            a(f"ds_read_b64 v[{GB+16*(th%2)+2*w}:{GB+16*(th%2)+2*w+1}], v9 offset:{L_QG+1536*w+512*th}")
    qreads(0); qreads(1)
    for th in range(3):
        b = GB + 16 * (th % 2)
        a("s_waitcnt lgkmcnt(0)")
        for st in (1, 2, 4):
            for w in range(0, 8, 2 * st):
                for e in range(2): a(f"v_add_f32 v{b+2*w+e}, v{b+2*w+e}, v{b+2*(w+st)+e}")
        if th == 2: a(f"v_maximum3_f32 v{b}, v{b}, 0, 0\nv_maximum3_f32 v{b+1}, v{b+1}, 0, 0")
        a(f"v_cvt_pk_bf16_f32 v{13+th}, v{b}, v{b+1}\nds_write_b32 v8, v{13+th} offset:{L_Q+256*th}")
        if th == 0: qreads(2)
    a("s_waitcnt lgkmcnt(0)\nds_write_b32 v12, v11")
    stamp(17)
    a(f"""
L_noq:
    s_cmp_lg_u32 {sW}, 0
    s_cbranch_scc1 L_noclr
    s_add_u32 {sT0}, {sOWN}, {OP}
    v_lshl_add_u32 v{T}, {vL}, 4, {sT0}
    v_mov_b32 v8, -1
    v_mov_b32 v9, -1
    v_mov_b32 v10, -1
    v_mov_b32 v11, -1
    buffer_store_dwordx4 v[8:11], v{T}, {SWS}, 0 offen
L_noclr:
    """, count=False)
    drain(NG + NGW, 32)
    a("s_waitcnt vmcnt(0)")
    stamp(2)
    lds_wait(L_QRDY, f"ds_read_b128 v[{Q0}:{Q0+3}], {vA0} offset:{L_Q}\nds_read_b32 v{T+2}, v{T} offset:{L_REM-L_QRDY}", T, "L_rdy")
    a(f"v_readfirstlane_b32 {sREM}, v{T+2}")
    stamp(3)
    def R(j): return KR + 4 * j
    for g0 in range(0, 32, 8):
        for i in range(4):
            for j in range(g0, g0 + 8):
                a(f"v_dot2_f32_bf16 v{R(j)}, v{R(j)+i}, v{Q0+i}, {'0' if i == 0 else f'v{R(j)}'}")
    for j in range(0, 32, 2): a(f"v_permlane16_swap_b32 v{R(j)}, v{R(j+1)}")
    for j in range(0, 32, 2): a(f"v_add_f32 v{R(j)}, v{R(j)}, v{R(j+1)}")
    for st, ctl, m0, m1 in ((2, "row_ror:8", 3, 12), (4, "row_half_mirror", 5, 10)):
        for j in range(0, 32, 2 * st):
            a(f"v_add_f32_dpp v{R(j)}, v{R(j)}, v{R(j)} {ctl} row_mask:0xf bank_mask:{m0}")
        for j in range(0, 32, 2 * st):
            a(f"v_add_f32_dpp v{R(j)}, v{R(j+st)}, v{R(j+st)} {ctl} row_mask:0xf bank_mask:{m1}")
    for st, qp, m in ((8, "[2,3,0,1]", MB1), (16, "[1,0,3,2]", MB0)):
        for j in range(0, 32, st):
            a(f"v_add_f32_dpp v{R(j)}, v{R(j)}, v{R(j)} quad_perm:{qp} row_mask:0xf bank_mask:0xf")
        for j in range(0, 32, 2 * st):
            a(f"v_cndmask_b32 v{R(j)}, v{R(j)}, v{R(j+st)}, {m}")
    S = T + 8
    a(f"v_cvt_pk_bf16_f32 v{S}, 0, v{R(0)}\nv_mov_b32 v{T}, v{S}")
    allred("v_max_f32", T, T + 1)
    a(f"""
    v_sub_f32 v{S}, v{S}, v{T}
    v_mul_f32 v{S}, {CSC}, v{S}
    v_exp_f32 v{S}, v{S}
    v_mov_b32 v{T+1}, v{S}
    """)
    allred("v_add_f32", T + 1, T + 2)
    a(f"""
    s_lshl_b32 {sT0}, {sW}, 3
    v_mov_b32 v{T+2}, {sT0}
    ds_write_b64 v{T+2}, v[{T}:{T+1}] offset:{L_ML}
    v_cvt_pk_bf16_f32 v{P0}, v{S}, 0
    v_cvt_pk_bf16_f32 v{P0+1}, 0, v{S}
    v_mov_b32 v{P0+2}, v{P0}
    v_mov_b32 v{P0+3}, v{P0+1}
    v_permlane16_swap_b32 v{P0}, v{P0+2}
    v_permlane16_swap_b32 v{P0+1}, v{P0+3}
    """)
    lds_ticket(L_C2, T + 2)
    M4 = Q0
    a(f"""
    s_cmp_lg_u32 {sT0}, 7
    s_cbranch_scc1 L_noml
    v_and_b32 v{T+2}, 7, {vL}
    v_lshlrev_b32 v{T+3}, 3, v{T+2}
    ds_read_b64 v[{T+4}:{T+5}], v{T+3} offset:{L_ML}
    v_lshlrev_b32 v{T+3}, 2, v{T+2}
    v_mov_b32 v{T+2}, {sOWN}
    s_waitcnt lgkmcnt(0)
    v_mov_b32 v{M4}, v{T+4}
    """)
    allred("v_max_f32", M4, T + 1, bits=3)
    a(f"""
    v_sub_f32 v{T+4}, v{T+4}, v{M4}
    v_mul_f32 v{T+4}, {CSC}, v{T+4}
    v_exp_f32 v{T+4}, v{T+4}
    v_mul_f32 v{M4+1}, v{T+4}, v{T+5}
    ds_write_b32 v{T+3}, v{T+4} offset:{L_F}
    v_mov_b32 v{T+3}, {L_FRDY}
    v_mov_b32 v{T+7}, 1
    s_waitcnt lgkmcnt(0)
    ds_write_b32 v{T+3}, v{T+7}
    """)
    allred("v_add_f32", M4 + 1, T + 6, bits=3)
    a(f"""
    v_mov_b32 v{M4+2}, {sTA}
    v_mov_b32 v{M4+3}, {sTB}
    s_mov_b64 exec, 1
    v_add_u32 v{T+2}, {ML}, v{T+2}
    buffer_store_dwordx4 v[{M4}:{M4+3}], v{T+2}, {SWS}, 0 offen
    v_mov_b32 v{T+3}, {L_MLG}
    ds_write_b128 v{T+3}, v[{M4}:{M4+3}]
    s_mov_b64 exec, -1
    s_nop 1
L_noml:
    """, count=False)
    stamp(4)
    NVT = 4
    VL = KR + 4
    WOr = VL + 4 * NVT; W2r = WOr + 16; MLr = W2r + 8; EV = MLr + 4
    for i in range(8): a(f"v_mov_b32 v{ACC+i}, 0")
    def vreg(j): return VL + 4 * (j % NVT)
    def pv(j, reg=None):
        pr = P0 + 2 * (j & 1)
        n = ((j >> 1) & 1) << 3 | ((j >> 2) & 1) << 2 | ((j >> 3) & 1) << 1 | ((j >> 4) & 1)
        bc_step(ACC, vreg(j) if reg is None else reg, pr, pr + 1, n)
    mlload = f"buffer_load_dwordx4 v[{MLr}:{MLr+3}], {vA1}, {SWS}, 0 offen offset:{ML-OP} sc1"
    ACB = EV + 4
    FW = T + 7
    def w2part():
        a(f"""
        v_mov_b32 v{ACB}, 0
        s_cmp_eq_u32 {sS}, 7
        s_cbranch_scc1 L_now2b
        s_cmp_gt_u32 {sH}, 13
        s_cbranch_scc1 L_now2c
        v_lshrrev_b32 v{T}, 3, {vL}
        s_lshl_b32 {sT0}, {sW}, 5
        v_lshl_add_u32 v{T}, v{T}, 2, {sT0}
        ds_read_b32 v{T+4}, v{T} offset:{L_H}
        s_waitcnt lgkmcnt(0)
        v_and_b32 v{T}, 0xffff, v{T+4}
        v_lshlrev_b32 v{T+1}, 16, v{T+4}
        v_lshrrev_b32 v{T+2}, 16, v{T+4}
        v_and_b32 v{T+3}, 0xffff0000, v{T+4}
        """)
        gemv_step(ACB, W2r, T, T + 1, True)
        gemv_step(ACB, W2r + 4, T + 2, T + 3, False)
        red8(ACB)
        a(f"L_now2c:\nds_write_b32 v{COL}, v{ACB} offset:{L_YB}\nL_now2b:")
        a(f"""
        v_and_b32 v{T+4}, 31, {vL}
        v_lshlrev_b32 v{T+4}, 5, v{T+4}
        v_lshrrev_b32 v{T+5}, 5, {vL}
        v_lshl_add_u32 v{T+4}, v{T+5}, 4, v{T+4}
        s_mul_i32 {sT0}, {sW}, {OPS}
        v_add_u32 v{T+4}, {sT0}, v{T+4}
        s_lshl_b32 {sT0}, {sW}, 10
        s_lshl_b32 {sT1}, {sB}, 25
        s_add_u32 {sT0}, {sT0}, {sT1}
        s_lshl_b32 {sT1}, {sH}, 21
        s_add_u32 {sT0}, {sT0}, {sT1}
        s_lshl_b32 {sT1}, {sS}, 18
        s_add_u32 {sT0}, {sT0}, {sT1}
        v_lshl_add_u32 v{vD}, {vL}, 4, {sT0}
        v_and_b32 v{T+9}, 7, {vL}
        v_lshrrev_b32 v{T+8}, 3, {vL}
        v_lshlrev_b32 v{T+8}, 4, v{T+8}
        v_mul_u32_u24 v{T+9}, {OPS}, v{T+9}
        v_add_u32 v{T+8}, v{T+9}, v{T+8}
        s_lshl_b32 {sT0}, {sW}, 7
        v_add_u32 v{T+8}, {sT0}, v{T+8}
        s_lshl_b32 s78, 0x01010101, {sS}
        s_mov_b32 s79, s78
        """)
    def mlcalc(remote):
        retry(lambda: tag2_cond(MLr, T), mlload.replace(", 0 offen", ", s4 offen") if remote else mlload)
        a(f"v_mov_b32 v{T}, v{MLr}")
        allred("v_max_f32", T, T + 1, bits=3)
        a(f"""
        v_sub_f32 v{T}, v{MLr}, v{T}
        v_mul_f32 v{T}, {CSC}, v{T}
        v_exp_f32 v{T}, v{T}
        v_mul_f32 v{T+1}, v{T}, v{MLr+1}
        """)
        allred("v_add_f32", T + 1, T + 2, bits=3)
        a(f"v_rcp_f32 v{T+1}, v{T+1}\nv_mul_f32 v{F}, v{T}, v{T+1}")
    wl = [("o", j) for j in range(4)] + [("2", j) for j in range(2)]
    def wload(kind, j):
        lb = a.newlabel("L_nw")
        a(f"s_cmp_eq_u32 {sS}, 7\ns_cbranch_scc1 {lb}")
        if kind == "2":
            a(f"s_cmp_gt_u32 {sH}, 13\ns_cbranch_scc1 {lb}")
            a(f"buffer_load_dwordx4 v[{W2r+4*j}:{W2r+4*j+3}], {vA4}, {SW2}, 0 offen offset:{896*j} {wpol}", count=False)
        else:
            a(f"buffer_load_dwordx4 v[{WOr+4*j}:{WOr+4*j+3}], {vA3}, {SWO}, 0 offen offset:{896*j} {wpol}", count=False)
        a(f"{lb}:")
    VD = ACB + 8
    chunk_read(32, vreg(0))
    NR = 32 - ndir
    for j in range(NR):
        if wl and "2" not in skip: wload(*wl.pop(0))
        if j == 12:
            a("s_waitcnt vmcnt(0)"); w2part()
        if j == 16: a(mlload, count=False)
        if j == 20:
            lds_wait(L_FRDY, f"ds_read_b32 v{FW}, v{RA} offset:{L_F}", T, "L_frdy")
            a(f"s_waitcnt vmcnt(0)\ns_cmp_lg_u32 {sREM}, 0\ns_cbranch_scc1 L_nomlc")
            if "g" not in skip and "r" not in skip: mlcalc(False)
            a("L_nomlc:")
            if dry: a("s_mov_b64 exec, 0\ns_branch L_tail\nL_dryret:\ns_mov_b64 exec, -1")
        if j == NR - dpos:
            for k in range(ndir):
                a(f"s_mov_b32 s3, {(NR+k)*8192}\nbuffer_load_dwordx4 v[{VD+4*k}:{VD+4*k+3}], v{vD}, {SV}, s3 offen {pol}", count=False)
        if j < 48 - 32 and j % dstep == dstep - 1: done(32 + j)
        else: a("s_waitcnt lgkmcnt(0)")
        if j < 24 and j + 1 < NR: chunk_read(32 + j + 1, vreg(j + 1))
        pv(j); stamp(60 + j)
        if 24 <= j < NR - 1: chunk_read(32 + j + 1, vreg(j + 1), fast=(j >= NR - 3))
    for k in range(ndir):
        a(f"s_waitcnt vmcnt({ndir-1-k})")
        pv(NR + k, VD + 4 * k)
    stamp(5)
    a.phase = "tail"
    a("L_tail:")
    def guard(txt):
        if not dry: a(txt, count=False); return
        lb = a.newlabel("L_gd")
        a(f"s_cbranch_execz {lb}\n{txt}\n{lb}:", count=False)
    for k in range(4): a(f"v_permlane32_swap_b32 v{ACC+k}, v{ACC+k+4}")
    for k in range(4): a(f"v_add_f32 v{ACC+k}, v{ACC+k}, v{ACC+k+4}")
    for k in range(4): a(f"v_mul_f32 v{ACC+k}, v{FW}, v{ACC+k}")
    B = KR + 64
    def gcheck(grans, t):
        for k, g in enumerate(grans):
            if k == 0: a(f"v_xor_b32 v{t}, {sTA}, v{g+1}\nv_xor_b32 v{t+1}, {sTB}, v{g+3}")
            else: a(f"v_bitop3_b32 v{t}, v{t}, {sTA}, v{g+1} bitop3:0xf6\nv_bitop3_b32 v{t+1}, v{t+1}, {sTB}, v{g+3} bitop3:0xf6")
        a(f"v_or_b32 v{t}, v{t}, v{t+1}\nv_cmp_ne_u32 vcc, 0, v{t}")
    def sum_pairs(lds, stride, n):
        for w in range(n): a(f"ds_read_b64 v[{B+2*w}:{B+2*w+1}], v{T+8} offset:{lds+stride*w}")
        a("s_waitcnt lgkmcnt(0)")
        for st in (1, 2):
            for w in range(0, 8, 2 * st):
                a(f"v_add_f32 v{B+2*w}, v{B+2*w}, v{B+2*(w+st)}\nv_add_f32 v{B+2*w+1}, v{B+2*w+1}, v{B+2*(w+st)+1}")
        a(f"v_add_f32 v{PG}, v{B}, v{B+8}\nv_add_f32 v{PG+2}, v{B+1}, v{B+9}")
    PG = B + 16
    O = B + 24
    a(f"""
    ds_write_b128 v{T+4}, v[{ACC}:{ACC+3}] offset:{L_OP}
    s_waitcnt lgkmcnt(0)
    """)
    guard("s_barrier")
    stamp(14)
    opl = f"buffer_load_dwordx4 v[{O}:{O+3}], {vA2}, {SWS}, 0 offen sc1"
    a(f"s_cmp_lg_u32 {sREM}, 0\ns_cbranch_scc1 L_remote\nds_read_b128 v[{B}:{B+3}], v{T+8} offset:{L_OP}")
    a(f"s_cmp_eq_u32 {sS}, 7\ns_cbranch_scc1 L_nopl")
    guard(opl)
    a("L_nopl:\ns_waitcnt lgkmcnt(0)")
    for qp in ("quad_perm:[1,0,3,2]", "quad_perm:[2,3,0,1]", "row_half_mirror"):
        for i in range(4): a(f"v_add_f32_dpp v{B+i}, v{B+i}, v{B+i} {qp} row_mask:0xf bank_mask:0xf")
    for i in range(4): a(f"v_min_u32 v{B+i}, -2, v{B+i}")
    if at1:
        guard(f"s_mov_b64 exec, {MOWN}\nbuffer_atomic_swap_x2 v[{B}:{B+1}], {vA2}, {SWS}, 0 offen\nbuffer_atomic_swap_x2 v[{B+2}:{B+3}], {vA2}, {SWS}, 0 offen offset:8\ns_mov_b64 exec, -1")
    else:
        guard(f"s_mov_b64 exec, {MOWN}\nbuffer_store_dwordx4 v[{B}:{B+3}], {vA2}, {SWS}, 0 offen\ns_mov_b64 exec, -1")
    stamp(8)
    a(f"s_cmp_eq_u32 {sS}, 7\ns_cbranch_scc1 L_fin\ns_waitcnt vmcnt({2 if at1 else 1})")
    own = "\n".join(f"v_cndmask_b32 v{O+i}, v{O+i}, v{B+i}, {MOWN}" for i in range(4))
    stamp(9)
    def h1mul(r):
        a(f"v_mul_f32 v{O+6}, v{F}, v{r+3}\nv_mul_f32 v{O+4}, v{F}, v{r+2}\nv_mul_f32 v{O+2}, v{F}, v{r+1}\nv_mul_f32 v{O}, v{F}, v{r}")
    if h1p == 1:
        def c1():
            a(own); sent_cond([O, O + 1, O + 2, O + 3], T)
        retry(c1, (f"s_sleep {bo}\n" if bo else "") + opl)
        h1mul(O)
    else:
        sent_cond([O, O + 1, O + 2, O + 3], T)
        a("s_cbranch_vccz L_h1a")
        poll_pipe(4, [O + 8 + 4 * k for k in range(h1p)], lambda r: opl.replace(f"v[{O}:{O+3}]", f"v[{r}:{r+3}]"), 1, T, h1mul)
        a("s_branch L_hop1d\nL_h1a:")
        h1mul(O)
    a("L_hop1d:")
    stamp(6)
    for qp in ("quad_perm:[1,0,3,2]", "quad_perm:[2,3,0,1]", "row_half_mirror"):
        for i in range(4): a(f"v_add_f32_dpp v{O+2*i}, v{O+2*i}, v{O+2*i} {qp} row_mask:0xf bank_mask:0xf")
    for i in range(4): a(f"v_cvt_pk_bf16_f32 v{O+2*i+1}, 0, v{O+2*i}")
    for i in range(4): a(f"v_cvt_pk_bf16_f32 v{O+2*i}, v{O+2*i}, 0")
    for j in range(4): gemv_step(ACC, WOr + 4 * j, O + 2 * j, O + 2 * j + 1, j == 0)
    red8(ACC)
    a(f"""
    ds_write_b32 v{COL}, v{ACC} offset:{L_YA}
    v_and_b32 v{T+8}, 31, {vL}
    v_lshlrev_b32 v{T+8}, 3, v{T+8}
    s_add_u32 {sT1}, {sOWN}, {YA}
    v_lshl_add_u32 v{T+9}, v{T+8}, 1, {sT1}
    v_mov_b32 v{PG+1}, {sTA}
    v_mov_b32 v{PG+3}, {sTB}
    s_waitcnt lgkmcnt(0)
    """)
    guard("s_barrier")
    stamp(15)
    if dry: a(f"s_cbranch_execnz L_nd7\ns_cmp_eq_u32 {sW}, 7\ns_cbranch_scc1 L_lsvc\nL_nd7:")
    a(f"s_cmp_lg_u32 {sW}, 0\ns_cbranch_scc1 L_fin")
    sum_pairs(L_YA, 256, 8)
    if at2:
        guard(f"s_mov_b32 exec_hi, 0\nbuffer_atomic_swap_x2 v[{PG}:{PG+1}], v{T+9}, {SWS}, 0 offen sc1\nbuffer_atomic_swap_x2 v[{PG+2}:{PG+3}], v{T+9}, {SWS}, 0 offen offset:8 sc1\ns_mov_b64 exec, -1")
    else:
        guard(f"buffer_store_dwordx4 v[{PG}:{PG+3}], v{T+9}, {SWS}, 0 offen {ypol}")
    stamp(19)
    a("s_branch L_fin")
    a(f"""
L_remote:
    s_cbranch_execz L_fin
    s_mov_b32 s4, {BOFF}
    v_mov_b32 v{PG+1}, {sTA}
    v_mov_b32 v{PG+3}, {sTB}
    s_cmp_gt_u32 {sW}, 2
    s_cbranch_scc1 L_rem1
    s_cmp_eq_u32 {sW}, 2
    s_cbranch_scc1 L_remml
    s_lshl_b32 {sT0}, {sW}, 9
    v_lshl_add_u32 v{T+8}, {vL}, 3, {sT0}
    s_add_u32 {sT1}, {sOWN}, {OP}
    v_lshl_add_u32 v{T+9}, v{T+8}, 1, {sT1}
    """)
    sum_pairs(L_OP, OPS, 8)
    a(f"""
    s_branch L_remst
L_remml:
    v_mov_b32 v{T+8}, {L_MLG}
    ds_read_b128 v[{PG}:{PG+3}], v{T+8}
    s_add_u32 {sT1}, {sOWN}, {ML}
    v_mov_b32 v{T+9}, {sT1}
    s_waitcnt lgkmcnt(0)
L_remst:
    buffer_store_dwordx4 v[{PG}:{PG+3}], v{T+9}, {SWS}, s4 offen sc1
L_rem1:
    s_cmp_eq_u32 {sS}, 7
    s_cbranch_scc1 L_fin
    v_sub_u32 v{T+8}, {vA2}, {vA1}
    v_lshl_add_u32 v{T+8}, v{T+8}, 1, {vA1}
    """, count=False)
    mlcalc(True)
    oplb = (f"buffer_load_dwordx4 v[{O}:{O+3}], v{T+8}, {SWS}, s4 offen sc1\n"
            f"buffer_load_dwordx4 v[{O+4}:{O+7}], v{T+8}, {SWS}, s4 offen offset:16 sc1")
    a(oplb + "\ns_waitcnt vmcnt(0)", count=False)
    retry(lambda: gcheck([O, O + 4], T), oplb)
    for i in range(4): a(f"v_mul_f32 v{O+2*i}, v{F}, v{O+2*i}")
    a("s_branch L_hop1d")
    a(f"""
L_lsvc:
    s_cmp_eq_u32 {sS}, 7
    s_cbranch_scc1 L_fin
    s_lshl_b32 {sOWN}, s2, 13
    v_and_b32 v{T+8}, 31, {vL}
    v_lshlrev_b32 v{T+8}, 3, v{T+8}
    s_add_u32 {sT1}, {sOWN}, {YB}
    v_lshl_add_u32 v{T+9}, v{T+8}, 1, {sT1}
    v_mov_b32 v{PG+1}, {sTA}
    v_mov_b32 v{PG+3}, {sTB}
    """)
    guard("s_barrier")
    sum_pairs(L_YB, 256, 8)
    guard(f"buffer_store_dwordx4 v[{PG}:{PG+3}], v{T+9}, {SWS}, 0 offen sc1")
    a(f"""
    s_lshl_b32 {sT0}, {sS}, 1
    s_add_u32 {sT0}, {sT0}, {sB}
    s_cmp_lg_u32 {sT0}, {sH}
    s_cbranch_scc1 L_fin
    s_and_b32 {sT0}, s2, 0xf0
    s_lshl_b32 {sT0}, {sT0}, 13
    s_add_u32 {sT0}, {sT0}, {YA}
    v_lshrrev_b32 v{T+5}, 5, {vL}
    v_lshlrev_b32 v{T}, 13, v{T+5}
    v_lshl_add_u32 v{T}, v{T+8}, 1, v{T}
    v_add_u32 {vA0}, {sT0}, v{T}
    v_mov_b32 v{T+2}, {L_G}
    ds_read_b32 v{T+3}, v{T+2}
    """, count=False)
    for k in range(1, 8): a(f"s_mov_b32 s{3+k}, {k*2*SLOT}")
    so = ["0"] + [f"s{3+k}" for k in range(1, 8)]
    mk = lambda r, off: "\n".join(f"buffer_load_dwordx4 v[{r+4*k}:{r+4*k+3}], {vA0}, {SWS}, {so[k]} offen offset:{off} {ypol}" for k in range(8))
    YBr, YAr = KR, KR + 32
    sets = [KR + 32, KR + 64, KR + 96][:npoll]
    guard(mk(YBr, YB - YA))
    a(f"""
    v_lshrrev_b32 v{T+4}, 2, v{T+8}
    v_add_u32 v{T+4}, v{T+4}, v{T+5}
    s_mul_i32 {sT0}, {sB}, 448
    s_lshl_b32 {sT1}, {sS}, 6
    s_add_u32 {sT0}, {sT0}, {sT1}
    v_add_lshl_u32 v{T+4}, v{T+4}, {sT0}, 1
    s_waitcnt lgkmcnt(0)
    v_sub_f32 v{T+6}, 1.0, v{T+3}
    v_cvt_pk_bf16_f32 v{T+6}, 0, v{T+6}
    """)
    def tree(dst, src):
        for e in range(2):
            for k in range(0, 8, 2): a(f"v_add_f32 v{dst+4*e+k//2}, v{src+4*k+2*e}, v{src+4*k+4+2*e}")
        for e in range(2):
            a(f"v_add_f32 v{dst+4*e}, v{dst+4*e}, v{dst+4*e+1}\nv_add_f32 v{dst+4*e+2}, v{dst+4*e+2}, v{dst+4*e+3}")
        for e in range(2): a(f"v_add_f32 v{dst+4*e}, v{dst+4*e}, v{dst+4*e+2}")
        a(f"v_permlane32_swap_b32 v{dst}, v{dst+4}\nv_add_f32 v{dst}, v{dst}, v{dst+4}\nv_cvt_pk_bf16_f32 v{dst}, 0, v{dst}")
    RA_, RB_ = 8, 16
    n = len(sets)
    lt, ld = "L_pp", "L_ppd"
    guard((mk(sets[0], 0) + "\n" if touch else "") + "s_barrier")
    a("s_waitcnt vmcnt(0)")
    for r in sets[:-1]: guard(mk(r, 0))
    retry(lambda: gcheck([YBr + 4 * k for k in range(8)], T), mk(YBr, YB - YA))
    tree(RB_, YBr)
    a(f"v_mul_f32 v{RB_}, v{T+6}, v{RB_}\nv_cvt_pk_bf16_f32 v{RB_}, 0, v{RB_}\n{lt}:")
    for k in range(n):
        guard(mk(sets[(k + n - 1) % n], 0))
        a(f"s_waitcnt vmcnt({(n-1)*8})")
        gcheck([sets[k] + 4 * j for j in range(8)], T)
        a(f"s_cbranch_vccz L_pph{k}")
    spin_or("L_pph0")
    if ybo: a(f"s_sleep {ybo}")
    a(f"s_branch {lt}")
    for k in range(n - 1, -1, -1):
        a(f"L_pph{k}:")
        tree(RA_, sets[k])
        if k: a(f"s_branch {ld}")
    a(f"{ld}:")
    stamp(16)
    a(f"""
    v_mul_f32 v{RA_}, v{T+3}, v{RA_}
    v_cvt_pk_bf16_f32 v{RA_}, 0, v{RA_}
    v_add_f32 v{RA_}, v{RA_}, v{RB_}
    v_cvt_pk_bf16_f32 v{RA_}, v{RA_}, 0
    s_cbranch_execz L_fin
    buffer_store_short v{RA_}, v{T+4}, {SOUT}, 0 offen
    s_cmp_lg_u32 {sS}, 0
    s_cbranch_scc1 L_fin
    s_lshl_b32 {sT0}, {sB}, 7
    s_add_u32 {sT0}, {sT0}, {GEN}
    v_mov_b32 v{T}, {sT0}
    v_mov_b32 v{T+10}, {sTA}
    v_mov_b32 v{T+11}, {sTB}
    s_mov_b64 exec, 1
    buffer_store_dwordx2 v[{T+10}:{T+11}], v{T}, {SWS}, 0 offen
    s_mov_b64 exec, -1
L_fin:
    """, count=False)
    if dry: a("s_cbranch_execz L_dryret")
    if stamps and dbg:
        a(f"""
        s_cmp_lt_u32 {sW}, 8
        s_cbranch_scc1 L_end
        s_waitcnt vmcnt(0)
        s_memrealtime s[90:91]
        s_waitcnt lgkmcnt(0)
        s_not_b32 s84, s84
        v_mov_b32 v8, 0
        v_mov_b32 v9, s84
        v_writelane_b32 v9, s86, 1
        v_writelane_b32 v9, s88, 2
        v_writelane_b32 v9, s90, 3
        v_lshlrev_b32 v8, 2, v0
        s_mov_b64 exec, 15
        global_atomic_umax v8, v9, s[24:25] sc1
        s_waitcnt vmcnt(0)
        s_endpgm
        """, count=False)
    elif stamps:
        a("s_waitcnt vmcnt(0)")
        stamp(7)
        a(f"""
        s_waitcnt lgkmcnt(0)
        s_lshl_b32 s3, s2, 3
        s_add_u32 s3, s3, {sW}
        s_lshl_b32 s3, s3, 6
        s_add_u32 s3, s3, {128<<20}
        v_mov_b32 v{T}, s3
        s_mov_b64 exec, 1
        """)
        for k in range(4):
            for i in range(4): a(f"v_mov_b32 v{B+4*k+i}, s{STAMP0+4*k+i}")
            a(f"global_store_dwordx4 v{T}, v[{B+4*k}:{B+4*k+3}], s[26:27] offset:{16*k}", count=False)
    a("L_end:\ns_endpgm")
    pad = "\n.fill 4096, 4, 0xbf810000\n" if cpf else ""
    return f"""{HEADER}{DOC}; @launch grid=(256,1,1) block=(576,1,1) lds={L_END}
.amdgcn_target "amdgcn-amd-amdhsa--gfx950"
.text
.globl {KLABEL}
.p2align 8
.type {KLABEL},@function
{KLABEL}:
{a.text()}{pad}
.section .rodata,"a"
.p2align 6
.amdhsa_kernel {KLABEL}
  .amdhsa_next_free_vgpr 168
  .amdhsa_next_free_sgpr 102
  .amdhsa_accum_offset 168
  .amdhsa_group_segment_fixed_size 0
  .amdhsa_kernarg_size 96
  .amdhsa_user_sgpr_count 2
  .amdhsa_user_sgpr_kernarg_segment_ptr 1
  .amdhsa_system_sgpr_workgroup_id_x 1
.end_amdhsa_kernel
"""

if __name__ == "__main__":
    ap = argparse.ArgumentParser()
    ap.add_argument("-o", default="k.s")
    ap.add_argument("--stamps", default="")
    for n, d in (("w", 32), ("ng", 10), ("ngw", 2), ("npoll", 2), ("fpos", 3), ("spin", 1000000), ("dstep", 2), ("lsl", 1), ("bar0", 1), ("nburst", 4), ("warm", 1), ("bo", 0), ("ndir", 1), ("dpos", 4), ("dry", 0), ("touch", 1), ("ybo", 0), ("h1p", 1), ("rinv", 0), ("cpf", 2), ("nd0", 4), ("at1", 0), ("at2", 0), ("dbg", 0)):
        ap.add_argument("--" + n, type=int, default=d)
    ap.add_argument("--pol", default="nt")
    ap.add_argument("--wpol", default="nt")
    ap.add_argument("--ypol", default="sc1")
    ap.add_argument("--fpol", default="sc1")
    ap.add_argument("--rpol", default="sc1")
    ap.add_argument("--wsched", default="")
    ap.add_argument("--nocpf", action="store_true")
    ap.add_argument("--skip", default="")
    x = ap.parse_args()
    open(x.o, "w").write(gen(x.w, x.ng, x.ngw, x.pol, x.wpol, [int(t) for t in x.stamps.split(',')] if x.stamps else None,
                             x.spin, (0 if x.nocpf else x.cpf), x.npoll, x.fpos, x.skip, x.dstep, x.lsl, x.bar0, x.nburst, x.warm, x.bo, x.ndir, x.dpos, x.dry, x.ypol, x.wsched, x.touch, x.ybo, x.h1p, x.fpol, x.rpol, x.rinv, x.nd0, x.at1, x.at2, x.dbg))
```

```python
import sys, math, struct, argparse
from asmlib import Asm
from common import NAME, KLABEL

def f32bits(x):
    return struct.unpack("<I", struct.pack("<f", x))[0]

HEADER = open("cdna_kernels/" + NAME + ".s.ref").read().split("; Override launch")[0]

SLOT = 8192
QA, QB, OP, ML = 0, 2048, 4096, 6144
YA, YB = 6656, 7168
BOFF = 256 * SLOT
GEN = 2 * BOFF
WS_BYTES = GEN + 256
L_ML, L_F, L_C1, L_C2, L_C3, L_QRDY, L_FRDY, L_G, L_REM, L_Q, L_H = 0, 64, 96, 100, 104, 108, 112, 116, 120, 128, 640
L_OP, L_YB, L_YA = 1024, 9728, 11776
OPS = 1056
L_QH = 1024
L_QG = 13312
L_MLG = 25568
L_DONE = 25600
L_LAND = 25856
RING = 32768
L_END = RING + 131072
SK, SV, SWQ, SW1, SWO, SW2, SX, SGW, SOUT, SWS = [f"s[{n}:{n+3}]" for n in range(28, 68, 4)]
sTA, sTB, sOWN = "s68", "s69", "s70"
sH, sB, sS, sW = "s72", "s73", "s74", "s75"
sT0, sT1 = "s76", "s77"
MB1, MB0 = "s[78:79]", "s[80:81]"
sOFF, sSPIN = "s82", "s83"
STAMP0 = 84
vL, vKV = "v1", "v2"
vA0, vA1, vA2, vA3, vA4 = "v3", "v4", "v5", "v6", "v7"
Q0, ACC, P0, F, COL, RA, RBv = 8, 12, 20, 24, 25, 26, 27
sLAND = "s71"
sTQ = "s29"
sMISS, sREM = "s30", "s31"
vD = 7
MOWN = "s[78:79]"
CSC = hex(f32bits(math.log2(math.e) / 16))


DOC = """; -----------------------------------------------------------------------------------------------
; One launch, 256 workgroups (one per CU) x 9 waves.  Workgroup i: head h = 2*(i&7) + ((i>>3)&1),
; -----------------------------------------------------------------------------------------------
"""

def gen(W=32, NG=14, NGW=3, pol="nt", wpol="nt", stamps=None, spin=200000, cpf=True, npoll=3, fpos=3, skip="", dstep=2, lsl=1, bar0=1, nburst=4, warm=1, bo=0, ndir=1, dpos=4, dry=0, ypol='sc1', wsched='', touch=1, ybo=0, h1p=1, fpol='sc1', rpol='sc1', rinv=0, nd0=0, at1=0, at2=0, dbg=0, ybo2=0):
    a0 = Asm()
    class Filt:
        phase = "head"
        def __call__(self, txt, tag=None, count=True):
            out = []
            for l in txt.split("\n"):
                ls = l.strip()
                if self.phase == "head" and SWS in ls:
                    if "s" in skip and ls.startswith("buffer_store"): continue
                    if "g" in skip and ls.startswith("buffer_load"): continue
                    if "c" in skip and ls.startswith("buffer_store") and "v[8:11], v28" in ls: continue
                    if "p" in skip and ls.startswith("buffer_store") and ("v[8:11], v29" in ls or "v[12:15], v29" in ls): continue
                    if "m" in skip and ls.startswith("buffer_store") and "v[8:11], v30" in ls: continue
                    if "N" in skip and ls.startswith("buffer_store") and "sc1" not in ls: l = l + " nt"
                    if "0" in skip and ls.startswith("buffer_store") and "sc1" not in ls: l = l + " sc0"
                out.append(l)
            a0("\n".join(out), tag=tag, count=count)
        def __getattr__(self, k): return getattr(a0, k)
        def __setattr__(self, k, v):
            if k == "phase": object.__setattr__(self, k, v)
            else: setattr(a0, k, v)
    a = Filt()
    KR = 40
    NCH = 64 - ndir
    T = 28
    def stamp(i):
        if stamps and i in stamps:
            k = stamps.index(i)
            a(f"s_memrealtime s[{STAMP0+2*k}:{STAMP0+2*k+1}]")
    def srd(dst, src, size):
        n = int(dst[2:dst.index(":")])
        a(f"s_mov_b32 s{n}, s{src}\ns_mov_b32 s{n+1}, s{src+1}\ns_mov_b32 s{n+2}, {size}\ns_mov_b32 s{n+3}, 0x20000")
    SRDS = {SX: (4, 1792), SK: (6, 1 << 26), SV: (8, 1 << 26), SWQ: (10, 448 * 8192), SWO: (12, 4096 * 896), SW1: (16, 448 * 3584),
            SW2: (18, 1792 * 896), SGW: (20, 896), SOUT: (22, 1792), SWS: (26, WS_BYTES)}
    def srds(*names):
        for n in names: srd(n, *SRDS[n])
    def red8(acc):
        for k in range(4): a(f"v_permlane32_swap_b32 v{acc+k}, v{acc+k+4}")
        for k in range(4): a(f"v_add_f32 v{acc+k}, v{acc+k}, v{acc+k+4}")
        for k in range(2): a(f"v_permlane16_swap_b32 v{acc+k}, v{acc+k+2}")
        for k in range(2): a(f"v_add_f32 v{acc+k}, v{acc+k}, v{acc+k+2}")
        a(f"v_add_f32_dpp v{acc}, v{acc}, v{acc} row_ror:8 row_mask:0xf bank_mask:0x3")
        a(f"v_add_f32_dpp v{acc}, v{acc+1}, v{acc+1} row_ror:8 row_mask:0xf bank_mask:0xc")
    def gemv_step(acc, wreg, lo, hi, first, n=4):
        for i in range(n):
            a(f"v_dot2_f32_bf16 v{acc+2*i}, v{wreg+i}, v{lo}, {'0' if first else f'v{acc+2*i}'}")
            a(f"v_dot2_f32_bf16 v{acc+2*i+1}, v{wreg+i}, v{hi}, {'0' if first else f'v{acc+2*i+1}'}")
    def bc_step(acc, wreg, lo, hi, n):
        for i in range(4):
            a(f"v_dot2c_f32_bf16_dpp v{acc+2*i}, v{lo}, v{wreg+i} row_newbcast:{n} row_mask:0xf bank_mask:0xf")
            a(f"v_dot2c_f32_bf16_dpp v{acc+2*i+1}, v{hi}, v{wreg+i} row_newbcast:{n} row_mask:0xf bank_mask:0xf")
    def allred(op, v, t, bits=6):
        a(f"{op}_dpp v{v}, v{v}, v{v} quad_perm:[1,0,3,2] row_mask:0xf bank_mask:0xf")
        a(f"{op}_dpp v{v}, v{v}, v{v} quad_perm:[2,3,0,1] row_mask:0xf bank_mask:0xf")
        a(f"{op}_dpp v{v}, v{v}, v{v} row_half_mirror row_mask:0xf bank_mask:0xf")
        if bits > 3:
            a(f"{op}_dpp v{v}, v{v}, v{v} row_ror:8 row_mask:0xf bank_mask:0xf")
            a(f"v_mov_b32 v{t}, v{v}\nv_permlane16_swap_b32 v{v}, v{t}\n{op} v{v}, v{v}, v{t}")
            a(f"v_mov_b32 v{t}, v{v}\nv_permlane32_swap_b32 v{v}, v{t}\n{op} v{v}, v{v}, v{t}")
    def spin_or(ld):
        a(f"s_cmp_eq_u32 {sSPIN}, 0\ns_cbranch_scc1 {ld}\ns_sub_u32 {sSPIN}, {sSPIN}, 1")
    def retry(cond_code, reissue):
        lt, ld = a.newlabel("L_poll"), a.newlabel("L_pdone")
        a(f"{lt}:")
        cond_code()
        a(f"s_cbranch_vccz {ld}")
        spin_or(ld)
        a(reissue, count=False)
        a(f"s_waitcnt vmcnt(0)\ns_branch {lt}\n{ld}:")
    def sent_cond(regs, t):
        rs = list(regs)
        a(f"v_max3_u32 v{t}, v{rs[0]}, v{rs[1]}, v{rs[2]}"); rs = rs[3:]
        while len(rs) >= 2:
            a(f"v_max3_u32 v{t}, v{t}, v{rs[0]}, v{rs[1]}"); rs = rs[2:]
        if rs: a(f"v_max_u32 v{t}, v{t}, v{rs[0]}")
        a(f"v_cmp_eq_u32 vcc, -1, v{t}")
    def poll_sent(regs, reissue, t):
        retry(lambda: sent_cond(regs, t), reissue)
    def tag2_cond(g, t):
        a(f"v_xor_b32 v{t}, {sTA}, v{g+2}\nv_bitop3_b32 v{t}, v{t}, {sTB}, v{g+3} bitop3:0xf6\nv_cmp_ne_u32 vcc, 0, v{t}")
    def poll_pipe(nreg, sets, mk, nld, t, hit):
        n = len(sets)
        lt, ld = a.newlabel("L_pp"), a.newlabel("L_ppd")
        hits = [a.newlabel("L_pph") for _ in sets]
        for r in sets[:-1]:
            a(mk(r), count=False); a("s_nop 15\ns_nop 15")
        a(f"{lt}:")
        for k in range(n):
            a(mk(sets[(k + n - 1) % n]), count=False)
            a(f"s_waitcnt vmcnt({(n-1)*nld})")
            sent_cond(range(sets[k], sets[k] + nreg), t)
            a(f"s_cbranch_vccz {hits[k]}")
        spin_or(hits[0])
        a(f"s_branch {lt}")
        for k in range(n - 1, -1, -1):
            a(f"{hits[k]}:")
            hit(sets[k])
            if k: a(f"s_branch {ld}")
        a(f"{ld}:")
    def lds_ticket(addr, t):
        a(f"""
        v_mov_b32 v{t}, {addr}
        v_mov_b32 v{t+1}, 1
        s_waitcnt lgkmcnt(0)
        s_mov_b64 exec, 1
        ds_add_rtn_u32 v{t+1}, v{t}, v{t+1}
        s_mov_b64 exec, -1
        s_waitcnt lgkmcnt(0)
        v_readfirstlane_b32 {sT0}, v{t+1}
        """)
    def lds_wait(flag, extra, t, name):
        a(f"v_mov_b32 v{t}, {flag}\n{name}:\nds_read_b32 v{t+1}, v{t}\n{extra}\ns_waitcnt lgkmcnt(0)\nv_cmp_eq_u32 vcc, 1, v{t+1}\ns_cbranch_vccnz {name}d")
        spin_or(name + "d")
        a(f"s_sleep 1\ns_branch {name}\n{name}d:")

    def chunk_read(c, reg, fast=False):
        ok, sp = a.newlabel("L_ck"), a.newlabel("L_cs")
        a(f"""
        s_cmp_gt_u32 {sLAND}, {c}
        s_cbranch_scc1 {ok}
{sp}:
        ds_read_b32 v{T+11}, v{RA} offset:{L_LAND}
        s_waitcnt lgkmcnt(0)
        v_readfirstlane_b32 {sLAND}, v{T+11}
        s_cmp_gt_u32 {sLAND}, {c}
        s_cbranch_scc1 {ok}
        """)
        spin_or(ok)
        a(("" if fast else f"s_sleep {lsl}\n") + f"s_branch {sp}\n{ok}:")
        slot = c % 16
        a(f"ds_read_b128 v[{reg}:{reg+3}], v{vR0 if slot < 8 else vR1} offset:{(slot % 8) * 8192}")
    def done(c):
        a(f"v_mov_b32 v{T+10}, {c+1}\ns_waitcnt lgkmcnt(0)\ns_mov_b64 exec, 1\nds_write_b32 v{RBv}, v{T+10} offset:{L_DONE}\ns_mov_b64 exec, -1")
    def drain(c0, c1):
        for c in range(c0, c1):
            chunk_read(c, KR + 4 * c)
            if (c + 1) % dstep == 0 or c == c1 - 1: done(c)
    vR0, vR1 = 2, 0
    a(f"""
    s_load_dwordx4 s[36:39], s[0:1], 8
    v_readfirstlane_b32 {sW}, v0
    s_cmpk_ge_u32 s2, 256
    s_cbranch_scc1 L_end
    """)
    stamp(0)
    a(f"""
    s_lshr_b32 {sW}, {sW}, 6
    s_cbranch_scc0 L_loader
    """)
    if cpf:
        a(f"""
        s_getpc_b64 s[100:101]
        s_lshr_b32 s3, s2, 3
        s_lshl_b32 s3, s3, 9
        v_subrev_u32 v{T}, 64, v0
        v_cmp_gt_u32 vcc, 4, v{T}
        v_lshl_add_u32 v{T}, v{T}, 7, s3
        s_and_saveexec_b64 s[98:99], vcc
        s_cbranch_execz L_cons0
        global_load_dword v{F}, v{T}, s[100:101]
        """, count=False)
    DEC = f"""
    s_and_b32 {sH}, s2, 7
    s_lshl_b32 {sH}, {sH}, 1
    s_bfe_u32 {sT0}, s2, 0x10003
    s_add_u32 {sH}, {sH}, {sT0}
    s_bfe_u32 {sB}, s2, 0x10004
    s_lshr_b32 {sS}, s2, 5
    """
    a(f"""
    s_branch L_cons0
L_loader:
    {DEC}
    s_lshl_b32 {sT0}, {sB}, 4
    s_add_u32 {sT0}, {sT0}, {sH}
    s_lshl3_add_u32 {sT0}, {sT0}, {sS}
    s_lshl_b32 {sT0}, {sT0}, 18
    v_lshl_add_u32 v2, v0, 4, {sT0}
    s_lshl_b32 s30, 1, 26
    s_mov_b32 s31, 0x20000
    s_lshl_b32 m0, 1, 15
    s_mov_b32 s34, 0
    s_waitcnt lgkmcnt(0)
    s_mov_b64 s[28:29], s[36:37]
L_burst:
    """)
    assert RING == 1 << 15
    for p in range(4):
        a(f"buffer_load_dwordx4 v2, {SK}, s34 offen offset:{p*1024} {pol} lds", count=False)
    a(f"s_addk_i32 s34, 4096\ns_addk_i32 m0, 4096\ns_cmpk_lt_u32 s34, {nburst*8192}\ns_cbranch_scc1 L_burst")
    a(f"s_setprio 3\nv_mov_b32 {vL}, v0\ns_mov_b32 {sSPIN}, {spin}")
    stamp(199)
    a(f"""
    v_lshlrev_b32 v4, 2, {vL}
    v_mov_b32 v5, 0
    ds_write_b32 v4, v5 offset:{L_LAND}
    ds_write_b32 v4, v5 offset:{L_DONE}
    ds_write_b32 v4, v5 offset:{L_ML}
    v_and_b32 v6, 7, {vL}
    v_lshlrev_b32 v6, 2, v6
    s_mov_b32 s32, {nburst}                      ; chunk
    s_mov_b32 s33, 16
    s_waitcnt lgkmcnt(0)
    s_barrier
    s_branch L_ldok0
L_cons0:
    s_mov_b64 exec, -1
    s_load_dwordx16 s[4:19], s[0:1], 0
    s_load_dwordx8 s[20:27], s[0:1], 64
    {DEC}
    v_and_b32 {vL}, 63, v0
    s_mov_b32 {sSPIN}, {spin}
    s_sub_u32 {sW}, {sW}, 1
    s_mov_b32 {sLAND}, 0
    s_lshl_b32 {sT0}, {sW}, 10
    s_add_u32 {sT0}, {sT0}, {RING}
    v_lshl_add_u32 v{vR0}, {vL}, 4, {sT0}
    v_add_u32 v{vR1}, 0x10000, v{vR0}
    s_lshl_b32 {sT0}, {sW}, 2
    v_mov_b32 v{RBv}, {sT0}
    v_mov_b32 v{RA}, {sT0}
    {"s_barrier" if bar0 else ""}
    s_branch L_cons
    """)
    sched = [(int(t.split(":")[0]), int(t.split(":")[1])) for t in wsched.split(",")] if wsched else [(64, W)]
    sched[-1] = (NCH, sched[-1][1])
    for ph, (cend, Wp) in enumerate(sched):
        a(f"""
L_ld{ph}:
        s_cmp_lt_u32 s32, s33
        s_cbranch_scc1 L_ldok{ph}
L_ldfree{ph}:
        ds_read_b32 v7, v6 offset:{L_DONE}
        s_waitcnt lgkmcnt(0)
        v_min_u32_dpp v7, v7, v7 quad_perm:[1,0,3,2] row_mask:0xf bank_mask:0xf
        v_min_u32_dpp v7, v7, v7 quad_perm:[2,3,0,1] row_mask:0xf bank_mask:0xf
        v_min_u32_dpp v7, v7, v7 row_half_mirror row_mask:0xf bank_mask:0xf
        v_readfirstlane_b32 s33, v7
        s_add_u32 s33, s33, 16
        s_cmp_lt_u32 s32, s33
        s_cbranch_scc1 L_ldok{ph}
        """)
        spin_or(f"L_ldok{ph}")
        a(f"s_branch L_ldfree{ph}\nL_ldok{ph}:")
        for st in (stamps or []):
            if 200 <= st < 264:
                a(f"s_cmp_lg_u32 s32, {st-200}\ns_cbranch_scc1 L_lst{st}_{ph}"); stamp(st); a(f"L_lst{st}_{ph}:")
        pp = (Wp - 1) % 8; back = (Wp - 1 - pp) // 8 + 1
        a(f"""
        s_and_b32 s35, s32, 15
        s_lshl_b32 s35, s35, 13
        s_add_u32 s35, s35, {RING}
        s_mov_b32 m0, s35
        s_sub_u32 s40, s32, {back - 1}
        v_mov_b32 v5, s40
        """)
        for p in range(8):
            if p == 4: a("s_add_u32 s35, s35, 4096\ns_add_u32 s34, s34, 4096\ns_mov_b32 m0, s35")
            a(f"s_waitcnt vmcnt({Wp-1})")
            if p == pp: a(f"ds_write_b32 v4, v5 offset:{L_LAND}")
            a(f"buffer_load_dwordx4 v2, {SK}, s34 offen offset:{(p%4)*1024} {pol} lds", count=False)
        a(f"""
        s_add_u32 s34, s34, 4096
        s_add_u32 s32, s32, 1
        s_cmp_lg_u32 s32, 32
        s_cbranch_scc1 L_ldnsw{ph}
        s_mov_b32 s28, s38
        s_mov_b32 s29, s39
        s_mov_b32 s34, 0
L_ldnsw{ph}:
        s_cmp_lt_u32 s32, {cend}
        s_cbranch_scc1 L_ld{ph}
        """)
    W = sched[-1][1]
    assert sched[0][1] <= nburst * 8 + 1
    stamp(13)
    a("s_load_dwordx8 s[20:27], s[0:1], 64\ns_waitcnt lgkmcnt(0)")
    a(f"s_lshl_b32 s3, {sB}, 7\ns_add_u32 s3, s3, {GEN}\ns_load_dwordx2 s[68:69], s[26:27], s3")
    srds(SWS, SOUT)
    for k in range((W + 7) // 8 - 1, -1, -1):
        a(f"v_mov_b32 v5, {NCH-k}\ns_waitcnt vmcnt({8*k})\nds_write_b32 v4, v5 offset:{L_LAND}")
    a("s_waitcnt lgkmcnt(0)")
    stamp(5)
    if stamps: a(f"s_mul_i32 {sW}, s2, 7\ns_sub_u32 {sW}, 2048, {sW}")
    a(f"s_add_u32 {sTA}, s68, 8\ns_add_u32 {sTB}, s69, 1\ns_branch L_lsvc")
    a(f"""
L_cons:
    s_waitcnt lgkmcnt(0)
    s_lshl_b32 s3, {sB}, 7
    s_add_u32 s3, s3, {GEN}
    s_load_dwordx2 s[68:69], s[26:27], s3
    s_cmp_eq_u32 {sW}, 7
    s_cbranch_scc1 L_svc
    """)
    VE = KR + 64
    WQr, W1r, XQ, XF, AQ, AF = VE, VE + 16, VE + 24, VE + 26, VE + 32, VE + 40
    srds(SWQ)
    a(f"""
    s_mul_i32 {sT0}, {sS}, 56
    s_lshl_b32 {sT1}, {sW}, 3
    s_add_u32 {sT0}, {sT0}, {sT1}
    v_lshrrev_b32 v{T}, 5, {vL}                  ; half
    v_add_u32 v{T+1}, {sT0}, v{T}
    v_lshlrev_b32 {vA2}, 13, v{T+1}
    v_and_b32 v{T+2}, 31, {vL}
    v_lshl_add_u32 {vA2}, v{T+2}, 4, {vA2}
    s_lshl_b32 {sT1}, {sH}, 9
    v_add_u32 {vA2}, {sT1}, {vA2}
    """)
    for t in range(4):
        if t: a(f"s_mov_b32 {sT1}, {t*2*8192}")
        if "1" not in skip:
            a(f"buffer_load_dwordx4 v[{WQr+4*t}:{WQr+4*t+3}], {vA2}, {SWQ}, {sT1 if t else 0} offen {wpol}", tag="w")
    srds(SX, SW1)
    a(f"""
    v_lshrrev_b32 v{T+3}, 4, {vL}                ; rho
    v_and_b32 v{T+4}, 15, {vL}                   ; n
    v_add_u32 v{T+5}, {sT0}, v{T+3}
    v_mul_u32_u24 {vA3}, 3584, v{T+5}
    v_lshl_add_u32 {vA3}, v{T+4}, 4, {vA3}
    s_lshl_b32 {sT1}, {sH}, 8
    v_add_u32 {vA3}, {sT1}, {vA3}                ; w1 address
    s_cmp_gt_u32 {sH}, 13
    s_cbranch_scc1 L_nof1
    s_mov_b32 {sT1}, {4*3584}
    """)
    if "1" not in skip:
        a(f"buffer_load_dwordx4 v[{W1r}:{W1r+3}], {vA3}, {SW1}, 0 offen {wpol}", count=False)
        a(f"buffer_load_dwordx4 v[{W1r+4}:{W1r+7}], {vA3}, {SW1}, {sT1} offen {wpol}", count=False)
    a(f"""
L_nof1:
    s_mul_i32 {sT1}, {sB}, 448
    s_add_u32 {sT1}, {sT1}, {sT0}
    v_and_b32 v{T+5}, 3, {vL}
    v_lshl_add_u32 v{T+5}, v{T+5}, 1, v{T}
    v_add_lshl_u32 {vA0}, v{T+5}, {sT1}, 1
    v_and_b32 v{T+5}, 1, {vL}
    v_lshl_add_u32 v{T+5}, v{T+5}, 2, v{T+3}
    v_add_lshl_u32 {vA1}, v{T+5}, {sT1}, 1
    """)
    a(f"buffer_load_ushort v{XQ}, {vA0}, {SX}, 0 offen", tag="w")
    a(f"buffer_load_ushort v{XF}, {vA1}, {SX}, 0 offen", tag="w")
    if not bar0: a("s_barrier")
    srds(SWS, SWO, SW2, SOUT, SGW, SV)
    for i in range(16): a(f"v_mov_b32 v{AQ+i}, 0")
    a(f"""
    s_mul_i32 {sT0}, {sW}, 1536
    v_lshlrev_b32 v{T+2}, 5, v{T+2}
    v_lshl_add_u32 v{T+2}, v{T}, 4, v{T+2}
    v_add_u32 v{T+2}, {sT0}, v{T+2}
    v_lshlrev_b32 v{T+4}, 5, v{T+4}
    v_lshl_add_u32 v{T+4}, v{T+3}, 3, v{T+4}     ; 32n + 8*rho
    v_add_u32 v{T+4}, {sT0}, v{T+4}
    """)
    stamp(10)
    drain(0, nd0)
    a.wait_vm("w")
    stamp(11)
    a(f"v_lshlrev_b32 v{XQ+1}, 16, v{XQ}\nv_lshlrev_b32 v{XF+1}, 16, v{XF}")
    for t in range(4): bc_step(AQ, WQr + 4 * t, XQ, XQ + 1, t)
    for t in range(2): bc_step(AF, W1r + 4 * t, XF, XF + 1, t)
    for k in range(4): a(f"v_permlane32_swap_b32 v{AQ+k}, v{AQ+k+4}")
    for k in range(4): a(f"v_permlane32_swap_b32 v{AF+k}, v{AF+k+4}")
    for k in range(4): a(f"v_add_f32 v{AQ+k}, v{AQ+k}, v{AQ+k+4}")
    for k in range(4): a(f"v_add_f32 v{AF+k}, v{AF+k}, v{AF+k+4}")
    a(f"ds_write_b128 v{T+2}, v[{AQ}:{AQ+3}] offset:{L_QH}")
    for k in range(2): a(f"v_permlane16_swap_b32 v{AF+k}, v{AF+k+2}")
    for k in range(2): a(f"v_add_f32 v{AF+k}, v{AF+k}, v{AF+k+2}")
    a(f"ds_write_b64 v{T+4}, v[{AF}:{AF+1}] offset:{L_QH+1024}")
    lds_ticket(L_C1, T + 6)
    TAGS = f"""
    s_add_u32 {sTA}, s68, 8
    s_add_u32 {sTB}, s69, 1
    s_getreg_b32 {sTQ}, hwreg(HW_REG_XCC_ID, 0, 3)
    s_andn2_b32 s3, {sTA}, 7
    s_or_b32 {sTQ}, {sTQ}, s3
    """
    a(TAGS)
    PBs = [8, 12]
    PR = VE
    a(f"s_cmp_lg_u32 {sT0}, 6\ns_cbranch_scc1 L_k2\nv_lshlrev_b32 v{T}, 2, {vL}")
    for u in range(2):
        for th in range(3):
            for w in range(7):
                a(f"ds_read_b32 v{PR+24*u+8*th+w}, v{T} offset:{L_QH+1536*w+512*th+256*u}")
    a(f"s_lshl_b32 {sT0}, s2, 13\nv_lshl_add_u32 v{T+1}, {vL}, 4, {sT0}")
    for u in range(2): a(f"v_mov_b32 v{PBs[u]+3}, {sTQ}")
    a("s_waitcnt lgkmcnt(0)")
    for u in range(2):
        for th in range(3):
            b = PR + 24 * u + 8 * th
            a(f"v_add_f32 v{b}, v{b}, v{b+1}\nv_add_f32 v{b+2}, v{b+2}, v{b+3}\nv_add_f32 v{b+4}, v{b+4}, v{b+5}")
        for th in range(3):
            b = PR + 24 * u + 8 * th
            a(f"v_add_f32 v{b}, v{b}, v{b+2}\nv_add_f32 v{b+4}, v{b+4}, v{b+6}")
        for th in range(3):
            b = PR + 24 * u + 8 * th
            a(f"v_add_f32 v{PBs[u]+th}, v{b}, v{b+4}")
        a(f"buffer_store_dwordx4 v[{PBs[u]}:{PBs[u]+3}], v{T+1}, {SWS}, 0 offen offset:{QA+1024*u}", count=False)
    stamp(1)
    a("s_branch L_k2")
    a("L_svc:")
    a.vm = []
    GX = VE
    srds(SWS, SX, SGW)
    a(f"""
    s_mul_i32 s3, {sB}, 896
    v_lshlrev_b32 v{T+7}, 4, {vL}
    v_add_u32 v{T+8}, s3, v{T+7}
    v_cmp_gt_u32 vcc, 56, {vL}
    v_mov_b32 v{T+6}, 0x10000
    v_cndmask_b32 v{T+8}, v{T+6}, v{T+8}, vcc
    """)
    a(f"buffer_load_dwordx4 v[{GX}:{GX+3}], v{T+8}, {SX}, 0 offen", tag="w")
    a(f"buffer_load_dwordx4 v[{GX+4}:{GX+7}], v{T+7}, {SGW}, 0 offen", tag="w")
    a(f"""
    s_waitcnt lgkmcnt(0)
    """)
    if not bar0: a("s_barrier")
    a(TAGS)
    srds(SWO, SW2, SOUT, SWQ, SW1, SV)
    drain(0, nd0)
    a(f"""
    s_waitcnt vmcnt(0)
    """, count=False)
    G = T
    a(f"v_mov_b32 v{G}, 0")
    for i in range(4):
        x, g = GX + i, GX + 4 + i
        a(f"""
        v_lshlrev_b32 v{G+1}, 16, v{x}
        v_lshlrev_b32 v{G+2}, 16, v{g}
        v_and_b32 v{G+3}, 0xffff0000, v{x}
        v_and_b32 v{G+4}, 0xffff0000, v{g}
        v_mul_f32 v{G+1}, v{G+1}, v{G+2}
        v_mul_f32 v{G+3}, v{G+3}, v{G+4}
        v_cvt_pk_bf16_f32 v{G+1}, v{G+1}, v{G+3}
        v_lshlrev_b32 v{G+2}, 16, v{G+1}
        v_and_b32 v{G+3}, 0xffff0000, v{G+1}
        v_add_f32 v{G}, v{G}, v{G+2}
        v_add_f32 v{G}, v{G}, v{G+3}
        """)
    allred("v_add_f32", G, G + 1)
    a(f"""
    v_cvt_pk_bf16_f32 v{G}, 0, v{G}
    v_mul_f32 v{G}, {hex(f32bits(-math.log2(math.e)))}, v{G}
    v_exp_f32 v{G}, v{G}
    v_add_f32 v{G}, 1.0, v{G}
    v_rcp_f32 v{G}, v{G}
    v_cvt_pk_bf16_f32 v{G}, 0, v{G}
    v_mov_b32 v{G+1}, {L_G}
    ds_write_b32 v{G+1}, v{G}
L_k2:
    """)
    a.vm = []
    ADDRS = f"""
    s_mov_b32 s78, 0xcccccccc
    s_mov_b32 s79, 0xcccccccc
    s_mov_b32 s80, 0xaaaaaaaa
    s_mov_b32 s81, 0xaaaaaaaa
    s_lshl_b32 {sOWN}, s2, 13
    v_and_b32 v{T+1}, 7, {vL}
    v_lshrrev_b32 v{T}, 3, {vL}
    v_lshlrev_b32 v{COL}, 5, v{T+1}
    v_lshrrev_b32 v{T+2}, 5, {vL}
    v_lshl_add_u32 v{COL}, v{T+2}, 4, v{COL}
    v_bfe_u32 v{T+2}, {vL}, 4, 1
    v_lshl_add_u32 v{COL}, v{T+2}, 3, v{COL}
    v_bfe_u32 v{T+2}, {vL}, 3, 1
    v_lshl_add_u32 v{COL}, v{T+2}, 2, v{COL}
    s_lshl_b32 {sT1}, {sW}, 8
    v_add_u32 v{COL}, {sT1}, v{COL}
    s_and_b32 {sT0}, s2, 31
    s_lshl_b32 {sT0}, {sT0}, 13
    s_add_u32 {sT0}, {sT0}, {OP}
    v_lshlrev_b32 {vA1}, 18, v{T+1}
    v_add_u32 {vA1}, {sT0}, {vA1}
    v_lshl_add_u32 {vA2}, v{T}, 4, {vA1}
    s_lshl_b32 {sT1}, {sW}, 7
    v_add_u32 {vA2}, {sT1}, {vA2}
    s_lshl_b32 {sT1}, {sS}, 7
    v_lshl_add_u32 v{T+1}, v{T+1}, 4, {sT1}
    s_lshl_b32 {sT0}, {sH}, 8
    s_lshl_b32 {sT1}, {sW}, 5
    s_add_u32 {sT0}, {sT0}, {sT1}
    v_lshl_add_u32 v{T+2}, v{T}, 2, {sT0}
    v_mul_u32_u24 v{T+2}, 896, v{T+2}
    v_add_u32 {vA3}, v{T+2}, v{T+1}
    s_lshr_b32 {sT0}, {sT0}, 1
    v_lshl_add_u32 v{T+2}, v{T}, 1, {sT0}
    v_mul_u32_u24 v{T+2}, 896, v{T+2}
    v_add_u32 {vA4}, v{T+2}, v{T+1}              ; w2 rows 128h+16w+2r+j
    v_and_b32 v{T}, 31, {vL}
    v_lshlrev_b32 {vA0}, 4, v{T}
    s_and_b32 {sT0}, s2, 31
    s_lshl_b32 {sT0}, {sT0}, 13
    s_lshl_b32 {sT1}, {sW}, 18
    s_add_u32 {sT0}, {sT0}, {sT1}
    v_lshl_add_u32 v8, {vL}, 4, {sT0}
    v_lshl_add_u32 v12, {vL}, 4, {sOWN}
    s_mul_i32 {sT1}, {sW}, 1536
    v_lshl_add_u32 v9, {vL}, 2, {sT1}
    """
    a(ADDRS)
    drain(nd0, NG)
    GB = KR + 96
    gl = "\n".join(f"buffer_load_dwordx4 v[{GB+4*u}:{GB+4*u+3}], v8, {SWS}, 0 offen offset:{QA+1024*u} sc1" for u in range(2))
    glb = gl.replace(f"offset:{QA} ", f"offset:{QB} ").replace(f"offset:{QA+1024} ", f"offset:{QB+1024} ")
    def wt_copy(must):
        lt, ld = a.newlabel("L_wt"), a.newlabel("L_wtd")
        a(f"""
{lt}:
        buffer_load_dwordx4 v[{GB+8}:{GB+11}], v12, {SWS}, 0 offen offset:{QA} sc1
        buffer_load_dwordx4 v[{GB+12}:{GB+15}], v12, {SWS}, 0 offen offset:{QA+1024} sc1
        s_waitcnt vmcnt(0)
        v_xor_b32 v10, {sTQ}, v{GB+11}
        v_bitop3_b32 v10, v10, {sTQ}, v{GB+15} bitop3:0xf6
        v_cmp_ne_u32 vcc, 0, v10
        s_cbranch_vccz {ld}s
        """, count=False)
        if must:
            spin_or(ld); a(f"s_branch {lt}")
        else:
            a(f"s_branch {ld}")
        a(f"""
{ld}s:
        buffer_store_dwordx4 v[{GB+8}:{GB+11}], v12, {SWS}, 0 offen offset:{QB} sc1
        buffer_store_dwordx4 v[{GB+12}:{GB+15}], v12, {SWS}, 0 offen offset:{QB+1024} sc1
{ld}:
        """, count=False)
    a(gl, count=False)
    drain(NG, NG + NGW)
    assert NG + NGW <= 24
    a("s_waitcnt vmcnt(0)")
    if "g" in skip or "r" in skip: a("s_branch L_gd")
    a(f"""
    s_mov_b32 {sMISS}, 0
L_g:
    v_xor_b32 v10, {sTQ}, v{GB+3}
    v_bitop3_b32 v10, v10, {sTQ}, v{GB+7} bitop3:0xf6
    v_cmp_ne_u32 vcc, 0, v10
    s_cbranch_vccz L_gd
    v_cmp_lt_u32 vcc, 7, v10
    s_cbranch_vccz L_grem
    """)
    spin_or("L_gd")
    a(f"s_add_u32 {sMISS}, {sMISS}, 1\ns_and_b32 s3, {sMISS}, 15\ns_cbranch_scc0 L_gfb\n{gl}\ns_waitcnt vmcnt(0)\ns_branch L_g\nL_gfb:", count=False)
    wt_copy(False)
    a(f"{glb}\ns_waitcnt vmcnt(0)\ns_branch L_g\nL_grem:", count=False)
    a(f"v_mov_b32 v10, {L_REM}\nv_mov_b32 v11, 1\nds_write_b32 v10, v11")
    wt_copy(True)
    a("L_gd:")
    stamp(12)
    for u in range(2):
        for th in range(3):
            a(f"ds_write_b32 v9, v{GB+4*u+th} offset:{L_QG+512*th+256*u}")
    lds_ticket(L_C3, 10)
    a(f"s_cmp_lg_u32 {sT0}, 7\ns_cbranch_scc1 L_noq\nv_lshlrev_b32 v9, 3, {vL}")
    a(f"v_lshlrev_b32 v8, 2, {vL}\nv_mov_b32 v11, 1\nv_mov_b32 v12, {L_QRDY}")
    def qreads(th):
        for w in range(8):
            a(f"ds_read_b64 v[{GB+16*(th%2)+2*w}:{GB+16*(th%2)+2*w+1}], v9 offset:{L_QG+1536*w+512*th}")
    qreads(0); qreads(1)
    for th in range(3):
        b = GB + 16 * (th % 2)
        a("s_waitcnt lgkmcnt(0)")
        for st in (1, 2, 4):
            for w in range(0, 8, 2 * st):
                for e in range(2): a(f"v_add_f32 v{b+2*w+e}, v{b+2*w+e}, v{b+2*(w+st)+e}")
        if th == 2: a(f"v_maximum3_f32 v{b}, v{b}, 0, 0\nv_maximum3_f32 v{b+1}, v{b+1}, 0, 0")
        a(f"v_cvt_pk_bf16_f32 v{13+th}, v{b}, v{b+1}\nds_write_b32 v8, v{13+th} offset:{L_Q+256*th}")
        if th == 0: qreads(2)
    a("s_waitcnt lgkmcnt(0)\nds_write_b32 v12, v11")
    stamp(17)
    a(f"""
L_noq:
    s_cmp_lg_u32 {sW}, 0
    s_cbranch_scc1 L_noclr
    s_add_u32 {sT0}, {sOWN}, {OP}
    v_lshl_add_u32 v{T}, {vL}, 4, {sT0}
    v_mov_b32 v8, -1
    v_mov_b32 v9, -1
    v_mov_b32 v10, -1
    v_mov_b32 v11, -1
    buffer_store_dwordx4 v[8:11], v{T}, {SWS}, 0 offen
L_noclr:
    """, count=False)
    drain(NG + NGW, 32)
    a("s_waitcnt vmcnt(0)")
    stamp(2)
    lds_wait(L_QRDY, f"ds_read_b128 v[{Q0}:{Q0+3}], {vA0} offset:{L_Q}\nds_read_b32 v{T+2}, v{T} offset:{L_REM-L_QRDY}", T, "L_rdy")
    a(f"v_readfirstlane_b32 {sREM}, v{T+2}")
    stamp(3)
    def R(j): return KR + 4 * j
    for g0 in range(0, 32, 8):
        for i in range(4):
            for j in range(g0, g0 + 8):
                a(f"v_dot2_f32_bf16 v{R(j)}, v{R(j)+i}, v{Q0+i}, {'0' if i == 0 else f'v{R(j)}'}")
    for j in range(0, 32, 2): a(f"v_permlane16_swap_b32 v{R(j)}, v{R(j+1)}")
    for j in range(0, 32, 2): a(f"v_add_f32 v{R(j)}, v{R(j)}, v{R(j+1)}")
    for st, ctl, m0, m1 in ((2, "row_ror:8", 3, 12), (4, "row_half_mirror", 5, 10)):
        for j in range(0, 32, 2 * st):
            a(f"v_add_f32_dpp v{R(j)}, v{R(j)}, v{R(j)} {ctl} row_mask:0xf bank_mask:{m0}")
        for j in range(0, 32, 2 * st):
            a(f"v_add_f32_dpp v{R(j)}, v{R(j+st)}, v{R(j+st)} {ctl} row_mask:0xf bank_mask:{m1}")
    for st, qp, m in ((8, "[2,3,0,1]", MB1), (16, "[1,0,3,2]", MB0)):
        for j in range(0, 32, st):
            a(f"v_add_f32_dpp v{R(j)}, v{R(j)}, v{R(j)} quad_perm:{qp} row_mask:0xf bank_mask:0xf")
        for j in range(0, 32, 2 * st):
            a(f"v_cndmask_b32 v{R(j)}, v{R(j)}, v{R(j+st)}, {m}")
    S = T + 8
    a(f"v_cvt_pk_bf16_f32 v{S}, 0, v{R(0)}\nv_mov_b32 v{T}, v{S}")
    allred("v_max_f32", T, T + 1)
    a(f"""
    v_sub_f32 v{S}, v{S}, v{T}
    v_mul_f32 v{S}, {CSC}, v{S}
    v_exp_f32 v{S}, v{S}
    v_mov_b32 v{T+1}, v{S}
    """)
    allred("v_add_f32", T + 1, T + 2)
    a(f"""
    s_lshl_b32 {sT0}, {sW}, 3
    v_mov_b32 v{T+2}, {sT0}
    ds_write_b64 v{T+2}, v[{T}:{T+1}] offset:{L_ML}
    v_cvt_pk_bf16_f32 v{P0}, v{S}, 0
    v_cvt_pk_bf16_f32 v{P0+1}, 0, v{S}
    v_mov_b32 v{P0+2}, v{P0}
    v_mov_b32 v{P0+3}, v{P0+1}
    v_permlane16_swap_b32 v{P0}, v{P0+2}
    v_permlane16_swap_b32 v{P0+1}, v{P0+3}
    """)
    lds_ticket(L_C2, T + 2)
    M4 = Q0
    a(f"""
    s_cmp_lg_u32 {sT0}, 7
    s_cbranch_scc1 L_noml
    v_and_b32 v{T+2}, 7, {vL}
    v_lshlrev_b32 v{T+3}, 3, v{T+2}
    ds_read_b64 v[{T+4}:{T+5}], v{T+3} offset:{L_ML}
    v_lshlrev_b32 v{T+3}, 2, v{T+2}
    v_mov_b32 v{T+2}, {sOWN}
    s_waitcnt lgkmcnt(0)
    v_mov_b32 v{M4}, v{T+4}
    """)
    allred("v_max_f32", M4, T + 1, bits=3)
    a(f"""
    v_sub_f32 v{T+4}, v{T+4}, v{M4}
    v_mul_f32 v{T+4}, {CSC}, v{T+4}
    v_exp_f32 v{T+4}, v{T+4}
    v_mul_f32 v{M4+1}, v{T+4}, v{T+5}
    ds_write_b32 v{T+3}, v{T+4} offset:{L_F}
    v_mov_b32 v{T+3}, {L_FRDY}
    v_mov_b32 v{T+7}, 1
    s_waitcnt lgkmcnt(0)
    ds_write_b32 v{T+3}, v{T+7}
    """)
    allred("v_add_f32", M4 + 1, T + 6, bits=3)
    a(f"""
    v_mov_b32 v{M4+2}, {sTA}
    v_mov_b32 v{M4+3}, {sTB}
    s_mov_b64 exec, 1
    v_add_u32 v{T+2}, {ML}, v{T+2}
    buffer_store_dwordx4 v[{M4}:{M4+3}], v{T+2}, {SWS}, 0 offen
    v_mov_b32 v{T+3}, {L_MLG}
    ds_write_b128 v{T+3}, v[{M4}:{M4+3}]
    s_mov_b64 exec, -1
    s_nop 1
L_noml:
    """, count=False)
    stamp(4)
    NVT = 4
    VL = KR + 4
    WOr = VL + 4 * NVT; W2r = WOr + 16; MLr = W2r + 8; EV = MLr + 4
    for i in range(8): a(f"v_mov_b32 v{ACC+i}, 0")
    def vreg(j): return VL + 4 * (j % NVT)
    def pv(j, reg=None):
        pr = P0 + 2 * (j & 1)
        n = ((j >> 1) & 1) << 3 | ((j >> 2) & 1) << 2 | ((j >> 3) & 1) << 1 | ((j >> 4) & 1)
        bc_step(ACC, vreg(j) if reg is None else reg, pr, pr + 1, n)
    mlload = f"buffer_load_dwordx4 v[{MLr}:{MLr+3}], {vA1}, {SWS}, 0 offen offset:{ML-OP} sc1"
    ACB = EV + 4
    FW = T + 7
    def w2part():
        a(f"""
        v_mov_b32 v{ACB}, 0
        s_cmp_eq_u32 {sS}, 7
        s_cbranch_scc1 L_now2b
        s_cmp_gt_u32 {sH}, 13
        s_cbranch_scc1 L_now2c
        v_lshrrev_b32 v{T}, 3, {vL}
        s_lshl_b32 {sT0}, {sW}, 5
        v_lshl_add_u32 v{T}, v{T}, 2, {sT0}
        ds_read_b32 v{T+4}, v{T} offset:{L_H}
        s_waitcnt lgkmcnt(0)
        v_and_b32 v{T}, 0xffff, v{T+4}
        v_lshlrev_b32 v{T+1}, 16, v{T+4}
        v_lshrrev_b32 v{T+2}, 16, v{T+4}
        v_and_b32 v{T+3}, 0xffff0000, v{T+4}
        """)
        gemv_step(ACB, W2r, T, T + 1, True)
        gemv_step(ACB, W2r + 4, T + 2, T + 3, False)
        red8(ACB)
        a(f"L_now2c:\nds_write_b32 v{COL}, v{ACB} offset:{L_YB}\nL_now2b:")
        a(f"""
        v_and_b32 v{T+4}, 31, {vL}
        v_lshlrev_b32 v{T+4}, 5, v{T+4}
        v_lshrrev_b32 v{T+5}, 5, {vL}
        v_lshl_add_u32 v{T+4}, v{T+5}, 4, v{T+4}
        s_mul_i32 {sT0}, {sW}, {OPS}
        v_add_u32 v{T+4}, {sT0}, v{T+4}
        s_lshl_b32 {sT0}, {sW}, 10
        s_lshl_b32 {sT1}, {sB}, 25
        s_add_u32 {sT0}, {sT0}, {sT1}
        s_lshl_b32 {sT1}, {sH}, 21
        s_add_u32 {sT0}, {sT0}, {sT1}
        s_lshl_b32 {sT1}, {sS}, 18
        s_add_u32 {sT0}, {sT0}, {sT1}
        v_lshl_add_u32 v{vD}, {vL}, 4, {sT0}
        v_and_b32 v{T+9}, 7, {vL}
        v_lshrrev_b32 v{T+8}, 3, {vL}
        v_lshlrev_b32 v{T+8}, 4, v{T+8}
        v_mul_u32_u24 v{T+9}, {OPS}, v{T+9}
        v_add_u32 v{T+8}, v{T+9}, v{T+8}
        s_lshl_b32 {sT0}, {sW}, 7
        v_add_u32 v{T+8}, {sT0}, v{T+8}
        s_lshl_b32 s78, 0x01010101, {sS}
        s_mov_b32 s79, s78
        """)
    def mlcalc(remote):
        retry(lambda: tag2_cond(MLr, T), mlload.replace(", 0 offen", ", s4 offen") if remote else mlload)
        a(f"v_mov_b32 v{T}, v{MLr}")
        allred("v_max_f32", T, T + 1, bits=3)
        a(f"""
        v_sub_f32 v{T}, v{MLr}, v{T}
        v_mul_f32 v{T}, {CSC}, v{T}
        v_exp_f32 v{T}, v{T}
        v_mul_f32 v{T+1}, v{T}, v{MLr+1}
        """)
        allred("v_add_f32", T + 1, T + 2, bits=3)
        a(f"v_rcp_f32 v{T+1}, v{T+1}\nv_mul_f32 v{F}, v{T}, v{T+1}")
    wl = [("o", j) for j in range(4)] + [("2", j) for j in range(2)]
    def wload(kind, j):
        lb = a.newlabel("L_nw")
        a(f"s_cmp_eq_u32 {sS}, 7\ns_cbranch_scc1 {lb}")
        if kind == "2":
            a(f"s_cmp_gt_u32 {sH}, 13\ns_cbranch_scc1 {lb}")
            a(f"buffer_load_dwordx4 v[{W2r+4*j}:{W2r+4*j+3}], {vA4}, {SW2}, 0 offen offset:{896*j} {wpol}", count=False)
        else:
            a(f"buffer_load_dwordx4 v[{WOr+4*j}:{WOr+4*j+3}], {vA3}, {SWO}, 0 offen offset:{896*j} {wpol}", count=False)
        a(f"{lb}:")
    WP = 140
    VD = ACB + 8
    chunk_read(32, vreg(0))
    NR = 32 - ndir
    for j in range(NR):
        if wl and "2" not in skip: wload(*wl.pop(0))
        if j == 12:
            a("s_waitcnt vmcnt(0)"); w2part()
            a("s_mov_b32 s80, 0x05040100\ns_mov_b32 s81, 0x07060302")
            for pr in range(2):
                for i in range(4):
                    a(f"v_perm_b32 v{WP+8*pr+2*i}, v{WOr+8*pr+4+i}, v{WOr+8*pr+i}, s80\nv_perm_b32 v{WP+8*pr+2*i+1}, v{WOr+8*pr+4+i}, v{WOr+8*pr+i}, s81")
        if j == 16: a(mlload, count=False)
        if j == 20:
            lds_wait(L_FRDY, f"ds_read_b32 v{FW}, v{RA} offset:{L_F}", T, "L_frdy")
            a(f"s_waitcnt vmcnt(0)\ns_cmp_lg_u32 {sREM}, 0\ns_cbranch_scc1 L_nomlc")
            if "g" not in skip and "r" not in skip: mlcalc(False)
            a("L_nomlc:")
            if dry: a("s_mov_b64 exec, 0\ns_branch L_tail\nL_dryret:\ns_mov_b64 exec, -1")
        if j == NR - dpos:
            for k in range(ndir):
                a(f"s_mov_b32 s3, {(NR+k)*8192}\nbuffer_load_dwordx4 v[{VD+4*k}:{VD+4*k+3}], v{vD}, {SV}, s3 offen {pol}", count=False)
        if j < 48 - 32 and j % dstep == dstep - 1: done(32 + j)
        else: a("s_waitcnt lgkmcnt(0)")
        if j < 24 and j + 1 < NR: chunk_read(32 + j + 1, vreg(j + 1))
        pv(j); stamp(60 + j)
        if 24 <= j < NR - 1: chunk_read(32 + j + 1, vreg(j + 1), fast=(j >= NR - 3))
    for k in range(ndir):
        a(f"s_waitcnt vmcnt({ndir-1-k})")
        pv(NR + k, VD + 4 * k)
    stamp(5)
    a.phase = "tail"
    a("L_tail:")
    def guard(txt):
        if not dry: a(txt, count=False); return
        lb = a.newlabel("L_gd")
        a(f"s_cbranch_execz {lb}\n{txt}\n{lb}:", count=False)
    for k in range(4): a(f"v_permlane32_swap_b32 v{ACC+k}, v{ACC+k+4}")
    for k in range(4): a(f"v_add_f32 v{ACC+k}, v{ACC+k}, v{ACC+k+4}")
    for k in range(4): a(f"v_mul_f32 v{ACC+k}, v{FW}, v{ACC+k}")
    B = KR + 64
    def gcheck(grans, t):
        for k, g in enumerate(grans):
            if k == 0: a(f"v_xor_b32 v{t}, {sTA}, v{g+1}\nv_xor_b32 v{t+1}, {sTB}, v{g+3}")
            else: a(f"v_bitop3_b32 v{t}, v{t}, {sTA}, v{g+1} bitop3:0xf6\nv_bitop3_b32 v{t+1}, v{t+1}, {sTB}, v{g+3} bitop3:0xf6")
        a(f"v_or_b32 v{t}, v{t}, v{t+1}\nv_cmp_ne_u32 vcc, 0, v{t}")
    def sum_pairs(lds, stride, n):
        for w in range(n): a(f"ds_read_b64 v[{B+2*w}:{B+2*w+1}], v{T+8} offset:{lds+stride*w}")
        a("s_waitcnt lgkmcnt(0)")
        for st in (1, 2):
            for w in range(0, 8, 2 * st):
                a(f"v_add_f32 v{B+2*w}, v{B+2*w}, v{B+2*(w+st)}\nv_add_f32 v{B+2*w+1}, v{B+2*w+1}, v{B+2*(w+st)+1}")
        a(f"v_add_f32 v{PG}, v{B}, v{B+8}\nv_add_f32 v{PG+2}, v{B+1}, v{B+9}")
    PG = B + 16
    O = B + 24
    a(f"""
    ds_write_b128 v{T+4}, v[{ACC}:{ACC+3}] offset:{L_OP}
    s_waitcnt lgkmcnt(0)
    """)
    guard("s_barrier")
    stamp(14)
    opl = f"buffer_load_dwordx4 v[{O}:{O+3}], {vA2}, {SWS}, 0 offen sc1"
    a(f"s_cmp_lg_u32 {sREM}, 0\ns_cbranch_scc1 L_remote\nds_read_b128 v[{B}:{B+3}], v{T+8} offset:{L_OP}")
    a(f"s_cmp_eq_u32 {sS}, 7\ns_cbranch_scc1 L_nopl")
    guard(opl)
    a("L_nopl:\ns_waitcnt lgkmcnt(0)")
    for qp in ("quad_perm:[1,0,3,2]", "quad_perm:[2,3,0,1]", "row_half_mirror"):
        for i in range(4): a(f"v_add_f32_dpp v{B+i}, v{B+i}, v{B+i} {qp} row_mask:0xf bank_mask:0xf")
    for i in range(4): a(f"v_min_u32 v{B+i}, -2, v{B+i}")
    if at1:
        guard(f"s_mov_b64 exec, {MOWN}\nbuffer_atomic_swap_x2 v[{B}:{B+1}], {vA2}, {SWS}, 0 offen\nbuffer_atomic_swap_x2 v[{B+2}:{B+3}], {vA2}, {SWS}, 0 offen offset:8\ns_mov_b64 exec, -1")
    else:
        guard(f"s_mov_b64 exec, {MOWN}\nbuffer_store_dwordx4 v[{B}:{B+3}], {vA2}, {SWS}, 0 offen\ns_mov_b64 exec, -1")
    stamp(8)
    a(f"s_cmp_eq_u32 {sS}, 7\ns_cbranch_scc1 L_fin\ns_waitcnt vmcnt({2 if at1 else 1})")
    own = "\n".join(f"v_cndmask_b32 v{O+i}, v{O+i}, v{B+i}, {MOWN}" for i in range(4))
    stamp(9)
    def h1mul(r):
        a(f"v_mul_f32 v{O+6}, v{F}, v{r+3}\nv_mul_f32 v{O+4}, v{F}, v{r+2}\nv_mul_f32 v{O+2}, v{F}, v{r+1}\nv_mul_f32 v{O}, v{F}, v{r}")
    if h1p == 1:
        def c1():
            a(own); sent_cond([O, O + 1, O + 2, O + 3], T)
        retry(c1, (f"s_sleep {bo}\n" if bo else "") + opl)
        h1mul(O)
    else:
        sent_cond([O, O + 1, O + 2, O + 3], T)
        a("s_cbranch_vccz L_h1a")
        poll_pipe(4, [O + 8 + 4 * k for k in range(h1p)], lambda r: opl.replace(f"v[{O}:{O+3}]", f"v[{r}:{r+3}]"), 1, T, h1mul)
        a("s_branch L_hop1d\nL_h1a:")
        h1mul(O)
    a("L_hop1d:")
    stamp(6)
    for qp in ("quad_perm:[1,0,3,2]", "quad_perm:[2,3,0,1]", "row_half_mirror"):
        for i in range(4): a(f"v_add_f32_dpp v{O+2*i}, v{O+2*i}, v{O+2*i} {qp} row_mask:0xf bank_mask:0xf")
    a(f"v_cvt_pk_bf16_f32 v{O}, v{O}, v{O+2}\nv_cvt_pk_bf16_f32 v{O+4}, v{O+4}, v{O+6}")
    for k in range(8): a(f"v_dot2_f32_bf16 v{ACC+k}, v{WP+k}, v{O}, 0")
    for k in range(8): a(f"v_dot2_f32_bf16 v{ACC+k}, v{WP+8+k}, v{O+4}, v{ACC+k}")
    red8(ACC)
    a(f"""
    ds_write_b32 v{COL}, v{ACC} offset:{L_YA}
    v_and_b32 v{T+8}, 31, {vL}
    v_lshlrev_b32 v{T+8}, 3, v{T+8}
    s_add_u32 {sT1}, {sOWN}, {YA}
    v_lshl_add_u32 v{T+9}, v{T+8}, 1, {sT1}
    v_mov_b32 v{PG+1}, {sTA}
    v_mov_b32 v{PG+3}, {sTB}
    v_lshrrev_b32 v{T+5}, 5, {vL}
    v_lshl_add_u32 v{T+8}, v{T+5}, 10, v{T+8}
    s_waitcnt lgkmcnt(0)
    """)
    guard("s_barrier")
    stamp(15)
    if dry: a(f"s_cbranch_execnz L_nd7\ns_cmp_eq_u32 {sW}, 7\ns_cbranch_scc1 L_lsvc\nL_nd7:")
    a(f"s_cmp_lg_u32 {sW}, 0\ns_cbranch_scc1 L_fin")
    for w in range(4): a(f"ds_read_b64 v[{B+2*w}:{B+2*w+1}], v{T+8} offset:{L_YA+256*w}")
    a(f"""
    s_waitcnt lgkmcnt(0)
    v_add_f32 v{B}, v{B}, v{B+2}
    v_add_f32 v{B+1}, v{B+1}, v{B+3}
    v_add_f32 v{B+4}, v{B+4}, v{B+6}
    v_add_f32 v{B+5}, v{B+5}, v{B+7}
    v_add_f32 v{B}, v{B}, v{B+4}
    v_add_f32 v{B+1}, v{B+1}, v{B+5}
    v_mov_b32 v{B+2}, v{B}
    v_mov_b32 v{B+3}, v{B+1}
    v_permlane32_swap_b32 v{B}, v{B+2}
    v_permlane32_swap_b32 v{B+1}, v{B+3}
    v_add_f32 v{PG}, v{B}, v{B+2}
    v_add_f32 v{PG+2}, v{B+1}, v{B+3}
    """)
    if at2:
        guard(f"s_mov_b32 exec_hi, 0\nbuffer_atomic_swap_x2 v[{PG}:{PG+1}], v{T+9}, {SWS}, 0 offen sc1\nbuffer_atomic_swap_x2 v[{PG+2}:{PG+3}], v{T+9}, {SWS}, 0 offen offset:8 sc1\ns_mov_b64 exec, -1")
    else:
        guard(f"buffer_store_dwordx4 v[{PG}:{PG+3}], v{T+9}, {SWS}, 0 offen {ypol}")
    stamp(19)
    a("s_branch L_fin")
    a(f"""
L_remote:
    s_cbranch_execz L_fin
    s_mov_b32 s4, {BOFF}
    v_mov_b32 v{PG+1}, {sTA}
    v_mov_b32 v{PG+3}, {sTB}
    s_cmp_gt_u32 {sW}, 2
    s_cbranch_scc1 L_rem1
    s_cmp_eq_u32 {sW}, 2
    s_cbranch_scc1 L_remml
    s_lshl_b32 {sT0}, {sW}, 9
    v_lshl_add_u32 v{T+8}, {vL}, 3, {sT0}
    s_add_u32 {sT1}, {sOWN}, {OP}
    v_lshl_add_u32 v{T+9}, v{T+8}, 1, {sT1}
    """)
    sum_pairs(L_OP, OPS, 8)
    a(f"""
    s_branch L_remst
L_remml:
    v_mov_b32 v{T+8}, {L_MLG}
    ds_read_b128 v[{PG}:{PG+3}], v{T+8}
    s_add_u32 {sT1}, {sOWN}, {ML}
    v_mov_b32 v{T+9}, {sT1}
    s_waitcnt lgkmcnt(0)
L_remst:
    buffer_store_dwordx4 v[{PG}:{PG+3}], v{T+9}, {SWS}, s4 offen sc1
L_rem1:
    s_cmp_eq_u32 {sS}, 7
    s_cbranch_scc1 L_fin
    v_sub_u32 v{T+8}, {vA2}, {vA1}
    v_lshl_add_u32 v{T+8}, v{T+8}, 1, {vA1}
    """, count=False)
    mlcalc(True)
    oplb = (f"buffer_load_dwordx4 v[{O}:{O+3}], v{T+8}, {SWS}, s4 offen sc1\n"
            f"buffer_load_dwordx4 v[{O+4}:{O+7}], v{T+8}, {SWS}, s4 offen offset:16 sc1")
    a(oplb + "\ns_waitcnt vmcnt(0)", count=False)
    retry(lambda: gcheck([O, O + 4], T), oplb)
    for i in range(4): a(f"v_mul_f32 v{O+2*i}, v{F}, v{O+2*i}")
    a("s_branch L_hop1d")
    a(f"""
L_lsvc:
    s_lshl_b32 {sOWN}, s2, 13
    v_and_b32 v{T+8}, 31, {vL}
    v_lshlrev_b32 v{T+8}, 3, v{T+8}
    s_add_u32 {sT1}, {sOWN}, {YB}
    v_lshl_add_u32 v{T+9}, v{T+8}, 1, {sT1}
    v_mov_b32 v{PG+1}, {sTA}
    v_mov_b32 v{PG+3}, {sTB}
    s_barrier
    s_cmp_eq_u32 {sS}, 7
    s_cbranch_scc1 L_red
    """)
    sum_pairs(L_YB, 256, 8)
    a(f"""
    buffer_store_dwordx4 v[{PG}:{PG+3}], v{T+9}, {SWS}, 0 offen sc1
    s_branch L_fin
L_red:
    s_cmp_gt_u32 {sH}, 6
    s_cbranch_scc1 L_fin
    s_mov_b32 {sS}, {sH}
    s_lshl_b32 {sT0}, {sS}, 1
    s_add_u32 {sT0}, {sT0}, {sB}
    s_lshl_b32 {sT0}, {sT0}, 17
    s_add_u32 {sT0}, {sT0}, {YA}
    v_lshrrev_b32 v{T+5}, 5, {vL}
    v_lshlrev_b32 v{T}, 13, v{T+5}
    v_lshl_add_u32 v{T}, v{T+8}, 1, v{T}
    v_add_u32 {vA0}, {sT0}, v{T}
    v_mov_b32 v{T+2}, {L_G}
    ds_read_b32 v{T+3}, v{T+2}
    """, count=False)
    for k in range(1, 8): a(f"s_mov_b32 s{3+k}, {k*2*SLOT}")
    so = ["0"] + [f"s{3+k}" for k in range(1, 8)]
    mk = lambda r, off: "\n".join(f"buffer_load_dwordx4 v[{r+4*k}:{r+4*k+3}], {vA0}, {SWS}, {so[k]} offen offset:{off} {ypol}" for k in range(8))
    YBr, YAr = KR, KR + 32
    sets = [KR + 32, KR + 64, KR + 96, KR][:npoll]
    guard(mk(YBr, YB - YA))
    a(f"""
    v_lshrrev_b32 v{T+4}, 2, v{T+8}
    v_add_u32 v{T+4}, v{T+4}, v{T+5}
    s_mul_i32 {sT0}, {sB}, 448
    s_lshl_b32 {sT1}, {sS}, 6
    s_add_u32 {sT0}, {sT0}, {sT1}
    v_add_lshl_u32 v{T+4}, v{T+4}, {sT0}, 1
    s_waitcnt lgkmcnt(0)
    v_sub_f32 v{T+6}, 1.0, v{T+3}
    v_cvt_pk_bf16_f32 v{T+6}, 0, v{T+6}
    """)
    def tree(dst, src):
        for e in range(2):
            for k in range(0, 8, 2): a(f"v_add_f32 v{dst+4*e+k//2}, v{src+4*k+2*e}, v{src+4*k+4+2*e}")
        for e in range(2):
            a(f"v_add_f32 v{dst+4*e}, v{dst+4*e}, v{dst+4*e+1}\nv_add_f32 v{dst+4*e+2}, v{dst+4*e+2}, v{dst+4*e+3}")
        for e in range(2): a(f"v_add_f32 v{dst+4*e}, v{dst+4*e}, v{dst+4*e+2}")
        a(f"v_permlane32_swap_b32 v{dst}, v{dst+4}\nv_add_f32 v{dst}, v{dst}, v{dst+4}\nv_cvt_pk_bf16_f32 v{dst}, 0, v{dst}")
    RA_, RB_ = 8, 16
    n = len(sets)
    lt, ld = "L_pp", "L_ppd"
    if touch: a(mk(sets[0], 0), count=False)
    a("s_waitcnt vmcnt(0)")
    retry(lambda: gcheck([YBr + 4 * k for k in range(8)], T), (f"s_sleep {ybo2}\n" if ybo2 else "") + mk(YBr, YB - YA))
    for r in sets[:-1]: guard(mk(r, 0))
    tree(RB_, YBr)
    a(f"v_mul_f32 v{RB_}, v{T+6}, v{RB_}\nv_cvt_pk_bf16_f32 v{RB_}, 0, v{RB_}\n{lt}:")
    for k in range(n):
        guard(mk(sets[(k + n - 1) % n], 0))
        a(f"s_waitcnt vmcnt({(n-1)*8})")
        gcheck([sets[k] + 4 * j for j in range(8)], T)
        a(f"s_cbranch_vccz L_pph{k}")
    spin_or("L_pph0")
    if ybo: a(f"s_sleep {ybo}")
    a(f"s_branch {lt}")
    for k in range(n - 1, -1, -1):
        a(f"L_pph{k}:")
        tree(RA_, sets[k])
        if k: a(f"s_branch {ld}")
    a(f"{ld}:")
    stamp(16)
    a(f"""
    v_mul_f32 v{RA_}, v{T+3}, v{RA_}
    v_cvt_pk_bf16_f32 v{RA_}, 0, v{RA_}
    v_add_f32 v{RA_}, v{RA_}, v{RB_}
    v_cvt_pk_bf16_f32 v{RA_}, v{RA_}, 0
    s_cbranch_execz L_fin
    buffer_store_short v{RA_}, v{T+4}, {SOUT}, 0 offen
    s_cmp_lg_u32 {sS}, 0
    s_cbranch_scc1 L_fin
    s_lshl_b32 {sT0}, {sB}, 7
    s_add_u32 {sT0}, {sT0}, {GEN}
    v_mov_b32 v{T}, {sT0}
    v_mov_b32 v{T+10}, {sTA}
    v_mov_b32 v{T+11}, {sTB}
    s_mov_b64 exec, 1
    buffer_store_dwordx2 v[{T+10}:{T+11}], v{T}, {SWS}, 0 offen
    s_mov_b64 exec, -1
L_fin:
    """, count=False)
    if dry: a("s_cbranch_execz L_dryret")
    if stamps and dbg:
        a(f"""
        s_cmp_lt_u32 {sW}, 8
        s_cbranch_scc1 L_end
        s_waitcnt vmcnt(0)
        s_memrealtime s[90:91]
        s_waitcnt lgkmcnt(0)
        s_not_b32 s84, s84
        v_mov_b32 v8, 0
        v_mov_b32 v9, s84
        v_writelane_b32 v9, s86, 1
        v_writelane_b32 v9, s88, 2
        v_writelane_b32 v9, s90, 3
        v_lshlrev_b32 v8, 2, v0
        s_mov_b64 exec, 15
        global_atomic_umax v8, v9, s[24:25] sc1
        s_waitcnt vmcnt(0)
        s_endpgm
        """, count=False)
    elif stamps:
        a("s_waitcnt vmcnt(0)")
        stamp(7)
        a(f"""
        s_waitcnt lgkmcnt(0)
        s_lshl_b32 s3, s2, 3
        s_add_u32 s3, s3, {sW}
        s_lshl_b32 s3, s3, 6
        s_add_u32 s3, s3, {128<<20}
        v_mov_b32 v{T}, s3
        s_mov_b64 exec, 1
        """)
        for k in range(4):
            for i in range(4): a(f"v_mov_b32 v{B+4*k+i}, s{STAMP0+4*k+i}")
            a(f"global_store_dwordx4 v{T}, v[{B+4*k}:{B+4*k+3}], s[26:27] offset:{16*k}", count=False)
    a("L_end:\ns_endpgm")
    pad = "\n.fill 4096, 4, 0xbf810000\n" if cpf else ""
    return f"""{HEADER}{DOC}; @launch grid=(256,1,1) block=(576,1,1) lds={L_END}
.amdgcn_target "amdgcn-amd-amdhsa--gfx950"
.text
.globl {KLABEL}
.p2align 8
.type {KLABEL},@function
{KLABEL}:
{a.text()}{pad}
.section .rodata,"a"
.p2align 6
.amdhsa_kernel {KLABEL}
  .amdhsa_next_free_vgpr 168
  .amdhsa_next_free_sgpr 102
  .amdhsa_accum_offset 168
  .amdhsa_group_segment_fixed_size 0
  .amdhsa_kernarg_size 96
  .amdhsa_user_sgpr_count 2
  .amdhsa_user_sgpr_kernarg_segment_ptr 1
  .amdhsa_system_sgpr_workgroup_id_x 1
.end_amdhsa_kernel
"""

if __name__ == "__main__":
    ap = argparse.ArgumentParser()
    ap.add_argument("-o", default="k.s")
    ap.add_argument("--stamps", default="")
    for n, d in (("w", 32), ("ng", 10), ("ngw", 2), ("npoll", 3), ("fpos", 3), ("spin", 1000000), ("dstep", 2), ("lsl", 1), ("bar0", 1), ("nburst", 4), ("warm", 1), ("bo", 0), ("ndir", 1), ("dpos", 4), ("dry", 0), ("touch", 1), ("ybo", 0), ("h1p", 1), ("rinv", 0), ("cpf", 2), ("nd0", 4), ("at1", 0), ("at2", 0), ("dbg", 0), ("ybo2", 0)):
        ap.add_argument("--" + n, type=int, default=d)
    ap.add_argument("--pol", default="nt")
    ap.add_argument("--wpol", default="nt")
    ap.add_argument("--ypol", default="sc1")
    ap.add_argument("--fpol", default="sc1")
    ap.add_argument("--rpol", default="sc1")
    ap.add_argument("--wsched", default="")
    ap.add_argument("--nocpf", action="store_true")
    ap.add_argument("--skip", default="")
    x = ap.parse_args()
    open(x.o, "w").write(gen(x.w, x.ng, x.ngw, x.pol, x.wpol, [int(t) for t in x.stamps.split(',')] if x.stamps else None,
                             x.spin, (0 if x.nocpf else x.cpf), x.npoll, x.fpos, x.skip, x.dstep, x.lsl, x.bar0, x.nburst, x.warm, x.bo, x.ndir, x.dpos, x.dry, x.ypol, x.wsched, x.touch, x.ybo, x.h1p, x.fpol, x.rpol, x.rinv, x.nd0, x.at1, x.at2, x.dbg, x.ybo2))
```

```python
import sys, math, struct, argparse
from asmlib import Asm
from common import NAME, KLABEL

def f32bits(x):
    return struct.unpack("<I", struct.pack("<f", x))[0]

HEADER = open("cdna_kernels/" + NAME + ".s.ref").read().split("; Override launch")[0]

SLOT = 8192
QA, QB, OP, ML = 0, 2048, 4096, 6144
YA, YB = 6656, 7168
BOFF = 256 * SLOT
GEN = 2 * BOFF
WS_BYTES = GEN + 256
L_ML, L_F, L_C1, L_C2, L_C3, L_QRDY, L_FRDY, L_G, L_REM, L_Q, L_H = 0, 64, 96, 100, 104, 108, 112, 116, 120, 128, 640
L_OP, L_YB, L_YA = 1024, 9728, 11776
OPS = 1056
L_QH = 1024
L_QG = 13312
L_MLG = 25568
L_DONE = 25600
L_LAND = 25856
RING = 32768
L_END = RING + 131072
SK, SV, SWQ, SW1, SWO, SW2, SX, SGW, SOUT, SWS = [f"s[{n}:{n+3}]" for n in range(28, 68, 4)]
sTA, sTB, sOWN = "s68", "s69", "s70"
sH, sB, sS, sW = "s72", "s73", "s74", "s75"
sT0, sT1 = "s76", "s77"
MB1, MB0 = "s[78:79]", "s[80:81]"
sOFF, sSPIN = "s82", "s83"
STAMP0 = 84
vL, vKV = "v1", "v2"
vA0, vA1, vA2, vA3, vA4 = "v3", "v4", "v5", "v6", "v7"
Q0, ACC, P0, F, COL, RA, RBv = 8, 12, 20, 24, 25, 26, 27
sLAND = "s71"
sTQ = "s29"
sMISS, sREM = "s30", "s31"
vD = 7
MOWN = "s[78:79]"
CSC = hex(f32bits(math.log2(math.e) / 16))


DOC = """; -----------------------------------------------------------------------------------------------
; One launch, 256 workgroups (one per CU) x 9 waves.  Workgroup i: head h = 2*(i&7) + ((i>>3)&1),
; -----------------------------------------------------------------------------------------------
"""

def gen(W=32, NG=14, NGW=3, pol="nt", wpol="nt", stamps=None, spin=200000, cpf=True, npoll=3, fpos=3, skip="", dstep=2, lsl=1, bar0=1, nburst=4, warm=1, bo=0, ndir=1, dpos=4, dry=0, ypol='sc1', wsched='', touch=1, ybo=0, h1p=1, fpol='sc1', rpol='sc1', rinv=0, nd0=0, at1=0, at2=0, dbg=0, ybo2=0, rdry=1, lcpf=0):
    a0 = Asm()
    class Filt:
        phase = "head"
        def __call__(self, txt, tag=None, count=True):
            out = []
            for l in txt.split("\n"):
                ls = l.strip()
                if self.phase == "head" and SWS in ls:
                    if "s" in skip and ls.startswith("buffer_store"): continue
                    if "g" in skip and ls.startswith("buffer_load"): continue
                    if "c" in skip and ls.startswith("buffer_store") and "v[8:11], v28" in ls: continue
                    if "p" in skip and ls.startswith("buffer_store") and ("v[8:11], v29" in ls or "v[12:15], v29" in ls): continue
                    if "m" in skip and ls.startswith("buffer_store") and "v[8:11], v30" in ls: continue
                    if "N" in skip and ls.startswith("buffer_store") and "sc1" not in ls: l = l + " nt"
                    if "0" in skip and ls.startswith("buffer_store") and "sc1" not in ls: l = l + " sc0"
                out.append(l)
            a0("\n".join(out), tag=tag, count=count)
        def __getattr__(self, k): return getattr(a0, k)
        def __setattr__(self, k, v):
            if k == "phase": object.__setattr__(self, k, v)
            else: setattr(a0, k, v)
    a = Filt()
    KR = 40
    NCH = 64 - ndir
    T = 28
    def stamp(i):
        if stamps and i in stamps:
            k = stamps.index(i)
            a(f"s_memrealtime s[{STAMP0+2*k}:{STAMP0+2*k+1}]")
    def srd(dst, src, size):
        n = int(dst[2:dst.index(":")])
        a(f"s_mov_b32 s{n}, s{src}\ns_mov_b32 s{n+1}, s{src+1}\ns_mov_b32 s{n+2}, {size}\ns_mov_b32 s{n+3}, 0x20000")
    SRDS = {SX: (4, 1792), SK: (6, 1 << 26), SV: (8, 1 << 26), SWQ: (10, 448 * 8192), SWO: (12, 4096 * 896), SW1: (16, 448 * 3584),
            SW2: (18, 1792 * 896), SGW: (20, 896), SOUT: (22, 1792), SWS: (26, WS_BYTES)}
    def srds(*names):
        for n in names: srd(n, *SRDS[n])
    def red8(acc):
        for k in range(4): a(f"v_permlane32_swap_b32 v{acc+k}, v{acc+k+4}")
        for k in range(4): a(f"v_add_f32 v{acc+k}, v{acc+k}, v{acc+k+4}")
        for k in range(2): a(f"v_permlane16_swap_b32 v{acc+k}, v{acc+k+2}")
        for k in range(2): a(f"v_add_f32 v{acc+k}, v{acc+k}, v{acc+k+2}")
        a(f"v_add_f32_dpp v{acc}, v{acc}, v{acc} row_ror:8 row_mask:0xf bank_mask:0x3")
        a(f"v_add_f32_dpp v{acc}, v{acc+1}, v{acc+1} row_ror:8 row_mask:0xf bank_mask:0xc")
    def gemv_step(acc, wreg, lo, hi, first, n=4):
        for i in range(n):
            a(f"v_dot2_f32_bf16 v{acc+2*i}, v{wreg+i}, v{lo}, {'0' if first else f'v{acc+2*i}'}")
            a(f"v_dot2_f32_bf16 v{acc+2*i+1}, v{wreg+i}, v{hi}, {'0' if first else f'v{acc+2*i+1}'}")
    def bc_step(acc, wreg, lo, hi, n):
        for i in range(4):
            a(f"v_dot2c_f32_bf16_dpp v{acc+2*i}, v{lo}, v{wreg+i} row_newbcast:{n} row_mask:0xf bank_mask:0xf")
            a(f"v_dot2c_f32_bf16_dpp v{acc+2*i+1}, v{hi}, v{wreg+i} row_newbcast:{n} row_mask:0xf bank_mask:0xf")
    def allred(op, v, t, bits=6):
        a(f"{op}_dpp v{v}, v{v}, v{v} quad_perm:[1,0,3,2] row_mask:0xf bank_mask:0xf")
        a(f"{op}_dpp v{v}, v{v}, v{v} quad_perm:[2,3,0,1] row_mask:0xf bank_mask:0xf")
        a(f"{op}_dpp v{v}, v{v}, v{v} row_half_mirror row_mask:0xf bank_mask:0xf")
        if bits > 3:
            a(f"{op}_dpp v{v}, v{v}, v{v} row_ror:8 row_mask:0xf bank_mask:0xf")
            a(f"v_mov_b32 v{t}, v{v}\nv_permlane16_swap_b32 v{v}, v{t}\n{op} v{v}, v{v}, v{t}")
            a(f"v_mov_b32 v{t}, v{v}\nv_permlane32_swap_b32 v{v}, v{t}\n{op} v{v}, v{v}, v{t}")
    def spin_or(ld):
        a(f"s_cmp_eq_u32 {sSPIN}, 0\ns_cbranch_scc1 {ld}\ns_sub_u32 {sSPIN}, {sSPIN}, 1")
    def retry(cond_code, reissue):
        lt, ld = a.newlabel("L_poll"), a.newlabel("L_pdone")
        a(f"{lt}:")
        cond_code()
        a(f"s_cbranch_vccz {ld}")
        spin_or(ld)
        a(reissue, count=False)
        a(f"s_waitcnt vmcnt(0)\ns_branch {lt}\n{ld}:")
    def sent_cond(regs, t):
        rs = list(regs)
        a(f"v_max3_u32 v{t}, v{rs[0]}, v{rs[1]}, v{rs[2]}"); rs = rs[3:]
        while len(rs) >= 2:
            a(f"v_max3_u32 v{t}, v{t}, v{rs[0]}, v{rs[1]}"); rs = rs[2:]
        if rs: a(f"v_max_u32 v{t}, v{t}, v{rs[0]}")
        a(f"v_cmp_eq_u32 vcc, -1, v{t}")
    def poll_sent(regs, reissue, t):
        retry(lambda: sent_cond(regs, t), reissue)
    def tag2_cond(g, t):
        a(f"v_xor_b32 v{t}, {sTA}, v{g+2}\nv_bitop3_b32 v{t}, v{t}, {sTB}, v{g+3} bitop3:0xf6\nv_cmp_ne_u32 vcc, 0, v{t}")
    def poll_pipe(nreg, sets, mk, nld, t, hit):
        n = len(sets)
        lt, ld = a.newlabel("L_pp"), a.newlabel("L_ppd")
        hits = [a.newlabel("L_pph") for _ in sets]
        for r in sets[:-1]:
            a(mk(r), count=False); a("s_nop 15\ns_nop 15")
        a(f"{lt}:")
        for k in range(n):
            a(mk(sets[(k + n - 1) % n]), count=False)
            a(f"s_waitcnt vmcnt({(n-1)*nld})")
            sent_cond(range(sets[k], sets[k] + nreg), t)
            a(f"s_cbranch_vccz {hits[k]}")
        spin_or(hits[0])
        a(f"s_branch {lt}")
        for k in range(n - 1, -1, -1):
            a(f"{hits[k]}:")
            hit(sets[k])
            if k: a(f"s_branch {ld}")
        a(f"{ld}:")
    def lds_ticket(addr, t):
        a(f"""
        v_mov_b32 v{t}, {addr}
        v_mov_b32 v{t+1}, 1
        s_waitcnt lgkmcnt(0)
        s_mov_b64 exec, 1
        ds_add_rtn_u32 v{t+1}, v{t}, v{t+1}
        s_mov_b64 exec, -1
        s_waitcnt lgkmcnt(0)
        v_readfirstlane_b32 {sT0}, v{t+1}
        """)
    def lds_wait(flag, extra, t, name):
        a(f"v_mov_b32 v{t}, {flag}\n{name}:\nds_read_b32 v{t+1}, v{t}\n{extra}\ns_waitcnt lgkmcnt(0)\nv_cmp_eq_u32 vcc, 1, v{t+1}\ns_cbranch_vccnz {name}d")
        spin_or(name + "d")
        a(f"s_sleep 1\ns_branch {name}\n{name}d:")

    def chunk_read(c, reg, fast=False):
        ok, sp = a.newlabel("L_ck"), a.newlabel("L_cs")
        a(f"""
        s_cmp_gt_u32 {sLAND}, {c}
        s_cbranch_scc1 {ok}
{sp}:
        ds_read_b32 v{T+11}, v{RA} offset:{L_LAND}
        s_waitcnt lgkmcnt(0)
        v_readfirstlane_b32 {sLAND}, v{T+11}
        s_cmp_gt_u32 {sLAND}, {c}
        s_cbranch_scc1 {ok}
        """)
        spin_or(ok)
        a(("" if fast else f"s_sleep {lsl}\n") + f"s_branch {sp}\n{ok}:")
        slot = c % 16
        a(f"ds_read_b128 v[{reg}:{reg+3}], v{vR0 if slot < 8 else vR1} offset:{(slot % 8) * 8192}")
    def done(c):
        a(f"v_mov_b32 v{T+10}, {c+1}\ns_waitcnt lgkmcnt(0)\ns_mov_b64 exec, 1\nds_write_b32 v{RBv}, v{T+10} offset:{L_DONE}\ns_mov_b64 exec, -1")
    def drain(c0, c1):
        for c in range(c0, c1):
            chunk_read(c, KR + 4 * c)
            if (c + 1) % dstep == 0 or c == c1 - 1: done(c)
    vR0, vR1 = 2, 0
    a(f"""
    s_load_dwordx4 s[36:39], s[0:1], 8
    v_readfirstlane_b32 {sW}, v0
    s_cmpk_ge_u32 s2, 256
    s_cbranch_scc1 L_end
    """)
    stamp(0)
    a(f"""
    s_lshr_b32 {sW}, {sW}, 6
    s_cbranch_scc0 L_loader
    """)
    if cpf:
        a(f"""
        s_getpc_b64 s[100:101]
        s_lshr_b32 s3, s2, 3
        s_mulk_i32 s3, 640
        v_subrev_u32 v{T}, 64, v0
        v_cmp_gt_u32 vcc, 5, v{T}
        v_lshl_add_u32 v{T}, v{T}, 7, s3
        s_and_saveexec_b64 s[98:99], vcc
        s_cbranch_execz L_cons0
        global_load_dword v{F}, v{T}, s[100:101]
        """, count=False)
    DEC = f"""
    s_and_b32 {sH}, s2, 7
    s_lshl_b32 {sH}, {sH}, 1
    s_bfe_u32 {sT0}, s2, 0x10003
    s_add_u32 {sH}, {sH}, {sT0}
    s_bfe_u32 {sB}, s2, 0x10004
    s_lshr_b32 {sS}, s2, 5
    """
    a(f"""
    s_branch L_cons0
L_loader:
    {DEC}
    s_lshl_b32 {sT0}, {sB}, 4
    s_add_u32 {sT0}, {sT0}, {sH}
    s_lshl3_add_u32 {sT0}, {sT0}, {sS}
    s_lshl_b32 {sT0}, {sT0}, 18
    v_lshl_add_u32 v2, v0, 4, {sT0}
    s_lshl_b32 s30, 1, 26
    s_mov_b32 s31, 0x20000
    s_lshl_b32 m0, 1, 15
    s_mov_b32 s34, 0
    s_waitcnt lgkmcnt(0)
    s_mov_b64 s[28:29], s[36:37]
L_burst:
    """)
    assert RING == 1 << 15
    for p in range(4):
        a(f"buffer_load_dwordx4 v2, {SK}, s34 offen offset:{p*1024} {pol} lds", count=False)
    a(f"s_addk_i32 s34, 4096\ns_addk_i32 m0, 4096\ns_cmpk_lt_u32 s34, {nburst*8192}\ns_cbranch_scc1 L_burst")
    a(f"s_setprio 3\nv_mov_b32 {vL}, v0\ns_mov_b32 {sSPIN}, {spin}")
    stamp(199)
    a(f"""
    v_lshlrev_b32 v4, 2, {vL}
    v_mov_b32 v5, 0
    ds_write_b32 v4, v5 offset:{L_LAND}
    ds_write_b32 v4, v5 offset:{L_DONE}
    ds_write_b32 v4, v5 offset:{L_ML}
    v_and_b32 v6, 7, {vL}
    v_lshlrev_b32 v6, 2, v6
    s_mov_b32 s32, {nburst}                      ; chunk
    s_mov_b32 s33, 16
    s_waitcnt lgkmcnt(0)
    s_barrier
    s_branch L_ldok0
L_cons0:
    s_mov_b64 exec, -1
    s_load_dwordx16 s[4:19], s[0:1], 0
    s_load_dwordx8 s[20:27], s[0:1], 64
    {DEC}
    v_and_b32 {vL}, 63, v0
    s_mov_b32 {sSPIN}, {spin}
    s_sub_u32 {sW}, {sW}, 1
    s_mov_b32 {sLAND}, 0
    s_lshl_b32 {sT0}, {sW}, 10
    s_add_u32 {sT0}, {sT0}, {RING}
    v_lshl_add_u32 v{vR0}, {vL}, 4, {sT0}
    v_add_u32 v{vR1}, 0x10000, v{vR0}
    s_lshl_b32 {sT0}, {sW}, 2
    v_mov_b32 v{RBv}, {sT0}
    v_mov_b32 v{RA}, {sT0}
    {"s_barrier" if bar0 else ""}
    s_branch L_cons
    """)
    sched = [(int(t.split(":")[0]), int(t.split(":")[1])) for t in wsched.split(",")] if wsched else [(64, W)]
    sched[-1] = (NCH, sched[-1][1])
    for ph, (cend, Wp) in enumerate(sched):
        a(f"""
L_ld{ph}:
        s_cmp_lt_u32 s32, s33
        s_cbranch_scc1 L_ldok{ph}
L_ldfree{ph}:
        ds_read_b32 v7, v6 offset:{L_DONE}
        s_waitcnt lgkmcnt(0)
        v_min_u32_dpp v7, v7, v7 quad_perm:[1,0,3,2] row_mask:0xf bank_mask:0xf
        v_min_u32_dpp v7, v7, v7 quad_perm:[2,3,0,1] row_mask:0xf bank_mask:0xf
        v_min_u32_dpp v7, v7, v7 row_half_mirror row_mask:0xf bank_mask:0xf
        v_readfirstlane_b32 s33, v7
        s_add_u32 s33, s33, 16
        s_cmp_lt_u32 s32, s33
        s_cbranch_scc1 L_ldok{ph}
        """)
        spin_or(f"L_ldok{ph}")
        a(f"s_branch L_ldfree{ph}\nL_ldok{ph}:")
        for st in (stamps or []):
            if 200 <= st < 264:
                a(f"s_cmp_lg_u32 s32, {st-200}\ns_cbranch_scc1 L_lst{st}_{ph}"); stamp(st); a(f"L_lst{st}_{ph}:")
        pp = (Wp - 1) % 8; back = (Wp - 1 - pp) // 8 + 1
        a(f"""
        s_and_b32 s35, s32, 15
        s_lshl_b32 s35, s35, 13
        s_add_u32 s35, s35, {RING}
        s_mov_b32 m0, s35
        s_sub_u32 s40, s32, {back - 1}
        v_mov_b32 v5, s40
        """)
        for p in range(8):
            if p == 4: a("s_add_u32 s35, s35, 4096\ns_add_u32 s34, s34, 4096\ns_mov_b32 m0, s35")
            a(f"s_waitcnt vmcnt({Wp-1})")
            if p == pp: a(f"ds_write_b32 v4, v5 offset:{L_LAND}")
            a(f"buffer_load_dwordx4 v2, {SK}, s34 offen offset:{(p%4)*1024} {pol} lds", count=False)
        a(f"""
        s_add_u32 s34, s34, 4096
        s_add_u32 s32, s32, 1
        s_cmp_lg_u32 s32, 32
        s_cbranch_scc1 L_ldnsw{ph}
        s_mov_b32 s28, s38
        s_mov_b32 s29, s39
        s_mov_b32 s34, 0
L_ldnsw{ph}:
        s_cmp_lt_u32 s32, {cend}
        s_cbranch_scc1 L_ld{ph}
        """)
    W = sched[-1][1]
    assert sched[0][1] <= nburst * 8 + 1
    stamp(13)
    a("s_load_dwordx8 s[20:27], s[0:1], 64\ns_waitcnt lgkmcnt(0)")
    a(f"s_lshl_b32 s3, {sB}, 7\ns_add_u32 s3, s3, {GEN}\ns_load_dwordx2 s[68:69], s[26:27], s3")
    srds(SWS, SOUT)
    for k in range((W + 7) // 8 - 1, -1, -1):
        a(f"v_mov_b32 v5, {NCH-k}\ns_waitcnt vmcnt({8*k})\nds_write_b32 v4, v5 offset:{L_LAND}")
    a("s_waitcnt lgkmcnt(0)")
    stamp(5)
    if stamps: a(f"s_mul_i32 {sW}, s2, 7\ns_sub_u32 {sW}, 2048, {sW}")
    a(f"s_add_u32 {sTA}, s68, 8\ns_add_u32 {sTB}, s69, 1\ns_branch L_lsvc")
    a(f"""
L_cons:
    s_waitcnt lgkmcnt(0)
    s_lshl_b32 s3, {sB}, 7
    s_add_u32 s3, s3, {GEN}
    s_load_dwordx2 s[68:69], s[26:27], s3
    s_cmp_eq_u32 {sW}, 7
    s_cbranch_scc1 L_svc
    """)
    VE = KR + 64
    WQr, W1r, XQ, XF, AQ, AF = VE, VE + 16, VE + 24, VE + 26, VE + 32, VE + 40
    srds(SWQ)
    a(f"""
    s_mul_i32 {sT0}, {sS}, 56
    s_lshl_b32 {sT1}, {sW}, 3
    s_add_u32 {sT0}, {sT0}, {sT1}
    v_lshrrev_b32 v{T}, 5, {vL}                  ; half
    v_add_u32 v{T+1}, {sT0}, v{T}
    v_lshlrev_b32 {vA2}, 13, v{T+1}
    v_and_b32 v{T+2}, 31, {vL}
    v_lshl_add_u32 {vA2}, v{T+2}, 4, {vA2}
    s_lshl_b32 {sT1}, {sH}, 9
    v_add_u32 {vA2}, {sT1}, {vA2}
    """)
    for t in range(4):
        if t: a(f"s_mov_b32 {sT1}, {t*2*8192}")
        if "1" not in skip:
            a(f"buffer_load_dwordx4 v[{WQr+4*t}:{WQr+4*t+3}], {vA2}, {SWQ}, {sT1 if t else 0} offen {wpol}", tag="w")
    srds(SX, SW1)
    a(f"""
    v_lshrrev_b32 v{T+3}, 4, {vL}                ; rho
    v_and_b32 v{T+4}, 15, {vL}                   ; n
    v_add_u32 v{T+5}, {sT0}, v{T+3}
    v_mul_u32_u24 {vA3}, 3584, v{T+5}
    v_lshl_add_u32 {vA3}, v{T+4}, 4, {vA3}
    s_lshl_b32 {sT1}, {sH}, 8
    v_add_u32 {vA3}, {sT1}, {vA3}                ; w1 address
    s_cmp_gt_u32 {sH}, 13
    s_cbranch_scc1 L_nof1
    s_mov_b32 {sT1}, {4*3584}
    """)
    if "1" not in skip:
        a(f"buffer_load_dwordx4 v[{W1r}:{W1r+3}], {vA3}, {SW1}, 0 offen {wpol}", count=False)
        a(f"buffer_load_dwordx4 v[{W1r+4}:{W1r+7}], {vA3}, {SW1}, {sT1} offen {wpol}", count=False)
    a(f"""
L_nof1:
    s_mul_i32 {sT1}, {sB}, 448
    s_add_u32 {sT1}, {sT1}, {sT0}
    v_and_b32 v{T+5}, 3, {vL}
    v_lshl_add_u32 v{T+5}, v{T+5}, 1, v{T}
    v_add_lshl_u32 {vA0}, v{T+5}, {sT1}, 1
    v_and_b32 v{T+5}, 1, {vL}
    v_lshl_add_u32 v{T+5}, v{T+5}, 2, v{T+3}
    v_add_lshl_u32 {vA1}, v{T+5}, {sT1}, 1
    """)
    a(f"buffer_load_ushort v{XQ}, {vA0}, {SX}, 0 offen", tag="w")
    a(f"buffer_load_ushort v{XF}, {vA1}, {SX}, 0 offen", tag="w")
    if not bar0: a("s_barrier")
    srds(SWS, SWO, SW2, SOUT, SGW, SV)
    for i in range(16): a(f"v_mov_b32 v{AQ+i}, 0")
    a(f"""
    s_mul_i32 {sT0}, {sW}, 1536
    v_lshlrev_b32 v{T+2}, 5, v{T+2}
    v_lshl_add_u32 v{T+2}, v{T}, 4, v{T+2}
    v_add_u32 v{T+2}, {sT0}, v{T+2}
    v_lshlrev_b32 v{T+4}, 5, v{T+4}
    v_lshl_add_u32 v{T+4}, v{T+3}, 3, v{T+4}     ; 32n + 8*rho
    v_add_u32 v{T+4}, {sT0}, v{T+4}
    """)
    stamp(10)
    drain(0, nd0)
    a.wait_vm("w")
    stamp(11)
    a(f"v_lshlrev_b32 v{XQ+1}, 16, v{XQ}\nv_lshlrev_b32 v{XF+1}, 16, v{XF}")
    for t in range(4): bc_step(AQ, WQr + 4 * t, XQ, XQ + 1, t)
    for t in range(2): bc_step(AF, W1r + 4 * t, XF, XF + 1, t)
    for k in range(4): a(f"v_permlane32_swap_b32 v{AQ+k}, v{AQ+k+4}")
    for k in range(4): a(f"v_permlane32_swap_b32 v{AF+k}, v{AF+k+4}")
    for k in range(4): a(f"v_add_f32 v{AQ+k}, v{AQ+k}, v{AQ+k+4}")
    for k in range(4): a(f"v_add_f32 v{AF+k}, v{AF+k}, v{AF+k+4}")
    a(f"ds_write_b128 v{T+2}, v[{AQ}:{AQ+3}] offset:{L_QH}")
    for k in range(2): a(f"v_permlane16_swap_b32 v{AF+k}, v{AF+k+2}")
    for k in range(2): a(f"v_add_f32 v{AF+k}, v{AF+k}, v{AF+k+2}")
    a(f"ds_write_b64 v{T+4}, v[{AF}:{AF+1}] offset:{L_QH+1024}")
    lds_ticket(L_C1, T + 6)
    TAGS = f"""
    s_add_u32 {sTA}, s68, 8
    s_add_u32 {sTB}, s69, 1
    s_getreg_b32 {sTQ}, hwreg(HW_REG_XCC_ID, 0, 3)
    s_andn2_b32 s3, {sTA}, 7
    s_or_b32 {sTQ}, {sTQ}, s3
    """
    a(TAGS)
    PBs = [8, 12]
    PR = VE
    a(f"s_cmp_lg_u32 {sT0}, 6\ns_cbranch_scc1 L_k2\nv_lshlrev_b32 v{T}, 2, {vL}")
    for u in range(2):
        for th in range(3):
            for w in range(7):
                a(f"ds_read_b32 v{PR+24*u+8*th+w}, v{T} offset:{L_QH+1536*w+512*th+256*u}")
    a(f"s_lshl_b32 {sT0}, s2, 13\nv_lshl_add_u32 v{T+1}, {vL}, 4, {sT0}")
    for u in range(2): a(f"v_mov_b32 v{PBs[u]+3}, {sTQ}")
    a("s_waitcnt lgkmcnt(0)")
    for u in range(2):
        for th in range(3):
            b = PR + 24 * u + 8 * th
            a(f"v_add_f32 v{b}, v{b}, v{b+1}\nv_add_f32 v{b+2}, v{b+2}, v{b+3}\nv_add_f32 v{b+4}, v{b+4}, v{b+5}")
        for th in range(3):
            b = PR + 24 * u + 8 * th
            a(f"v_add_f32 v{b}, v{b}, v{b+2}\nv_add_f32 v{b+4}, v{b+4}, v{b+6}")
        for th in range(3):
            b = PR + 24 * u + 8 * th
            a(f"v_add_f32 v{PBs[u]+th}, v{b}, v{b+4}")
        a(f"buffer_store_dwordx4 v[{PBs[u]}:{PBs[u]+3}], v{T+1}, {SWS}, 0 offen offset:{QA+1024*u}", count=False)
    stamp(1)
    a("s_branch L_k2")
    a("L_svc:")
    a.vm = []
    GX = VE
    srds(SWS, SX, SGW)
    a(f"""
    s_mul_i32 s3, {sB}, 896
    v_lshlrev_b32 v{T+7}, 4, {vL}
    v_add_u32 v{T+8}, s3, v{T+7}
    v_cmp_gt_u32 vcc, 56, {vL}
    v_mov_b32 v{T+6}, 0x10000
    v_cndmask_b32 v{T+8}, v{T+6}, v{T+8}, vcc
    """)
    a(f"buffer_load_dwordx4 v[{GX}:{GX+3}], v{T+8}, {SX}, 0 offen", tag="w")
    a(f"buffer_load_dwordx4 v[{GX+4}:{GX+7}], v{T+7}, {SGW}, 0 offen", tag="w")
    a(f"""
    s_waitcnt lgkmcnt(0)
    """)
    if not bar0: a("s_barrier")
    a(TAGS)
    srds(SWO, SW2, SOUT, SWQ, SW1, SV)
    drain(0, nd0)
    a(f"""
    s_waitcnt vmcnt(0)
    """, count=False)
    G = T
    a(f"v_mov_b32 v{G}, 0")
    for i in range(4):
        x, g = GX + i, GX + 4 + i
        a(f"""
        v_lshlrev_b32 v{G+1}, 16, v{x}
        v_lshlrev_b32 v{G+2}, 16, v{g}
        v_and_b32 v{G+3}, 0xffff0000, v{x}
        v_and_b32 v{G+4}, 0xffff0000, v{g}
        v_mul_f32 v{G+1}, v{G+1}, v{G+2}
        v_mul_f32 v{G+3}, v{G+3}, v{G+4}
        v_cvt_pk_bf16_f32 v{G+1}, v{G+1}, v{G+3}
        v_lshlrev_b32 v{G+2}, 16, v{G+1}
        v_and_b32 v{G+3}, 0xffff0000, v{G+1}
        v_add_f32 v{G}, v{G}, v{G+2}
        v_add_f32 v{G}, v{G}, v{G+3}
        """)
    allred("v_add_f32", G, G + 1)
    a(f"""
    v_cvt_pk_bf16_f32 v{G}, 0, v{G}
    v_mul_f32 v{G}, {hex(f32bits(-math.log2(math.e)))}, v{G}
    v_exp_f32 v{G}, v{G}
    v_add_f32 v{G}, 1.0, v{G}
    v_rcp_f32 v{G}, v{G}
    v_cvt_pk_bf16_f32 v{G}, 0, v{G}
    v_mov_b32 v{G+1}, {L_G}
    ds_write_b32 v{G+1}, v{G}
L_k2:
    """)
    a.vm = []
    ADDRS = f"""
    s_mov_b32 s78, 0xcccccccc
    s_mov_b32 s79, 0xcccccccc
    s_mov_b32 s80, 0xaaaaaaaa
    s_mov_b32 s81, 0xaaaaaaaa
    s_lshl_b32 {sOWN}, s2, 13
    v_and_b32 v{T+1}, 7, {vL}
    v_lshrrev_b32 v{T}, 3, {vL}
    v_lshlrev_b32 v{COL}, 5, v{T+1}
    v_lshrrev_b32 v{T+2}, 5, {vL}
    v_lshl_add_u32 v{COL}, v{T+2}, 4, v{COL}
    v_bfe_u32 v{T+2}, {vL}, 4, 1
    v_lshl_add_u32 v{COL}, v{T+2}, 3, v{COL}
    v_bfe_u32 v{T+2}, {vL}, 3, 1
    v_lshl_add_u32 v{COL}, v{T+2}, 2, v{COL}
    s_lshl_b32 {sT1}, {sW}, 8
    v_add_u32 v{COL}, {sT1}, v{COL}
    s_and_b32 {sT0}, s2, 31
    s_lshl_b32 {sT0}, {sT0}, 13
    s_add_u32 {sT0}, {sT0}, {OP}
    v_lshlrev_b32 {vA1}, 18, v{T+1}
    v_add_u32 {vA1}, {sT0}, {vA1}
    v_lshl_add_u32 {vA2}, v{T}, 4, {vA1}
    s_lshl_b32 {sT1}, {sW}, 7
    v_add_u32 {vA2}, {sT1}, {vA2}
    s_lshl_b32 {sT1}, {sS}, 7
    v_lshl_add_u32 v{T+1}, v{T+1}, 4, {sT1}
    s_lshl_b32 {sT0}, {sH}, 8
    s_lshl_b32 {sT1}, {sW}, 5
    s_add_u32 {sT0}, {sT0}, {sT1}
    v_lshl_add_u32 v{T+2}, v{T}, 2, {sT0}
    v_mul_u32_u24 v{T+2}, 896, v{T+2}
    v_add_u32 {vA3}, v{T+2}, v{T+1}
    s_lshr_b32 {sT0}, {sT0}, 1
    v_lshl_add_u32 v{T+2}, v{T}, 1, {sT0}
    v_mul_u32_u24 v{T+2}, 896, v{T+2}
    v_add_u32 {vA4}, v{T+2}, v{T+1}              ; w2 rows 128h+16w+2r+j
    v_and_b32 v{T}, 31, {vL}
    v_lshlrev_b32 {vA0}, 4, v{T}
    s_and_b32 {sT0}, s2, 31
    s_lshl_b32 {sT0}, {sT0}, 13
    s_lshl_b32 {sT1}, {sW}, 18
    s_add_u32 {sT0}, {sT0}, {sT1}
    v_lshl_add_u32 v8, {vL}, 4, {sT0}
    v_lshl_add_u32 v12, {vL}, 4, {sOWN}
    s_mul_i32 {sT1}, {sW}, 1536
    v_lshl_add_u32 v9, {vL}, 2, {sT1}
    """
    a(ADDRS)
    drain(nd0, NG)
    GB = KR + 96
    gl = "\n".join(f"buffer_load_dwordx4 v[{GB+4*u}:{GB+4*u+3}], v8, {SWS}, 0 offen offset:{QA+1024*u} sc1" for u in range(2))
    glb = gl.replace(f"offset:{QA} ", f"offset:{QB} ").replace(f"offset:{QA+1024} ", f"offset:{QB+1024} ")
    def wt_copy(must):
        lt, ld = a.newlabel("L_wt"), a.newlabel("L_wtd")
        a(f"""
{lt}:
        buffer_load_dwordx4 v[{GB+8}:{GB+11}], v12, {SWS}, 0 offen offset:{QA} sc1
        buffer_load_dwordx4 v[{GB+12}:{GB+15}], v12, {SWS}, 0 offen offset:{QA+1024} sc1
        s_waitcnt vmcnt(0)
        v_xor_b32 v10, {sTQ}, v{GB+11}
        v_bitop3_b32 v10, v10, {sTQ}, v{GB+15} bitop3:0xf6
        v_cmp_ne_u32 vcc, 0, v10
        s_cbranch_vccz {ld}s
        """, count=False)
        if must:
            spin_or(ld); a(f"s_branch {lt}")
        else:
            a(f"s_branch {ld}")
        a(f"""
{ld}s:
        buffer_store_dwordx4 v[{GB+8}:{GB+11}], v12, {SWS}, 0 offen offset:{QB} sc1
        buffer_store_dwordx4 v[{GB+12}:{GB+15}], v12, {SWS}, 0 offen offset:{QB+1024} sc1
{ld}:
        """, count=False)
    a(gl, count=False)
    drain(NG, NG + NGW)
    assert NG + NGW <= 24
    a("s_waitcnt vmcnt(0)")
    if "g" in skip or "r" in skip: a("s_branch L_gd")
    a(f"""
    s_mov_b32 {sMISS}, 0
L_g:
    v_xor_b32 v10, {sTQ}, v{GB+3}
    v_bitop3_b32 v10, v10, {sTQ}, v{GB+7} bitop3:0xf6
    v_cmp_ne_u32 vcc, 0, v10
    s_cbranch_vccz L_gd
    v_cmp_lt_u32 vcc, 7, v10
    s_cbranch_vccz L_grem
    """)
    spin_or("L_gd")
    a(f"s_add_u32 {sMISS}, {sMISS}, 1\ns_and_b32 s3, {sMISS}, 15\ns_cbranch_scc0 L_gfb\n{gl}\ns_waitcnt vmcnt(0)\ns_branch L_g\nL_gfb:", count=False)
    wt_copy(False)
    a(f"{glb}\ns_waitcnt vmcnt(0)\ns_branch L_g\nL_grem:", count=False)
    a(f"v_mov_b32 v10, {L_REM}\nv_mov_b32 v11, 1\nds_write_b32 v10, v11")
    wt_copy(True)
    a("L_gd:")
    stamp(12)
    for u in range(2):
        for th in range(3):
            a(f"ds_write_b32 v9, v{GB+4*u+th} offset:{L_QG+512*th+256*u}")
    lds_ticket(L_C3, 10)
    a(f"s_cmp_lg_u32 {sT0}, 7\ns_cbranch_scc1 L_noq\nv_lshlrev_b32 v9, 3, {vL}")
    a(f"v_lshlrev_b32 v8, 2, {vL}\nv_mov_b32 v11, 1\nv_mov_b32 v12, {L_QRDY}")
    def qreads(th):
        for w in range(8):
            a(f"ds_read_b64 v[{GB+16*(th%2)+2*w}:{GB+16*(th%2)+2*w+1}], v9 offset:{L_QG+1536*w+512*th}")
    qreads(0); qreads(1)
    for th in range(3):
        b = GB + 16 * (th % 2)
        a("s_waitcnt lgkmcnt(0)")
        for st in (1, 2, 4):
            for w in range(0, 8, 2 * st):
                for e in range(2): a(f"v_add_f32 v{b+2*w+e}, v{b+2*w+e}, v{b+2*(w+st)+e}")
        if th == 2: a(f"v_maximum3_f32 v{b}, v{b}, 0, 0\nv_maximum3_f32 v{b+1}, v{b+1}, 0, 0")
        a(f"v_cvt_pk_bf16_f32 v{13+th}, v{b}, v{b+1}\nds_write_b32 v8, v{13+th} offset:{L_Q+256*th}")
        if th == 0: qreads(2)
    a("s_waitcnt lgkmcnt(0)\nds_write_b32 v12, v11")
    stamp(17)
    a(f"""
L_noq:
    s_cmp_lg_u32 {sW}, 0
    s_cbranch_scc1 L_noclr
    s_add_u32 {sT0}, {sOWN}, {OP}
    v_lshl_add_u32 v{T}, {vL}, 4, {sT0}
    v_mov_b32 v8, -1
    v_mov_b32 v9, -1
    v_mov_b32 v10, -1
    v_mov_b32 v11, -1
    buffer_store_dwordx4 v[8:11], v{T}, {SWS}, 0 offen
L_noclr:
    """, count=False)
    drain(NG + NGW, 32)
    a("s_waitcnt vmcnt(0)")
    stamp(2)
    lds_wait(L_QRDY, f"ds_read_b128 v[{Q0}:{Q0+3}], {vA0} offset:{L_Q}\nds_read_b32 v{T+2}, v{T} offset:{L_REM-L_QRDY}", T, "L_rdy")
    a(f"v_readfirstlane_b32 {sREM}, v{T+2}")
    stamp(3)
    def R(j): return KR + 4 * j
    for g0 in range(0, 32, 8):
        for i in range(4):
            for j in range(g0, g0 + 8):
                a(f"v_dot2_f32_bf16 v{R(j)}, v{R(j)+i}, v{Q0+i}, {'0' if i == 0 else f'v{R(j)}'}")
    for j in range(0, 32, 2): a(f"v_permlane16_swap_b32 v{R(j)}, v{R(j+1)}")
    for j in range(0, 32, 2): a(f"v_add_f32 v{R(j)}, v{R(j)}, v{R(j+1)}")
    for st, ctl, m0, m1 in ((2, "row_ror:8", 3, 12), (4, "row_half_mirror", 5, 10)):
        for j in range(0, 32, 2 * st):
            a(f"v_add_f32_dpp v{R(j)}, v{R(j)}, v{R(j)} {ctl} row_mask:0xf bank_mask:{m0}")
        for j in range(0, 32, 2 * st):
            a(f"v_add_f32_dpp v{R(j)}, v{R(j+st)}, v{R(j+st)} {ctl} row_mask:0xf bank_mask:{m1}")
    for st, qp, m in ((8, "[2,3,0,1]", MB1), (16, "[1,0,3,2]", MB0)):
        for j in range(0, 32, st):
            a(f"v_add_f32_dpp v{R(j)}, v{R(j)}, v{R(j)} quad_perm:{qp} row_mask:0xf bank_mask:0xf")
        for j in range(0, 32, 2 * st):
            a(f"v_cndmask_b32 v{R(j)}, v{R(j)}, v{R(j+st)}, {m}")
    S = T + 8
    a(f"v_cvt_pk_bf16_f32 v{S}, 0, v{R(0)}\nv_mov_b32 v{T}, v{S}")
    allred("v_max_f32", T, T + 1)
    a(f"""
    v_sub_f32 v{S}, v{S}, v{T}
    v_mul_f32 v{S}, {CSC}, v{S}
    v_exp_f32 v{S}, v{S}
    v_mov_b32 v{T+1}, v{S}
    """)
    allred("v_add_f32", T + 1, T + 2)
    a(f"""
    s_lshl_b32 {sT0}, {sW}, 3
    v_mov_b32 v{T+2}, {sT0}
    ds_write_b64 v{T+2}, v[{T}:{T+1}] offset:{L_ML}
    v_cvt_pk_bf16_f32 v{P0}, v{S}, 0
    v_cvt_pk_bf16_f32 v{P0+1}, 0, v{S}
    v_mov_b32 v{P0+2}, v{P0}
    v_mov_b32 v{P0+3}, v{P0+1}
    v_permlane16_swap_b32 v{P0}, v{P0+2}
    v_permlane16_swap_b32 v{P0+1}, v{P0+3}
    """)
    lds_ticket(L_C2, T + 2)
    M4 = Q0
    a(f"""
    s_cmp_lg_u32 {sT0}, 7
    s_cbranch_scc1 L_noml
    v_and_b32 v{T+2}, 7, {vL}
    v_lshlrev_b32 v{T+3}, 3, v{T+2}
    ds_read_b64 v[{T+4}:{T+5}], v{T+3} offset:{L_ML}
    v_lshlrev_b32 v{T+3}, 2, v{T+2}
    v_mov_b32 v{T+2}, {sOWN}
    s_waitcnt lgkmcnt(0)
    v_mov_b32 v{M4}, v{T+4}
    """)
    allred("v_max_f32", M4, T + 1, bits=3)
    a(f"""
    v_sub_f32 v{T+4}, v{T+4}, v{M4}
    v_mul_f32 v{T+4}, {CSC}, v{T+4}
    v_exp_f32 v{T+4}, v{T+4}
    v_mul_f32 v{M4+1}, v{T+4}, v{T+5}
    ds_write_b32 v{T+3}, v{T+4} offset:{L_F}
    v_mov_b32 v{T+3}, {L_FRDY}
    v_mov_b32 v{T+7}, 1
    s_waitcnt lgkmcnt(0)
    ds_write_b32 v{T+3}, v{T+7}
    """)
    allred("v_add_f32", M4 + 1, T + 6, bits=3)
    a(f"""
    v_mov_b32 v{M4+2}, {sTA}
    v_mov_b32 v{M4+3}, {sTB}
    s_mov_b64 exec, 1
    v_add_u32 v{T+2}, {ML}, v{T+2}
    buffer_store_dwordx4 v[{M4}:{M4+3}], v{T+2}, {SWS}, 0 offen
    v_mov_b32 v{T+3}, {L_MLG}
    ds_write_b128 v{T+3}, v[{M4}:{M4+3}]
    s_mov_b64 exec, -1
    s_nop 1
L_noml:
    """, count=False)
    stamp(4)
    NVT = 4
    VL = KR + 4
    WOr = VL + 4 * NVT; W2r = WOr + 16; MLr = W2r + 8; EV = MLr + 4
    for i in range(8): a(f"v_mov_b32 v{ACC+i}, 0")
    def vreg(j): return VL + 4 * (j % NVT)
    def pv(j, reg=None):
        pr = P0 + 2 * (j & 1)
        n = ((j >> 1) & 1) << 3 | ((j >> 2) & 1) << 2 | ((j >> 3) & 1) << 1 | ((j >> 4) & 1)
        bc_step(ACC, vreg(j) if reg is None else reg, pr, pr + 1, n)
    mlload = f"buffer_load_dwordx4 v[{MLr}:{MLr+3}], {vA1}, {SWS}, 0 offen offset:{ML-OP} sc1"
    ACB = EV + 4
    FW = T + 7
    def w2part():
        a(f"""
        v_mov_b32 v{ACB}, 0
        s_cmp_eq_u32 {sS}, 7
        s_cbranch_scc1 L_now2b
        s_cmp_gt_u32 {sH}, 13
        s_cbranch_scc1 L_now2c
        v_lshrrev_b32 v{T}, 3, {vL}
        s_lshl_b32 {sT0}, {sW}, 5
        v_lshl_add_u32 v{T}, v{T}, 2, {sT0}
        ds_read_b32 v{T+4}, v{T} offset:{L_H}
        s_waitcnt lgkmcnt(0)
        v_and_b32 v{T}, 0xffff, v{T+4}
        v_lshlrev_b32 v{T+1}, 16, v{T+4}
        v_lshrrev_b32 v{T+2}, 16, v{T+4}
        v_and_b32 v{T+3}, 0xffff0000, v{T+4}
        """)
        gemv_step(ACB, W2r, T, T + 1, True)
        gemv_step(ACB, W2r + 4, T + 2, T + 3, False)
        red8(ACB)
        a(f"L_now2c:\nds_write_b32 v{COL}, v{ACB} offset:{L_YB}\nL_now2b:")
        a(f"""
        v_and_b32 v{T+4}, 31, {vL}
        v_lshlrev_b32 v{T+4}, 5, v{T+4}
        v_lshrrev_b32 v{T+5}, 5, {vL}
        v_lshl_add_u32 v{T+4}, v{T+5}, 4, v{T+4}
        s_mul_i32 {sT0}, {sW}, {OPS}
        v_add_u32 v{T+4}, {sT0}, v{T+4}
        s_lshl_b32 {sT0}, {sW}, 10
        s_lshl_b32 {sT1}, {sB}, 25
        s_add_u32 {sT0}, {sT0}, {sT1}
        s_lshl_b32 {sT1}, {sH}, 21
        s_add_u32 {sT0}, {sT0}, {sT1}
        s_lshl_b32 {sT1}, {sS}, 18
        s_add_u32 {sT0}, {sT0}, {sT1}
        v_lshl_add_u32 v{vD}, {vL}, 4, {sT0}
        v_and_b32 v{T+9}, 7, {vL}
        v_lshrrev_b32 v{T+8}, 3, {vL}
        v_lshlrev_b32 v{T+8}, 4, v{T+8}
        v_mul_u32_u24 v{T+9}, {OPS}, v{T+9}
        v_add_u32 v{T+8}, v{T+9}, v{T+8}
        s_lshl_b32 {sT0}, {sW}, 7
        v_add_u32 v{T+8}, {sT0}, v{T+8}
        s_lshl_b32 s78, 0x01010101, {sS}
        s_mov_b32 s79, s78
        """)
    def mlcalc(remote):
        retry(lambda: tag2_cond(MLr, T), mlload.replace(", 0 offen", ", s4 offen") if remote else mlload)
        a(f"v_mov_b32 v{T}, v{MLr}")
        allred("v_max_f32", T, T + 1, bits=3)
        a(f"""
        v_sub_f32 v{T}, v{MLr}, v{T}
        v_mul_f32 v{T}, {CSC}, v{T}
        v_exp_f32 v{T}, v{T}
        v_mul_f32 v{T+1}, v{T}, v{MLr+1}
        """)
        allred("v_add_f32", T + 1, T + 2, bits=3)
        a(f"v_rcp_f32 v{T+1}, v{T+1}\nv_mul_f32 v{F}, v{T}, v{T+1}")
    wl = [("o", j) for j in range(4)] + [("2", j) for j in range(2)]
    def wload(kind, j):
        lb = a.newlabel("L_nw")
        a(f"s_cmp_eq_u32 {sS}, 7\ns_cbranch_scc1 {lb}")
        if kind == "2":
            a(f"s_cmp_gt_u32 {sH}, 13\ns_cbranch_scc1 {lb}")
            a(f"buffer_load_dwordx4 v[{W2r+4*j}:{W2r+4*j+3}], {vA4}, {SW2}, 0 offen offset:{896*j} {wpol}", count=False)
        else:
            a(f"buffer_load_dwordx4 v[{WOr+4*j}:{WOr+4*j+3}], {vA3}, {SWO}, 0 offen offset:{896*j} {wpol}", count=False)
        a(f"{lb}:")
    WP = 140
    VD = ACB + 8
    chunk_read(32, vreg(0))
    NR = 32 - ndir
    for j in range(NR):
        if wl and "2" not in skip: wload(*wl.pop(0))
        if j == 12:
            a("s_waitcnt vmcnt(0)"); w2part()
            a("s_mov_b32 s80, 0x05040100\ns_mov_b32 s81, 0x07060302")
            for pr in range(2):
                for i in range(4):
                    a(f"v_perm_b32 v{WP+8*pr+2*i}, v{WOr+8*pr+4+i}, v{WOr+8*pr+i}, s80\nv_perm_b32 v{WP+8*pr+2*i+1}, v{WOr+8*pr+4+i}, v{WOr+8*pr+i}, s81")
        if j == 16: a(mlload, count=False)
        if j == 14 and lcpf:
            a(f"""
            s_cmp_lg_u32 {sW}, 0
            s_cbranch_scc1 L_nolc
            s_getpc_b64 s[100:101]
L_lpc:
            s_add_u32 s100, s100, L_tail-L_lpc
            s_addc_u32 s101, s101, 0
            s_lshr_b32 s3, s2, 3
            s_lshl_b32 s3, s3, 7
            v_mov_b32 v{T}, s3
            global_load_dword v{EV}, v{T}, s[100:101]
L_nolc:
            """, count=False)
        if j == 20:
            lds_wait(L_FRDY, f"ds_read_b32 v{FW}, v{RA} offset:{L_F}", T, "L_frdy")
            a(f"s_waitcnt vmcnt(0)\ns_cmp_lg_u32 {sREM}, 0\ns_cbranch_scc1 L_nomlc")
            if "g" not in skip and "r" not in skip: mlcalc(False)
            a("L_nomlc:")
            if dry: a("s_mov_b64 exec, 0\ns_branch L_tail\nL_dryret:\ns_mov_b64 exec, -1")
        if j == NR - dpos:
            for k in range(ndir):
                a(f"s_mov_b32 s3, {(NR+k)*8192}\nbuffer_load_dwordx4 v[{VD+4*k}:{VD+4*k+3}], v{vD}, {SV}, s3 offen {pol}", count=False)
        if j < 48 - 32 and j % dstep == dstep - 1: done(32 + j)
        else: a("s_waitcnt lgkmcnt(0)")
        if j < 24 and j + 1 < NR: chunk_read(32 + j + 1, vreg(j + 1))
        pv(j); stamp(60 + j)
        if 24 <= j < NR - 1: chunk_read(32 + j + 1, vreg(j + 1), fast=(j >= NR - 3))
    for k in range(ndir):
        a(f"s_waitcnt vmcnt({ndir-1-k})")
        pv(NR + k, VD + 4 * k)
    stamp(5)
    a.phase = "tail"
    a("L_tail:")
    def guard(txt):
        if not dry: a(txt, count=False); return
        lb = a.newlabel("L_gd")
        a(f"s_cbranch_execz {lb}\n{txt}\n{lb}:", count=False)
    for k in range(4): a(f"v_permlane32_swap_b32 v{ACC+k}, v{ACC+k+4}")
    for k in range(4): a(f"v_add_f32 v{ACC+k}, v{ACC+k}, v{ACC+k+4}")
    for k in range(4): a(f"v_mul_f32 v{ACC+k}, v{FW}, v{ACC+k}")
    B = KR + 64
    def gcheck(grans, t):
        for k, g in enumerate(grans):
            if k == 0: a(f"v_xor_b32 v{t}, {sTA}, v{g+1}\nv_xor_b32 v{t+1}, {sTB}, v{g+3}")
            else: a(f"v_bitop3_b32 v{t}, v{t}, {sTA}, v{g+1} bitop3:0xf6\nv_bitop3_b32 v{t+1}, v{t+1}, {sTB}, v{g+3} bitop3:0xf6")
        a(f"v_or_b32 v{t}, v{t}, v{t+1}\nv_cmp_ne_u32 vcc, 0, v{t}")
    def sum_pairs(lds, stride, n):
        for w in range(n): a(f"ds_read_b64 v[{B+2*w}:{B+2*w+1}], v{T+8} offset:{lds+stride*w}")
        a("s_waitcnt lgkmcnt(0)")
        for st in (1, 2):
            for w in range(0, 8, 2 * st):
                a(f"v_add_f32 v{B+2*w}, v{B+2*w}, v{B+2*(w+st)}\nv_add_f32 v{B+2*w+1}, v{B+2*w+1}, v{B+2*(w+st)+1}")
        a(f"v_add_f32 v{PG}, v{B}, v{B+8}\nv_add_f32 v{PG+2}, v{B+1}, v{B+9}")
    PG = B + 16
    O = B + 24
    a(f"""
    ds_write_b128 v{T+4}, v[{ACC}:{ACC+3}] offset:{L_OP}
    s_waitcnt lgkmcnt(0)
    """)
    guard("s_barrier")
    stamp(14)
    opl = f"buffer_load_dwordx4 v[{O}:{O+3}], {vA2}, {SWS}, 0 offen sc1"
    a(f"s_cmp_lg_u32 {sREM}, 0\ns_cbranch_scc1 L_remote\nds_read_b128 v[{B}:{B+3}], v{T+8} offset:{L_OP}")
    a(f"s_cmp_eq_u32 {sS}, 7\ns_cbranch_scc1 L_nopl")
    guard(opl)
    a("L_nopl:\ns_waitcnt lgkmcnt(0)")
    for qp in ("quad_perm:[1,0,3,2]", "quad_perm:[2,3,0,1]", "row_half_mirror"):
        for i in range(4): a(f"v_add_f32_dpp v{B+i}, v{B+i}, v{B+i} {qp} row_mask:0xf bank_mask:0xf")
    for i in range(4): a(f"v_min_u32 v{B+i}, -2, v{B+i}")
    if at1:
        guard(f"s_mov_b64 exec, {MOWN}\nbuffer_atomic_swap_x2 v[{B}:{B+1}], {vA2}, {SWS}, 0 offen\nbuffer_atomic_swap_x2 v[{B+2}:{B+3}], {vA2}, {SWS}, 0 offen offset:8\ns_mov_b64 exec, -1")
    else:
        guard(f"s_mov_b64 exec, {MOWN}\nbuffer_store_dwordx4 v[{B}:{B+3}], {vA2}, {SWS}, 0 offen\ns_mov_b64 exec, -1")
    stamp(8)
    a(f"s_cmp_eq_u32 {sS}, 7\ns_cbranch_scc1 L_fin\ns_waitcnt vmcnt({2 if at1 else 1})")
    own = "\n".join(f"v_cndmask_b32 v{O+i}, v{O+i}, v{B+i}, {MOWN}" for i in range(4))
    stamp(9)
    def h1mul(r):
        a(f"v_mul_f32 v{O+6}, v{F}, v{r+3}\nv_mul_f32 v{O+4}, v{F}, v{r+2}\nv_mul_f32 v{O+2}, v{F}, v{r+1}\nv_mul_f32 v{O}, v{F}, v{r}")
    if h1p == 1:
        def c1():
            a(own); sent_cond([O, O + 1, O + 2, O + 3], T)
        retry(c1, (f"s_sleep {bo}\n" if bo else "") + opl)
        h1mul(O)
    else:
        sent_cond([O, O + 1, O + 2, O + 3], T)
        a("s_cbranch_vccz L_h1a")
        poll_pipe(4, [O + 8 + 4 * k for k in range(h1p)], lambda r: opl.replace(f"v[{O}:{O+3}]", f"v[{r}:{r+3}]"), 1, T, h1mul)
        a("s_branch L_hop1d\nL_h1a:")
        h1mul(O)
    a("L_hop1d:")
    stamp(6)
    for qp in ("quad_perm:[1,0,3,2]", "quad_perm:[2,3,0,1]", "row_half_mirror"):
        for i in range(4): a(f"v_add_f32_dpp v{O+2*i}, v{O+2*i}, v{O+2*i} {qp} row_mask:0xf bank_mask:0xf")
    a(f"v_cvt_pk_bf16_f32 v{O}, v{O}, v{O+2}\nv_cvt_pk_bf16_f32 v{O+4}, v{O+4}, v{O+6}")
    for k in range(8): a(f"v_dot2_f32_bf16 v{ACC+k}, v{WP+k}, v{O}, 0")
    for k in range(8): a(f"v_dot2_f32_bf16 v{ACC+k}, v{WP+8+k}, v{O+4}, v{ACC+k}")
    red8(ACC)
    a(f"""
    ds_write_b32 v{COL}, v{ACC} offset:{L_YA}
    v_and_b32 v{T+8}, 31, {vL}
    v_lshlrev_b32 v{T+8}, 3, v{T+8}
    s_add_u32 {sT1}, {sOWN}, {YA}
    v_lshl_add_u32 v{T+9}, v{T+8}, 1, {sT1}
    v_mov_b32 v{PG+1}, {sTA}
    v_mov_b32 v{PG+3}, {sTB}
    v_lshrrev_b32 v{T+5}, 5, {vL}
    v_lshl_add_u32 v{T+8}, v{T+5}, 10, v{T+8}
    s_waitcnt lgkmcnt(0)
    """)
    guard("s_barrier")
    stamp(15)
    a(f"s_cmp_lg_u32 {sW}, 0\ns_cbranch_scc1 L_fin")
    for w in range(4): a(f"ds_read_b64 v[{B+2*w}:{B+2*w+1}], v{T+8} offset:{L_YA+256*w}")
    a(f"""
    s_waitcnt lgkmcnt(0)
    v_add_f32 v{B}, v{B}, v{B+2}
    v_add_f32 v{B+1}, v{B+1}, v{B+3}
    v_add_f32 v{B+4}, v{B+4}, v{B+6}
    v_add_f32 v{B+5}, v{B+5}, v{B+7}
    v_add_f32 v{B}, v{B}, v{B+4}
    v_add_f32 v{B+1}, v{B+1}, v{B+5}
    v_mov_b32 v{B+2}, v{B}
    v_mov_b32 v{B+3}, v{B+1}
    v_permlane32_swap_b32 v{B}, v{B+2}
    v_permlane32_swap_b32 v{B+1}, v{B+3}
    v_add_f32 v{PG}, v{B}, v{B+2}
    v_add_f32 v{PG+2}, v{B+1}, v{B+3}
    """)
    if at2:
        guard(f"s_mov_b32 exec_hi, 0\nbuffer_atomic_swap_x2 v[{PG}:{PG+1}], v{T+9}, {SWS}, 0 offen sc1\nbuffer_atomic_swap_x2 v[{PG+2}:{PG+3}], v{T+9}, {SWS}, 0 offen offset:8 sc1\ns_mov_b64 exec, -1")
    else:
        guard(f"buffer_store_dwordx4 v[{PG}:{PG+3}], v{T+9}, {SWS}, 0 offen {ypol}")
    stamp(19)
    a("s_branch L_fin")
    a(f"""
L_remote:
    s_cbranch_execz L_fin
    s_mov_b32 s4, {BOFF}
    v_mov_b32 v{PG+1}, {sTA}
    v_mov_b32 v{PG+3}, {sTB}
    s_cmp_gt_u32 {sW}, 2
    s_cbranch_scc1 L_rem1
    s_cmp_eq_u32 {sW}, 2
    s_cbranch_scc1 L_remml
    s_lshl_b32 {sT0}, {sW}, 9
    v_lshl_add_u32 v{T+8}, {vL}, 3, {sT0}
    s_add_u32 {sT1}, {sOWN}, {OP}
    v_lshl_add_u32 v{T+9}, v{T+8}, 1, {sT1}
    """)
    sum_pairs(L_OP, OPS, 8)
    a(f"""
    s_branch L_remst
L_remml:
    v_mov_b32 v{T+8}, {L_MLG}
    ds_read_b128 v[{PG}:{PG+3}], v{T+8}
    s_add_u32 {sT1}, {sOWN}, {ML}
    v_mov_b32 v{T+9}, {sT1}
    s_waitcnt lgkmcnt(0)
L_remst:
    buffer_store_dwordx4 v[{PG}:{PG+3}], v{T+9}, {SWS}, s4 offen sc1
L_rem1:
    s_cmp_eq_u32 {sS}, 7
    s_cbranch_scc1 L_fin
    v_sub_u32 v{T+8}, {vA2}, {vA1}
    v_lshl_add_u32 v{T+8}, v{T+8}, 1, {vA1}
    """, count=False)
    mlcalc(True)
    oplb = (f"buffer_load_dwordx4 v[{O}:{O+3}], v{T+8}, {SWS}, s4 offen sc1\n"
            f"buffer_load_dwordx4 v[{O+4}:{O+7}], v{T+8}, {SWS}, s4 offen offset:16 sc1")
    a(oplb + "\ns_waitcnt vmcnt(0)", count=False)
    retry(lambda: gcheck([O, O + 4], T), oplb)
    for i in range(4): a(f"v_mul_f32 v{O+2*i}, v{F}, v{O+2*i}")
    a("s_branch L_hop1d")
    a(f"""
L_lsvc:
    s_lshl_b32 {sOWN}, s2, 13
    v_and_b32 v{T+8}, 31, {vL}
    v_lshlrev_b32 v{T+8}, 3, v{T+8}
    s_add_u32 {sT1}, {sOWN}, {YB}
    v_lshl_add_u32 v{T+9}, v{T+8}, 1, {sT1}
    v_mov_b32 v{PG+1}, {sTA}
    v_mov_b32 v{PG+3}, {sTB}
    s_barrier
    s_cmp_eq_u32 {sS}, 7
    s_cbranch_scc1 L_red
    """)
    sum_pairs(L_YB, 256, 8)
    a(f"""
    buffer_store_dwordx4 v[{PG}:{PG+3}], v{T+9}, {SWS}, 0 offen sc1
    s_branch L_fin
L_red:
    s_cmp_gt_u32 {sH}, 6
    s_cbranch_scc1 L_fin
    s_mov_b32 {sS}, {sH}
    s_lshl_b32 {sT0}, {sS}, 1
    s_add_u32 {sT0}, {sT0}, {sB}
    s_lshl_b32 {sT0}, {sT0}, 17
    s_add_u32 {sT0}, {sT0}, {YA}
    v_lshrrev_b32 v{T+5}, 5, {vL}
    v_lshlrev_b32 v{T}, 13, v{T+5}
    v_lshl_add_u32 v{T}, v{T+8}, 1, v{T}
    v_add_u32 {vA0}, {sT0}, v{T}
    v_mov_b32 v{T+2}, {L_G}
    ds_read_b32 v{T+3}, v{T+2}
    """, count=False)
    for k in range(1, 8): a(f"s_mov_b32 s{3+k}, {k*2*SLOT}")
    so = ["0"] + [f"s{3+k}" for k in range(1, 8)]
    mk = lambda r, off: "\n".join(f"buffer_load_dwordx4 v[{r+4*k}:{r+4*k+3}], {vA0}, {SWS}, {so[k]} offen offset:{off} {ypol}" for k in range(8))
    YBr, YAr = KR, KR + 32
    sets = [KR + 32, KR + 64, KR + 96, KR][:npoll]
    guard(mk(YBr, YB - YA))
    a(f"""
    v_lshrrev_b32 v{T+4}, 2, v{T+8}
    v_add_u32 v{T+4}, v{T+4}, v{T+5}
    s_mul_i32 {sT0}, {sB}, 448
    s_lshl_b32 {sT1}, {sS}, 6
    s_add_u32 {sT0}, {sT0}, {sT1}
    v_add_lshl_u32 v{T+4}, v{T+4}, {sT0}, 1
    s_waitcnt lgkmcnt(0)
    v_sub_f32 v{T+6}, 1.0, v{T+3}
    v_cvt_pk_bf16_f32 v{T+6}, 0, v{T+6}
    """)
    def tree(dst, src):
        for e in range(2):
            for k in range(0, 8, 2): a(f"v_add_f32 v{dst+4*e+k//2}, v{src+4*k+2*e}, v{src+4*k+4+2*e}")
        for e in range(2):
            a(f"v_add_f32 v{dst+4*e}, v{dst+4*e}, v{dst+4*e+1}\nv_add_f32 v{dst+4*e+2}, v{dst+4*e+2}, v{dst+4*e+3}")
        for e in range(2): a(f"v_add_f32 v{dst+4*e}, v{dst+4*e}, v{dst+4*e+2}")
        a(f"v_permlane32_swap_b32 v{dst}, v{dst+4}\nv_add_f32 v{dst}, v{dst}, v{dst+4}\nv_cvt_pk_bf16_f32 v{dst}, 0, v{dst}")
    RA_, RB_ = 8, 16
    n = len(sets)
    lt, ld = "L_pp", "L_ppd"
    if touch: a(mk(sets[0], 0), count=False)
    if rdry: a(f"s_mov_b64 exec, 0\ns_branch L_pph{len(sets)-1}\nL_rdry:\ns_mov_b64 exec, -1")
    a("s_waitcnt vmcnt(0)")
    retry(lambda: gcheck([YBr + 4 * k for k in range(8)], T), (f"s_sleep {ybo2}\n" if ybo2 else "") + mk(YBr, YB - YA))
    for r in sets[:-1]: guard(mk(r, 0))
    tree(RB_, YBr)
    a(f"v_mul_f32 v{RB_}, v{T+6}, v{RB_}\nv_cvt_pk_bf16_f32 v{RB_}, 0, v{RB_}\n{lt}:")
    for k in range(n):
        guard(mk(sets[(k + n - 1) % n], 0))
        a(f"s_waitcnt vmcnt({(n-1)*8})")
        gcheck([sets[k] + 4 * j for j in range(8)], T)
        a(f"s_cbranch_vccz L_pph{k}")
    spin_or("L_pph0")
    if ybo: a(f"s_sleep {ybo}")
    a(f"s_branch {lt}")
    for k in range(n - 1, -1, -1):
        a(f"L_pph{k}:")
        tree(RA_, sets[k])
        if k: a(f"s_cbranch_execnz {ld}" if rdry else f"s_branch {ld}")
    a(f"{ld}:")
    stamp(16)
    a(f"""
    v_mul_f32 v{RA_}, v{T+3}, v{RA_}
    v_cvt_pk_bf16_f32 v{RA_}, 0, v{RA_}
    v_add_f32 v{RA_}, v{RA_}, v{RB_}
    v_cvt_pk_bf16_f32 v{RA_}, v{RA_}, 0
    s_cbranch_execz {"L_rdry" if rdry else "L_fin"}
    buffer_store_short v{RA_}, v{T+4}, {SOUT}, 0 offen
    s_cmp_lg_u32 {sS}, 0
    s_cbranch_scc1 L_fin
    s_lshl_b32 {sT0}, {sB}, 7
    s_add_u32 {sT0}, {sT0}, {GEN}
    v_mov_b32 v{T}, {sT0}
    v_mov_b32 v{T+10}, {sTA}
    v_mov_b32 v{T+11}, {sTB}
    s_mov_b64 exec, 1
    buffer_store_dwordx2 v[{T+10}:{T+11}], v{T}, {SWS}, 0 offen
    s_mov_b64 exec, -1
L_fin:
    """, count=False)
    if dry: a("s_cbranch_execz L_dryret")
    if stamps and dbg:
        a(f"""
        s_cmp_lt_u32 {sW}, 8
        s_cbranch_scc1 L_end
        s_waitcnt vmcnt(0)
        s_memrealtime s[90:91]
        s_waitcnt lgkmcnt(0)
        s_not_b32 s84, s84
        v_mov_b32 v8, 0
        v_mov_b32 v9, s84
        v_writelane_b32 v9, s86, 1
        v_writelane_b32 v9, s88, 2
        v_writelane_b32 v9, s90, 3
        v_lshlrev_b32 v8, 2, v0
        s_mov_b64 exec, 15
        global_atomic_umax v8, v9, s[24:25] sc1
        s_waitcnt vmcnt(0)
        s_endpgm
        """, count=False)
    elif stamps:
        a("s_waitcnt vmcnt(0)")
        stamp(7)
        a(f"""
        s_waitcnt lgkmcnt(0)
        s_lshl_b32 s3, s2, 3
        s_add_u32 s3, s3, {sW}
        s_lshl_b32 s3, s3, 6
        s_add_u32 s3, s3, {128<<20}
        v_mov_b32 v{T}, s3
        s_mov_b64 exec, 1
        """)
        for k in range(4):
            for i in range(4): a(f"v_mov_b32 v{B+4*k+i}, s{STAMP0+4*k+i}")
            a(f"global_store_dwordx4 v{T}, v[{B+4*k}:{B+4*k+3}], s[26:27] offset:{16*k}", count=False)
    a("L_end:\ns_endpgm")
    pad = "\n.fill 1024, 4, 0xbf810000\n" if cpf else ""
    return f"""{HEADER}{DOC}; @launch grid=(256,1,1) block=(576,1,1) lds={L_END}
.amdgcn_target "amdgcn-amd-amdhsa--gfx950"
.text
.globl {KLABEL}
.p2align 8
.type {KLABEL},@function
{KLABEL}:
{a.text()}{pad}
.section .rodata,"a"
.p2align 6
.amdhsa_kernel {KLABEL}
  .amdhsa_next_free_vgpr 168
  .amdhsa_next_free_sgpr 102
  .amdhsa_accum_offset 168
  .amdhsa_group_segment_fixed_size 0
  .amdhsa_kernarg_size 96
  .amdhsa_user_sgpr_count 2
  .amdhsa_user_sgpr_kernarg_segment_ptr 1
  .amdhsa_system_sgpr_workgroup_id_x 1
.end_amdhsa_kernel
"""

if __name__ == "__main__":
    ap = argparse.ArgumentParser()
    ap.add_argument("-o", default="k.s")
    ap.add_argument("--stamps", default="")
    for n, d in (("w", 32), ("ng", 10), ("ngw", 2), ("npoll", 3), ("fpos", 3), ("spin", 1000000), ("dstep", 2), ("lsl", 1), ("bar0", 1), ("nburst", 4), ("warm", 1), ("bo", 0), ("ndir", 1), ("dpos", 4), ("dry", 0), ("touch", 1), ("ybo", 0), ("h1p", 1), ("rinv", 0), ("cpf", 2), ("nd0", 4), ("at1", 0), ("at2", 0), ("dbg", 0), ("ybo2", 0), ("rdry", 1), ("lcpf", 0)):
        ap.add_argument("--" + n, type=int, default=d)
    ap.add_argument("--pol", default="nt")
    ap.add_argument("--wpol", default="nt")
    ap.add_argument("--ypol", default="sc1")
    ap.add_argument("--fpol", default="sc1")
    ap.add_argument("--rpol", default="sc1")
    ap.add_argument("--wsched", default="")
    ap.add_argument("--nocpf", action="store_true")
    ap.add_argument("--skip", default="")
    x = ap.parse_args()
    open(x.o, "w").write(gen(x.w, x.ng, x.ngw, x.pol, x.wpol, [int(t) for t in x.stamps.split(',')] if x.stamps else None,
                             x.spin, (0 if x.nocpf else x.cpf), x.npoll, x.fpos, x.skip, x.dstep, x.lsl, x.bar0, x.nburst, x.warm, x.bo, x.ndir, x.dpos, x.dry, x.ypol, x.wsched, x.touch, x.ybo, x.h1p, x.fpol, x.rpol, x.rinv, x.nd0, x.at1, x.at2, x.dbg, x.ybo2, x.rdry, x.lcpf))
```

```python
import sys, math, struct, argparse
from asmlib import Asm
from common import NAME, KLABEL

def f32bits(x):
    return struct.unpack("<I", struct.pack("<f", x))[0]

HEADER = open("cdna_kernels/" + NAME + ".s.ref").read().split("; Override launch")[0]

SLOT = 8192
QA, QB, OP, ML = 0, 2048, 4096, 6144
YA, YB = 6656, 7168
BOFF = 256 * SLOT
GEN = 2 * BOFF
WS_BYTES = GEN + 256
L_ML, L_F, L_C1, L_C2, L_C3, L_QRDY, L_FRDY, L_G, L_REM, L_Q, L_H = 0, 64, 96, 100, 104, 108, 112, 116, 120, 128, 640
L_OP, L_YB, L_YA = 1024, 9728, 11776
OPS = 1056
L_QH = 1024
L_QG = 13312
L_MLG = 25568
L_DONE = 25600
L_LAND = 25856
RING = 32768
L_END = RING + 131072
SK, SV, SWQ, SW1, SWO, SW2, SX, SGW, SOUT, SWS = [f"s[{n}:{n+3}]" for n in range(28, 68, 4)]
sTA, sTB, sOWN = "s68", "s69", "s70"
sH, sB, sS, sW = "s72", "s73", "s74", "s75"
sT0, sT1 = "s76", "s77"
MB1, MB0 = "s[78:79]", "s[80:81]"
sOFF, sSPIN = "s82", "s83"
STAMP0 = 84
vL, vKV = "v1", "v2"
vA0, vA1, vA2, vA3, vA4 = "v3", "v4", "v5", "v6", "v7"
Q0, ACC, P0, F, COL, RA, RBv = 8, 12, 20, 24, 25, 26, 27
sLAND = "s71"
sTQ = "s29"
sMISS, sREM = "s30", "s31"
vD = 7
MOWN = "s[78:79]"
CSC = hex(f32bits(math.log2(math.e) / 16))


DOC = """; -----------------------------------------------------------------------------------------------
; One launch, 256 workgroups (one per CU) x 9 waves.  Workgroup i: head h = 2*(i&7) + ((i>>3)&1),
; -----------------------------------------------------------------------------------------------
"""

def gen(W=32, NG=14, NGW=3, pol="nt", wpol="nt", stamps=None, spin=200000, cpf=True, npoll=3, fpos=3, skip="", dstep=2, lsl=1, bar0=1, nburst=4, warm=1, bo=0, ndir=1, dpos=4, dry=0, ypol='sc1', wsched='', touch=1, ybo=0, h1p=1, fpol='sc1', rpol='sc1', rinv=0, nd0=0, at1=0, at2=0, dbg=0, ybo2=0, rdry=1, lcpf=0, pend=1, ypend=0):
    a0 = Asm()
    class Filt:
        phase = "head"
        def __call__(self, txt, tag=None, count=True):
            out = []
            for l in txt.split("\n"):
                ls = l.strip()
                if self.phase == "head" and SWS in ls:
                    if "s" in skip and ls.startswith("buffer_store"): continue
                    if "g" in skip and ls.startswith("buffer_load"): continue
                    if "c" in skip and ls.startswith("buffer_store") and "v[8:11], v28" in ls: continue
                    if "p" in skip and ls.startswith("buffer_store") and ("v[8:11], v29" in ls or "v[12:15], v29" in ls): continue
                    if "m" in skip and ls.startswith("buffer_store") and "v[8:11], v30" in ls: continue
                    if "N" in skip and ls.startswith("buffer_store") and "sc1" not in ls: l = l + " nt"
                    if "0" in skip and ls.startswith("buffer_store") and "sc1" not in ls: l = l + " sc0"
                out.append(l)
            a0("\n".join(out), tag=tag, count=count)
        def __getattr__(self, k): return getattr(a0, k)
        def __setattr__(self, k, v):
            if k == "phase": object.__setattr__(self, k, v)
            else: setattr(a0, k, v)
    a = Filt()
    KR = 40
    NCH = 64 - ndir
    T = 28
    def stamp(i):
        if stamps and i in stamps:
            k = stamps.index(i)
            a(f"s_memrealtime s[{STAMP0+2*k}:{STAMP0+2*k+1}]")
    def srd(dst, src, size):
        n = int(dst[2:dst.index(":")])
        a(f"s_mov_b32 s{n}, s{src}\ns_mov_b32 s{n+1}, s{src+1}\ns_mov_b32 s{n+2}, {size}\ns_mov_b32 s{n+3}, 0x20000")
    SRDS = {SX: (4, 1792), SK: (6, 1 << 26), SV: (8, 1 << 26), SWQ: (10, 448 * 8192), SWO: (12, 4096 * 896), SW1: (16, 448 * 3584),
            SW2: (18, 1792 * 896), SGW: (20, 896), SOUT: (22, 1792), SWS: (26, WS_BYTES)}
    def srds(*names):
        for n in names: srd(n, *SRDS[n])
    def red8(acc):
        for k in range(4): a(f"v_permlane32_swap_b32 v{acc+k}, v{acc+k+4}")
        for k in range(4): a(f"v_add_f32 v{acc+k}, v{acc+k}, v{acc+k+4}")
        for k in range(2): a(f"v_permlane16_swap_b32 v{acc+k}, v{acc+k+2}")
        for k in range(2): a(f"v_add_f32 v{acc+k}, v{acc+k}, v{acc+k+2}")
        a(f"v_add_f32_dpp v{acc}, v{acc}, v{acc} row_ror:8 row_mask:0xf bank_mask:0x3")
        a(f"v_add_f32_dpp v{acc}, v{acc+1}, v{acc+1} row_ror:8 row_mask:0xf bank_mask:0xc")
    def gemv_step(acc, wreg, lo, hi, first, n=4):
        for i in range(n):
            a(f"v_dot2_f32_bf16 v{acc+2*i}, v{wreg+i}, v{lo}, {'0' if first else f'v{acc+2*i}'}")
            a(f"v_dot2_f32_bf16 v{acc+2*i+1}, v{wreg+i}, v{hi}, {'0' if first else f'v{acc+2*i+1}'}")
    def bc_step(acc, wreg, lo, hi, n):
        for i in range(4):
            a(f"v_dot2c_f32_bf16_dpp v{acc+2*i}, v{lo}, v{wreg+i} row_newbcast:{n} row_mask:0xf bank_mask:0xf")
            a(f"v_dot2c_f32_bf16_dpp v{acc+2*i+1}, v{hi}, v{wreg+i} row_newbcast:{n} row_mask:0xf bank_mask:0xf")
    def allred(op, v, t, bits=6):
        a(f"{op}_dpp v{v}, v{v}, v{v} quad_perm:[1,0,3,2] row_mask:0xf bank_mask:0xf")
        a(f"{op}_dpp v{v}, v{v}, v{v} quad_perm:[2,3,0,1] row_mask:0xf bank_mask:0xf")
        a(f"{op}_dpp v{v}, v{v}, v{v} row_half_mirror row_mask:0xf bank_mask:0xf")
        if bits > 3:
            a(f"{op}_dpp v{v}, v{v}, v{v} row_ror:8 row_mask:0xf bank_mask:0xf")
            a(f"v_mov_b32 v{t}, v{v}\nv_permlane16_swap_b32 v{v}, v{t}\n{op} v{v}, v{v}, v{t}")
            a(f"v_mov_b32 v{t}, v{v}\nv_permlane32_swap_b32 v{v}, v{t}\n{op} v{v}, v{v}, v{t}")
    def spin_or(ld):
        a(f"s_cmp_eq_u32 {sSPIN}, 0\ns_cbranch_scc1 {ld}\ns_sub_u32 {sSPIN}, {sSPIN}, 1")
    def retry(cond_code, reissue):
        lt, ld = a.newlabel("L_poll"), a.newlabel("L_pdone")
        a(f"{lt}:")
        cond_code()
        a(f"s_cbranch_vccz {ld}")
        spin_or(ld)
        a(reissue, count=False)
        a(f"s_waitcnt vmcnt(0)\ns_branch {lt}\n{ld}:")
    def sent_cond(regs, t):
        rs = list(regs)
        a(f"v_max3_u32 v{t}, v{rs[0]}, v{rs[1]}, v{rs[2]}"); rs = rs[3:]
        while len(rs) >= 2:
            a(f"v_max3_u32 v{t}, v{t}, v{rs[0]}, v{rs[1]}"); rs = rs[2:]
        if rs: a(f"v_max_u32 v{t}, v{t}, v{rs[0]}")
        a(f"v_cmp_eq_u32 vcc, -1, v{t}")
    def poll_sent(regs, reissue, t):
        retry(lambda: sent_cond(regs, t), reissue)
    def tag2_cond(g, t):
        a(f"v_xor_b32 v{t}, {sTA}, v{g+2}\nv_bitop3_b32 v{t}, v{t}, {sTB}, v{g+3} bitop3:0xf6\nv_cmp_ne_u32 vcc, 0, v{t}")
    def poll_pipe(nreg, sets, mk, nld, t, hit):
        n = len(sets)
        lt, ld = a.newlabel("L_pp"), a.newlabel("L_ppd")
        hits = [a.newlabel("L_pph") for _ in sets]
        for r in sets[:-1]:
            a(mk(r), count=False); a("s_nop 15\ns_nop 15")
        a(f"{lt}:")
        for k in range(n):
            a(mk(sets[(k + n - 1) % n]), count=False)
            a(f"s_waitcnt vmcnt({(n-1)*nld})")
            sent_cond(range(sets[k], sets[k] + nreg), t)
            a(f"s_cbranch_vccz {hits[k]}")
        spin_or(hits[0])
        a(f"s_branch {lt}")
        for k in range(n - 1, -1, -1):
            a(f"{hits[k]}:")
            hit(sets[k])
            if k: a(f"s_branch {ld}")
        a(f"{ld}:")
    def lds_ticket(addr, t):
        a(f"""
        v_mov_b32 v{t}, {addr}
        v_mov_b32 v{t+1}, 1
        s_waitcnt lgkmcnt(0)
        s_mov_b64 exec, 1
        ds_add_rtn_u32 v{t+1}, v{t}, v{t+1}
        s_mov_b64 exec, -1
        s_waitcnt lgkmcnt(0)
        v_readfirstlane_b32 {sT0}, v{t+1}
        """)
    def lds_wait(flag, extra, t, name):
        a(f"v_mov_b32 v{t}, {flag}\n{name}:\nds_read_b32 v{t+1}, v{t}\n{extra}\ns_waitcnt lgkmcnt(0)\nv_cmp_eq_u32 vcc, 1, v{t+1}\ns_cbranch_vccnz {name}d")
        spin_or(name + "d")
        a(f"s_sleep 1\ns_branch {name}\n{name}d:")

    def chunk_read(c, reg, fast=False):
        ok, sp = a.newlabel("L_ck"), a.newlabel("L_cs")
        a(f"""
        s_cmp_gt_u32 {sLAND}, {c}
        s_cbranch_scc1 {ok}
{sp}:
        ds_read_b32 v{T+11}, v{RA} offset:{L_LAND}
        s_waitcnt lgkmcnt(0)
        v_readfirstlane_b32 {sLAND}, v{T+11}
        s_cmp_gt_u32 {sLAND}, {c}
        s_cbranch_scc1 {ok}
        """)
        spin_or(ok)
        a(("" if fast else f"s_sleep {lsl}\n") + f"s_branch {sp}\n{ok}:")
        slot = c % 16
        a(f"ds_read_b128 v[{reg}:{reg+3}], v{vR0 if slot < 8 else vR1} offset:{(slot % 8) * 8192}")
    def done(c):
        a(f"v_mov_b32 v{T+10}, {c+1}\ns_waitcnt lgkmcnt(0)\ns_mov_b64 exec, 1\nds_write_b32 v{RBv}, v{T+10} offset:{L_DONE}\ns_mov_b64 exec, -1")
    def drain(c0, c1):
        for c in range(c0, c1):
            chunk_read(c, KR + 4 * c)
            if (c + 1) % dstep == 0 or c == c1 - 1: done(c)
    vR0, vR1 = 2, 0
    a(f"""
    s_load_dwordx4 s[36:39], s[0:1], 8
    v_readfirstlane_b32 {sW}, v0
    s_cmpk_ge_u32 s2, 256
    s_cbranch_scc1 L_end
    """)
    stamp(0)
    a(f"""
    s_lshr_b32 {sW}, {sW}, 6
    s_cbranch_scc0 L_loader
    """)
    if cpf:
        a(f"""
        s_getpc_b64 s[100:101]
        s_lshr_b32 s3, s2, 3
        s_mulk_i32 s3, 640
        v_subrev_u32 v{T}, 64, v0
        v_cmp_gt_u32 vcc, 5, v{T}
        v_lshl_add_u32 v{T}, v{T}, 7, s3
        s_and_saveexec_b64 s[98:99], vcc
        s_cbranch_execz L_cons0
        global_load_dword v{F}, v{T}, s[100:101]
        """, count=False)
    DEC = f"""
    s_and_b32 {sH}, s2, 7
    s_lshl_b32 {sH}, {sH}, 1
    s_bfe_u32 {sT0}, s2, 0x10003
    s_add_u32 {sH}, {sH}, {sT0}
    s_bfe_u32 {sB}, s2, 0x10004
    s_lshr_b32 {sS}, s2, 5
    """
    a(f"""
    s_branch L_cons0
L_loader:
    {DEC}
    s_lshl_b32 {sT0}, {sB}, 4
    s_add_u32 {sT0}, {sT0}, {sH}
    s_lshl3_add_u32 {sT0}, {sT0}, {sS}
    s_lshl_b32 {sT0}, {sT0}, 18
    v_lshl_add_u32 v2, v0, 4, {sT0}
    s_lshl_b32 s30, 1, 26
    s_mov_b32 s31, 0x20000
    s_lshl_b32 m0, 1, 15
    s_mov_b32 s34, 0
    s_waitcnt lgkmcnt(0)
    s_mov_b64 s[28:29], s[36:37]
L_burst:
    """)
    assert RING == 1 << 15
    for p in range(4):
        a(f"buffer_load_dwordx4 v2, {SK}, s34 offen offset:{p*1024} {pol} lds", count=False)
    a(f"s_addk_i32 s34, 4096\ns_addk_i32 m0, 4096\ns_cmpk_lt_u32 s34, {nburst*8192}\ns_cbranch_scc1 L_burst")
    a(f"s_setprio 3\nv_mov_b32 {vL}, v0\ns_mov_b32 {sSPIN}, {spin}")
    stamp(199)
    a(f"""
    v_lshlrev_b32 v4, 2, {vL}
    v_mov_b32 v5, 0
    ds_write_b32 v4, v5 offset:{L_LAND}
    ds_write_b32 v4, v5 offset:{L_DONE}
    ds_write_b32 v4, v5 offset:{L_ML}
    v_and_b32 v6, 7, {vL}
    v_lshlrev_b32 v6, 2, v6
    s_mov_b32 s32, {nburst}                      ; chunk
    s_mov_b32 s33, 16
    s_waitcnt lgkmcnt(0)
    s_barrier
    s_branch L_ldok0
L_cons0:
    s_mov_b64 exec, -1
    s_load_dwordx16 s[4:19], s[0:1], 0
    s_load_dwordx8 s[20:27], s[0:1], 64
    {DEC}
    v_and_b32 {vL}, 63, v0
    s_mov_b32 {sSPIN}, {spin}
    s_sub_u32 {sW}, {sW}, 1
    s_mov_b32 {sLAND}, 0
    s_lshl_b32 {sT0}, {sW}, 10
    s_add_u32 {sT0}, {sT0}, {RING}
    v_lshl_add_u32 v{vR0}, {vL}, 4, {sT0}
    v_add_u32 v{vR1}, 0x10000, v{vR0}
    s_lshl_b32 {sT0}, {sW}, 2
    v_mov_b32 v{RBv}, {sT0}
    v_mov_b32 v{RA}, {sT0}
    {"s_barrier" if bar0 else ""}
    s_branch L_cons
    """)
    sched = [(int(t.split(":")[0]), int(t.split(":")[1])) for t in wsched.split(",")] if wsched else [(64, W)]
    sched[-1] = (NCH, sched[-1][1])
    for ph, (cend, Wp) in enumerate(sched):
        a(f"""
L_ld{ph}:
        s_cmp_lt_u32 s32, s33
        s_cbranch_scc1 L_ldok{ph}
L_ldfree{ph}:
        ds_read_b32 v7, v6 offset:{L_DONE}
        s_waitcnt lgkmcnt(0)
        v_min_u32_dpp v7, v7, v7 quad_perm:[1,0,3,2] row_mask:0xf bank_mask:0xf
        v_min_u32_dpp v7, v7, v7 quad_perm:[2,3,0,1] row_mask:0xf bank_mask:0xf
        v_min_u32_dpp v7, v7, v7 row_half_mirror row_mask:0xf bank_mask:0xf
        v_readfirstlane_b32 s33, v7
        s_add_u32 s33, s33, 16
        s_cmp_lt_u32 s32, s33
        s_cbranch_scc1 L_ldok{ph}
        """)
        spin_or(f"L_ldok{ph}")
        a(f"s_branch L_ldfree{ph}\nL_ldok{ph}:")
        for st in (stamps or []):
            if 200 <= st < 264:
                a(f"s_cmp_lg_u32 s32, {st-200}\ns_cbranch_scc1 L_lst{st}_{ph}"); stamp(st); a(f"L_lst{st}_{ph}:")
        pp = (Wp - 1) % 8; back = (Wp - 1 - pp) // 8 + 1
        a(f"""
        s_and_b32 s35, s32, 15
        s_lshl_b32 s35, s35, 13
        s_add_u32 s35, s35, {RING}
        s_mov_b32 m0, s35
        s_sub_u32 s40, s32, {back - 1}
        v_mov_b32 v5, s40
        """)
        for p in range(8):
            if p == 4: a("s_add_u32 s35, s35, 4096\ns_add_u32 s34, s34, 4096\ns_mov_b32 m0, s35")
            a(f"s_waitcnt vmcnt({Wp-1})")
            if p == pp: a(f"ds_write_b32 v4, v5 offset:{L_LAND}")
            a(f"buffer_load_dwordx4 v2, {SK}, s34 offen offset:{(p%4)*1024} {pol} lds", count=False)
        a(f"""
        s_add_u32 s34, s34, 4096
        s_add_u32 s32, s32, 1
        s_cmp_lg_u32 s32, 32
        s_cbranch_scc1 L_ldnsw{ph}
        s_mov_b32 s28, s38
        s_mov_b32 s29, s39
        s_mov_b32 s34, 0
L_ldnsw{ph}:
        s_cmp_lt_u32 s32, {cend}
        s_cbranch_scc1 L_ld{ph}
        """)
    W = sched[-1][1]
    assert sched[0][1] <= nburst * 8 + 1
    stamp(13)
    a("s_load_dwordx8 s[20:27], s[0:1], 64\ns_waitcnt lgkmcnt(0)")
    a(f"s_lshl_b32 s3, {sB}, 7\ns_add_u32 s3, s3, {GEN}\ns_load_dwordx2 s[68:69], s[26:27], s3")
    srds(SWS, SOUT)
    for k in range((W + 7) // 8 - 1, -1, -1):
        a(f"v_mov_b32 v5, {NCH-k}\ns_waitcnt vmcnt({8*k})\nds_write_b32 v4, v5 offset:{L_LAND}")
    a("s_waitcnt lgkmcnt(0)")
    stamp(5)
    if stamps: a(f"s_mul_i32 {sW}, s2, 7\ns_sub_u32 {sW}, 2048, {sW}")
    a(f"s_add_u32 {sTA}, s68, 8\ns_add_u32 {sTB}, s69, 1\ns_branch L_lsvc")
    a(f"""
L_cons:
    s_waitcnt lgkmcnt(0)
    s_lshl_b32 s3, {sB}, 7
    s_add_u32 s3, s3, {GEN}
    s_load_dwordx2 s[68:69], s[26:27], s3
    s_cmp_eq_u32 {sW}, 7
    s_cbranch_scc1 L_svc
    """)
    VE = KR + 64
    WQr, W1r, XQ, XF, AQ, AF = VE, VE + 16, VE + 24, VE + 26, VE + 32, VE + 40
    srds(SWQ)
    a(f"""
    s_mul_i32 {sT0}, {sS}, 56
    s_lshl_b32 {sT1}, {sW}, 3
    s_add_u32 {sT0}, {sT0}, {sT1}
    v_lshrrev_b32 v{T}, 5, {vL}                  ; half
    v_add_u32 v{T+1}, {sT0}, v{T}
    v_lshlrev_b32 {vA2}, 13, v{T+1}
    v_and_b32 v{T+2}, 31, {vL}
    v_lshl_add_u32 {vA2}, v{T+2}, 4, {vA2}
    s_lshl_b32 {sT1}, {sH}, 9
    v_add_u32 {vA2}, {sT1}, {vA2}
    """)
    for t in range(4):
        if t: a(f"s_mov_b32 {sT1}, {t*2*8192}")
        if "1" not in skip:
            a(f"buffer_load_dwordx4 v[{WQr+4*t}:{WQr+4*t+3}], {vA2}, {SWQ}, {sT1 if t else 0} offen {wpol}", tag="w")
    srds(SX, SW1)
    a(f"""
    v_lshrrev_b32 v{T+3}, 4, {vL}                ; rho
    v_and_b32 v{T+4}, 15, {vL}                   ; n
    v_add_u32 v{T+5}, {sT0}, v{T+3}
    v_mul_u32_u24 {vA3}, 3584, v{T+5}
    v_lshl_add_u32 {vA3}, v{T+4}, 4, {vA3}
    s_lshl_b32 {sT1}, {sH}, 8
    v_add_u32 {vA3}, {sT1}, {vA3}                ; w1 address
    s_cmp_gt_u32 {sH}, 13
    s_cbranch_scc1 L_nof1
    s_mov_b32 {sT1}, {4*3584}
    """)
    if "1" not in skip:
        a(f"buffer_load_dwordx4 v[{W1r}:{W1r+3}], {vA3}, {SW1}, 0 offen {wpol}", count=False)
        a(f"buffer_load_dwordx4 v[{W1r+4}:{W1r+7}], {vA3}, {SW1}, {sT1} offen {wpol}", count=False)
    a(f"""
L_nof1:
    s_mul_i32 {sT1}, {sB}, 448
    s_add_u32 {sT1}, {sT1}, {sT0}
    v_and_b32 v{T+5}, 3, {vL}
    v_lshl_add_u32 v{T+5}, v{T+5}, 1, v{T}
    v_add_lshl_u32 {vA0}, v{T+5}, {sT1}, 1
    v_and_b32 v{T+5}, 1, {vL}
    v_lshl_add_u32 v{T+5}, v{T+5}, 2, v{T+3}
    v_add_lshl_u32 {vA1}, v{T+5}, {sT1}, 1
    """)
    a(f"buffer_load_ushort v{XQ}, {vA0}, {SX}, 0 offen", tag="w")
    a(f"buffer_load_ushort v{XF}, {vA1}, {SX}, 0 offen", tag="w")
    if not bar0: a("s_barrier")
    srds(SWS, SWO, SW2, SOUT, SGW, SV)
    for i in range(16): a(f"v_mov_b32 v{AQ+i}, 0")
    a(f"""
    s_mul_i32 {sT0}, {sW}, 1536
    v_lshlrev_b32 v{T+2}, 5, v{T+2}
    v_lshl_add_u32 v{T+2}, v{T}, 4, v{T+2}
    v_add_u32 v{T+2}, {sT0}, v{T+2}
    v_lshlrev_b32 v{T+4}, 5, v{T+4}
    v_lshl_add_u32 v{T+4}, v{T+3}, 3, v{T+4}     ; 32n + 8*rho
    v_add_u32 v{T+4}, {sT0}, v{T+4}
    """)
    stamp(10)
    drain(0, nd0)
    a.wait_vm("w")
    stamp(11)
    a(f"v_lshlrev_b32 v{XQ+1}, 16, v{XQ}\nv_lshlrev_b32 v{XF+1}, 16, v{XF}")
    for t in range(4): bc_step(AQ, WQr + 4 * t, XQ, XQ + 1, t)
    for t in range(2): bc_step(AF, W1r + 4 * t, XF, XF + 1, t)
    for k in range(4): a(f"v_permlane32_swap_b32 v{AQ+k}, v{AQ+k+4}")
    for k in range(4): a(f"v_permlane32_swap_b32 v{AF+k}, v{AF+k+4}")
    for k in range(4): a(f"v_add_f32 v{AQ+k}, v{AQ+k}, v{AQ+k+4}")
    for k in range(4): a(f"v_add_f32 v{AF+k}, v{AF+k}, v{AF+k+4}")
    a(f"ds_write_b128 v{T+2}, v[{AQ}:{AQ+3}] offset:{L_QH}")
    for k in range(2): a(f"v_permlane16_swap_b32 v{AF+k}, v{AF+k+2}")
    for k in range(2): a(f"v_add_f32 v{AF+k}, v{AF+k}, v{AF+k+2}")
    a(f"ds_write_b64 v{T+4}, v[{AF}:{AF+1}] offset:{L_QH+1024}")
    lds_ticket(L_C1, T + 6)
    TAGS = f"""
    s_add_u32 {sTA}, s68, 8
    s_add_u32 {sTB}, s69, 1
    s_getreg_b32 {sTQ}, hwreg(HW_REG_XCC_ID, 0, 3)
    s_andn2_b32 s3, {sTA}, 7
    s_or_b32 {sTQ}, {sTQ}, s3
    """
    a(TAGS)
    PBs = [8, 12]
    PR = VE
    a(f"s_cmp_lg_u32 {sT0}, 6\ns_cbranch_scc1 L_k2\nv_lshlrev_b32 v{T}, 2, {vL}")
    for u in range(2):
        for th in range(3):
            for w in range(7):
                a(f"ds_read_b32 v{PR+24*u+8*th+w}, v{T} offset:{L_QH+1536*w+512*th+256*u}")
    a(f"s_lshl_b32 {sT0}, s2, 13\nv_lshl_add_u32 v{T+1}, {vL}, 4, {sT0}")
    for u in range(2): a(f"v_mov_b32 v{PBs[u]+3}, {sTQ}")
    a("s_waitcnt lgkmcnt(0)")
    for u in range(2):
        for th in range(3):
            b = PR + 24 * u + 8 * th
            a(f"v_add_f32 v{b}, v{b}, v{b+1}\nv_add_f32 v{b+2}, v{b+2}, v{b+3}\nv_add_f32 v{b+4}, v{b+4}, v{b+5}")
        for th in range(3):
            b = PR + 24 * u + 8 * th
            a(f"v_add_f32 v{b}, v{b}, v{b+2}\nv_add_f32 v{b+4}, v{b+4}, v{b+6}")
        for th in range(3):
            b = PR + 24 * u + 8 * th
            a(f"v_add_f32 v{PBs[u]+th}, v{b}, v{b+4}")
        a(f"buffer_store_dwordx4 v[{PBs[u]}:{PBs[u]+3}], v{T+1}, {SWS}, 0 offen offset:{QA+1024*u}", count=False)
    stamp(1)
    a("s_branch L_k2")
    a("L_svc:")
    a.vm = []
    GX = VE
    srds(SWS, SX, SGW)
    a(f"""
    s_mul_i32 s3, {sB}, 896
    v_lshlrev_b32 v{T+7}, 4, {vL}
    v_add_u32 v{T+8}, s3, v{T+7}
    v_cmp_gt_u32 vcc, 56, {vL}
    v_mov_b32 v{T+6}, 0x10000
    v_cndmask_b32 v{T+8}, v{T+6}, v{T+8}, vcc
    """)
    a(f"buffer_load_dwordx4 v[{GX}:{GX+3}], v{T+8}, {SX}, 0 offen", tag="w")
    a(f"buffer_load_dwordx4 v[{GX+4}:{GX+7}], v{T+7}, {SGW}, 0 offen", tag="w")
    a(f"""
    s_waitcnt lgkmcnt(0)
    """)
    if not bar0: a("s_barrier")
    a(TAGS)
    srds(SWO, SW2, SOUT, SWQ, SW1, SV)
    drain(0, nd0)
    a(f"""
    s_waitcnt vmcnt(0)
    """, count=False)
    G = T
    a(f"v_mov_b32 v{G}, 0")
    for i in range(4):
        x, g = GX + i, GX + 4 + i
        a(f"""
        v_lshlrev_b32 v{G+1}, 16, v{x}
        v_lshlrev_b32 v{G+2}, 16, v{g}
        v_and_b32 v{G+3}, 0xffff0000, v{x}
        v_and_b32 v{G+4}, 0xffff0000, v{g}
        v_mul_f32 v{G+1}, v{G+1}, v{G+2}
        v_mul_f32 v{G+3}, v{G+3}, v{G+4}
        v_cvt_pk_bf16_f32 v{G+1}, v{G+1}, v{G+3}
        v_lshlrev_b32 v{G+2}, 16, v{G+1}
        v_and_b32 v{G+3}, 0xffff0000, v{G+1}
        v_add_f32 v{G}, v{G}, v{G+2}
        v_add_f32 v{G}, v{G}, v{G+3}
        """)
    allred("v_add_f32", G, G + 1)
    a(f"""
    v_cvt_pk_bf16_f32 v{G}, 0, v{G}
    v_mul_f32 v{G}, {hex(f32bits(-math.log2(math.e)))}, v{G}
    v_exp_f32 v{G}, v{G}
    v_add_f32 v{G}, 1.0, v{G}
    v_rcp_f32 v{G}, v{G}
    v_cvt_pk_bf16_f32 v{G}, 0, v{G}
    v_mov_b32 v{G+1}, {L_G}
    ds_write_b32 v{G+1}, v{G}
L_k2:
    """)
    a.vm = []
    ADDRS = f"""
    s_mov_b32 s78, 0xcccccccc
    s_mov_b32 s79, 0xcccccccc
    s_mov_b32 s80, 0xaaaaaaaa
    s_mov_b32 s81, 0xaaaaaaaa
    s_lshl_b32 {sOWN}, s2, 13
    v_and_b32 v{T+1}, 7, {vL}
    v_lshrrev_b32 v{T}, 3, {vL}
    v_lshlrev_b32 v{COL}, 5, v{T+1}
    v_lshrrev_b32 v{T+2}, 5, {vL}
    v_lshl_add_u32 v{COL}, v{T+2}, 4, v{COL}
    v_bfe_u32 v{T+2}, {vL}, 4, 1
    v_lshl_add_u32 v{COL}, v{T+2}, 3, v{COL}
    v_bfe_u32 v{T+2}, {vL}, 3, 1
    v_lshl_add_u32 v{COL}, v{T+2}, 2, v{COL}
    s_lshl_b32 {sT1}, {sW}, 8
    v_add_u32 v{COL}, {sT1}, v{COL}
    s_and_b32 {sT0}, s2, 31
    s_lshl_b32 {sT0}, {sT0}, 13
    s_add_u32 {sT0}, {sT0}, {OP}
    v_lshlrev_b32 {vA1}, 18, v{T+1}
    v_add_u32 {vA1}, {sT0}, {vA1}
    v_lshl_add_u32 {vA2}, v{T}, 4, {vA1}
    s_lshl_b32 {sT1}, {sW}, 7
    v_add_u32 {vA2}, {sT1}, {vA2}
    s_lshl_b32 {sT1}, {sS}, 7
    v_lshl_add_u32 v{T+1}, v{T+1}, 4, {sT1}
    s_lshl_b32 {sT0}, {sH}, 8
    s_lshl_b32 {sT1}, {sW}, 5
    s_add_u32 {sT0}, {sT0}, {sT1}
    v_lshl_add_u32 v{T+2}, v{T}, 2, {sT0}
    v_mul_u32_u24 v{T+2}, 896, v{T+2}
    v_add_u32 {vA3}, v{T+2}, v{T+1}
    s_lshr_b32 {sT0}, {sT0}, 1
    v_lshl_add_u32 v{T+2}, v{T}, 1, {sT0}
    v_mul_u32_u24 v{T+2}, 896, v{T+2}
    v_add_u32 {vA4}, v{T+2}, v{T+1}              ; w2 rows 128h+16w+2r+j
    v_and_b32 v{T}, 31, {vL}
    v_lshlrev_b32 {vA0}, 4, v{T}
    s_and_b32 {sT0}, s2, 31
    s_lshl_b32 {sT0}, {sT0}, 13
    s_lshl_b32 {sT1}, {sW}, 18
    s_add_u32 {sT0}, {sT0}, {sT1}
    v_lshl_add_u32 v8, {vL}, 4, {sT0}
    v_lshl_add_u32 v12, {vL}, 4, {sOWN}
    s_mul_i32 {sT1}, {sW}, 1536
    v_lshl_add_u32 v9, {vL}, 2, {sT1}
    """
    a(ADDRS)
    drain(nd0, NG)
    GB = KR + 96
    gl = "\n".join(f"buffer_load_dwordx4 v[{GB+4*u}:{GB+4*u+3}], v8, {SWS}, 0 offen offset:{QA+1024*u} sc1" for u in range(2))
    glb = gl.replace(f"offset:{QA} ", f"offset:{QB} ").replace(f"offset:{QA+1024} ", f"offset:{QB+1024} ")
    def wt_copy(must):
        lt, ld = a.newlabel("L_wt"), a.newlabel("L_wtd")
        a(f"""
{lt}:
        buffer_load_dwordx4 v[{GB+8}:{GB+11}], v12, {SWS}, 0 offen offset:{QA} sc1
        buffer_load_dwordx4 v[{GB+12}:{GB+15}], v12, {SWS}, 0 offen offset:{QA+1024} sc1
        s_waitcnt vmcnt(0)
        v_xor_b32 v10, {sTQ}, v{GB+11}
        v_bitop3_b32 v10, v10, {sTQ}, v{GB+15} bitop3:0xf6
        v_cmp_ne_u32 vcc, 0, v10
        s_cbranch_vccz {ld}s
        """, count=False)
        if must:
            spin_or(ld); a(f"s_branch {lt}")
        else:
            a(f"s_branch {ld}")
        a(f"""
{ld}s:
        buffer_store_dwordx4 v[{GB+8}:{GB+11}], v12, {SWS}, 0 offen offset:{QB} sc1
        buffer_store_dwordx4 v[{GB+12}:{GB+15}], v12, {SWS}, 0 offen offset:{QB+1024} sc1
{ld}:
        """, count=False)
    a(gl, count=False)
    drain(NG, NG + NGW)
    assert NG + NGW <= 24
    a("s_waitcnt vmcnt(0)")
    if "g" in skip or "r" in skip: a("s_branch L_gd")
    a(f"""
    s_mov_b32 {sMISS}, 0
L_g:
    v_xor_b32 v10, {sTQ}, v{GB+3}
    v_bitop3_b32 v10, v10, {sTQ}, v{GB+7} bitop3:0xf6
    v_cmp_ne_u32 vcc, 0, v10
    s_cbranch_vccz L_gd
    v_cmp_lt_u32 vcc, 7, v10
    s_cbranch_vccz L_grem
    """)
    spin_or("L_gd")
    a(f"s_add_u32 {sMISS}, {sMISS}, 1\ns_and_b32 s3, {sMISS}, 15\ns_cbranch_scc0 L_gfb\n{gl}\ns_waitcnt vmcnt(0)\ns_branch L_g\nL_gfb:", count=False)
    wt_copy(False)
    a(f"{glb}\ns_waitcnt vmcnt(0)\ns_branch L_g\nL_grem:", count=False)
    a(f"v_mov_b32 v10, {L_REM}\nv_mov_b32 v11, 1\nds_write_b32 v10, v11")
    wt_copy(True)
    a("L_gd:")
    stamp(12)
    for u in range(2):
        for th in range(3):
            a(f"ds_write_b32 v9, v{GB+4*u+th} offset:{L_QG+512*th+256*u}")
    lds_ticket(L_C3, 10)
    a(f"s_cmp_lg_u32 {sT0}, 7\ns_cbranch_scc1 L_noq\nv_lshlrev_b32 v9, 3, {vL}")
    a(f"v_lshlrev_b32 v8, 2, {vL}\nv_mov_b32 v11, 1\nv_mov_b32 v12, {L_QRDY}")
    def qreads(th):
        for w in range(8):
            a(f"ds_read_b64 v[{GB+16*(th%2)+2*w}:{GB+16*(th%2)+2*w+1}], v9 offset:{L_QG+1536*w+512*th}")
    qreads(0); qreads(1)
    for th in range(3):
        b = GB + 16 * (th % 2)
        a("s_waitcnt lgkmcnt(0)")
        for st in (1, 2, 4):
            for w in range(0, 8, 2 * st):
                for e in range(2): a(f"v_add_f32 v{b+2*w+e}, v{b+2*w+e}, v{b+2*(w+st)+e}")
        if th == 2: a(f"v_maximum3_f32 v{b}, v{b}, 0, 0\nv_maximum3_f32 v{b+1}, v{b+1}, 0, 0")
        a(f"v_cvt_pk_bf16_f32 v{13+th}, v{b}, v{b+1}\nds_write_b32 v8, v{13+th} offset:{L_Q+256*th}")
        if th == 0: qreads(2)
    a("s_waitcnt lgkmcnt(0)\nds_write_b32 v12, v11")
    stamp(17)
    a(f"""
L_noq:
    s_cmp_lg_u32 {sW}, 0
    s_cbranch_scc1 L_noclr
    s_add_u32 {sT0}, {sOWN}, {OP}
    v_lshl_add_u32 v{T}, {vL}, 4, {sT0}
    v_mov_b32 v8, -1
    v_mov_b32 v9, -1
    v_mov_b32 v10, -1
    v_mov_b32 v11, -1
    buffer_store_dwordx4 v[8:11], v{T}, {SWS}, 0 offen
L_noclr:
    """, count=False)
    drain(NG + NGW, 32)
    a("s_waitcnt vmcnt(0)")
    stamp(2)
    lds_wait(L_QRDY, f"ds_read_b128 v[{Q0}:{Q0+3}], {vA0} offset:{L_Q}\nds_read_b32 v{T+2}, v{T} offset:{L_REM-L_QRDY}", T, "L_rdy")
    a(f"v_readfirstlane_b32 {sREM}, v{T+2}")
    stamp(3)
    def R(j): return KR + 4 * j
    for g0 in range(0, 32, 8):
        for i in range(4):
            for j in range(g0, g0 + 8):
                a(f"v_dot2_f32_bf16 v{R(j)}, v{R(j)+i}, v{Q0+i}, {'0' if i == 0 else f'v{R(j)}'}")
    for j in range(0, 32, 2): a(f"v_permlane16_swap_b32 v{R(j)}, v{R(j+1)}")
    for j in range(0, 32, 2): a(f"v_add_f32 v{R(j)}, v{R(j)}, v{R(j+1)}")
    for st, ctl, m0, m1 in ((2, "row_ror:8", 3, 12), (4, "row_half_mirror", 5, 10)):
        for j in range(0, 32, 2 * st):
            a(f"v_add_f32_dpp v{R(j)}, v{R(j)}, v{R(j)} {ctl} row_mask:0xf bank_mask:{m0}")
        for j in range(0, 32, 2 * st):
            a(f"v_add_f32_dpp v{R(j)}, v{R(j+st)}, v{R(j+st)} {ctl} row_mask:0xf bank_mask:{m1}")
    for st, qp, m in ((8, "[2,3,0,1]", MB1), (16, "[1,0,3,2]", MB0)):
        for j in range(0, 32, st):
            a(f"v_add_f32_dpp v{R(j)}, v{R(j)}, v{R(j)} quad_perm:{qp} row_mask:0xf bank_mask:0xf")
        for j in range(0, 32, 2 * st):
            a(f"v_cndmask_b32 v{R(j)}, v{R(j)}, v{R(j+st)}, {m}")
    S = T + 8
    a(f"v_cvt_pk_bf16_f32 v{S}, 0, v{R(0)}\nv_mov_b32 v{T}, v{S}")
    allred("v_max_f32", T, T + 1)
    a(f"""
    v_sub_f32 v{S}, v{S}, v{T}
    v_mul_f32 v{S}, {CSC}, v{S}
    v_exp_f32 v{S}, v{S}
    v_mov_b32 v{T+1}, v{S}
    """)
    allred("v_add_f32", T + 1, T + 2)
    a(f"""
    s_lshl_b32 {sT0}, {sW}, 3
    v_mov_b32 v{T+2}, {sT0}
    ds_write_b64 v{T+2}, v[{T}:{T+1}] offset:{L_ML}
    v_cvt_pk_bf16_f32 v{P0}, v{S}, 0
    v_cvt_pk_bf16_f32 v{P0+1}, 0, v{S}
    v_mov_b32 v{P0+2}, v{P0}
    v_mov_b32 v{P0+3}, v{P0+1}
    v_permlane16_swap_b32 v{P0}, v{P0+2}
    v_permlane16_swap_b32 v{P0+1}, v{P0+3}
    """)
    lds_ticket(L_C2, T + 2)
    M4 = Q0
    a(f"""
    s_cmp_lg_u32 {sT0}, 7
    s_cbranch_scc1 L_noml
    v_and_b32 v{T+2}, 7, {vL}
    v_lshlrev_b32 v{T+3}, 3, v{T+2}
    ds_read_b64 v[{T+4}:{T+5}], v{T+3} offset:{L_ML}
    v_lshlrev_b32 v{T+3}, 2, v{T+2}
    v_mov_b32 v{T+2}, {sOWN}
    s_waitcnt lgkmcnt(0)
    v_mov_b32 v{M4}, v{T+4}
    """)
    allred("v_max_f32", M4, T + 1, bits=3)
    a(f"""
    v_sub_f32 v{T+4}, v{T+4}, v{M4}
    v_mul_f32 v{T+4}, {CSC}, v{T+4}
    v_exp_f32 v{T+4}, v{T+4}
    v_mul_f32 v{M4+1}, v{T+4}, v{T+5}
    ds_write_b32 v{T+3}, v{T+4} offset:{L_F}
    v_mov_b32 v{T+3}, {L_FRDY}
    v_mov_b32 v{T+7}, 1
    s_waitcnt lgkmcnt(0)
    ds_write_b32 v{T+3}, v{T+7}
    """)
    allred("v_add_f32", M4 + 1, T + 6, bits=3)
    a(f"""
    v_mov_b32 v{M4+2}, {sTA}
    v_mov_b32 v{M4+3}, {sTB}
    s_mov_b64 exec, 1
    v_add_u32 v{T+2}, {ML}, v{T+2}
    buffer_store_dwordx4 v[{M4}:{M4+3}], v{T+2}, {SWS}, 0 offen
    v_mov_b32 v{T+3}, {L_MLG}
    ds_write_b128 v{T+3}, v[{M4}:{M4+3}]
    s_mov_b64 exec, -1
    s_nop 1
L_noml:
    """, count=False)
    stamp(4)
    NVT = 4
    VL = KR + 4
    WOr = VL + 4 * NVT; W2r = WOr + 16; MLr = W2r + 8; EV = MLr + 4
    for i in range(8): a(f"v_mov_b32 v{ACC+i}, 0")
    def vreg(j): return VL + 4 * (j % NVT)
    def pv(j, reg=None):
        pr = P0 + 2 * (j & 1)
        n = ((j >> 1) & 1) << 3 | ((j >> 2) & 1) << 2 | ((j >> 3) & 1) << 1 | ((j >> 4) & 1)
        bc_step(ACC, vreg(j) if reg is None else reg, pr, pr + 1, n)
    mlload = f"buffer_load_dwordx4 v[{MLr}:{MLr+3}], {vA1}, {SWS}, 0 offen offset:{ML-OP} sc1"
    ACB = EV + 4
    FW = T + 7
    def w2part():
        a(f"""
        v_mov_b32 v{ACB}, 0
        s_cmp_eq_u32 {sS}, 7
        s_cbranch_scc1 L_now2b
        s_cmp_gt_u32 {sH}, 13
        s_cbranch_scc1 L_now2c
        v_lshrrev_b32 v{T}, 3, {vL}
        s_lshl_b32 {sT0}, {sW}, 5
        v_lshl_add_u32 v{T}, v{T}, 2, {sT0}
        ds_read_b32 v{T+4}, v{T} offset:{L_H}
        s_waitcnt lgkmcnt(0)
        v_and_b32 v{T}, 0xffff, v{T+4}
        v_lshlrev_b32 v{T+1}, 16, v{T+4}
        v_lshrrev_b32 v{T+2}, 16, v{T+4}
        v_and_b32 v{T+3}, 0xffff0000, v{T+4}
        """)
        gemv_step(ACB, W2r, T, T + 1, True)
        gemv_step(ACB, W2r + 4, T + 2, T + 3, False)
        red8(ACB)
        a(f"L_now2c:\nds_write_b32 v{COL}, v{ACB} offset:{L_YB}\nL_now2b:")
        a(f"""
        v_and_b32 v{T+4}, 31, {vL}
        v_lshlrev_b32 v{T+4}, 5, v{T+4}
        v_lshrrev_b32 v{T+5}, 5, {vL}
        v_lshl_add_u32 v{T+4}, v{T+5}, 4, v{T+4}
        s_mul_i32 {sT0}, {sW}, {OPS}
        v_add_u32 v{T+4}, {sT0}, v{T+4}
        s_lshl_b32 {sT0}, {sW}, 10
        s_lshl_b32 {sT1}, {sB}, 25
        s_add_u32 {sT0}, {sT0}, {sT1}
        s_lshl_b32 {sT1}, {sH}, 21
        s_add_u32 {sT0}, {sT0}, {sT1}
        s_lshl_b32 {sT1}, {sS}, 18
        s_add_u32 {sT0}, {sT0}, {sT1}
        v_lshl_add_u32 v{vD}, {vL}, 4, {sT0}
        v_and_b32 v{T+9}, 7, {vL}
        v_lshrrev_b32 v{T+8}, 3, {vL}
        v_lshlrev_b32 v{T+8}, 4, v{T+8}
        v_mul_u32_u24 v{T+9}, {OPS}, v{T+9}
        v_add_u32 v{T+8}, v{T+9}, v{T+8}
        s_lshl_b32 {sT0}, {sW}, 7
        v_add_u32 v{T+8}, {sT0}, v{T+8}
        s_lshl_b32 s78, 0x01010101, {sS}
        s_mov_b32 s79, s78
        """)
    def mlcalc(remote):
        retry(lambda: tag2_cond(MLr, T), mlload.replace(", 0 offen", ", s4 offen") if remote else mlload)
        a(f"v_mov_b32 v{T}, v{MLr}")
        allred("v_max_f32", T, T + 1, bits=3)
        a(f"""
        v_sub_f32 v{T}, v{MLr}, v{T}
        v_mul_f32 v{T}, {CSC}, v{T}
        v_exp_f32 v{T}, v{T}
        v_mul_f32 v{T+1}, v{T}, v{MLr+1}
        """)
        allred("v_add_f32", T + 1, T + 2, bits=3)
        a(f"v_rcp_f32 v{T+1}, v{T+1}\nv_mul_f32 v{F}, v{T}, v{T+1}")
    wl = [("o", j) for j in range(4)] + [("2", j) for j in range(2)]
    def wload(kind, j):
        lb = a.newlabel("L_nw")
        a(f"s_cmp_eq_u32 {sS}, 7\ns_cbranch_scc1 {lb}")
        if kind == "2":
            a(f"s_cmp_gt_u32 {sH}, 13\ns_cbranch_scc1 {lb}")
            a(f"buffer_load_dwordx4 v[{W2r+4*j}:{W2r+4*j+3}], {vA4}, {SW2}, 0 offen offset:{896*j} {wpol}", count=False)
        else:
            a(f"buffer_load_dwordx4 v[{WOr+4*j}:{WOr+4*j+3}], {vA3}, {SWO}, 0 offen offset:{896*j} {wpol}", count=False)
        a(f"{lb}:")
    WP = 140
    VD = ACB + 8
    chunk_read(32, vreg(0))
    NR = 32 - ndir
    for j in range(NR):
        if wl and "2" not in skip: wload(*wl.pop(0))
        if j == 12:
            a("s_waitcnt vmcnt(0)"); w2part()
            a("s_mov_b32 s80, 0x05040100\ns_mov_b32 s81, 0x07060302")
            for pr in range(2):
                for i in range(4):
                    a(f"v_perm_b32 v{WP+8*pr+2*i}, v{WOr+8*pr+4+i}, v{WOr+8*pr+i}, s80\nv_perm_b32 v{WP+8*pr+2*i+1}, v{WOr+8*pr+4+i}, v{WOr+8*pr+i}, s81")
        if j == 16: a(mlload, count=False)
        if j == 14 and lcpf:
            a(f"""
            s_cmp_lg_u32 {sW}, 0
            s_cbranch_scc1 L_nolc
            s_getpc_b64 s[100:101]
L_lpc:
            s_add_u32 s100, s100, L_tail-L_lpc
            s_addc_u32 s101, s101, 0
            s_lshr_b32 s3, s2, 3
            s_lshl_b32 s3, s3, 7
            v_mov_b32 v{T}, s3
            global_load_dword v{EV}, v{T}, s[100:101]
L_nolc:
            """, count=False)
        if j == 20:
            lds_wait(L_FRDY, f"ds_read_b32 v{FW}, v{RA} offset:{L_F}", T, "L_frdy")
            a(f"s_waitcnt vmcnt(0)\ns_cmp_lg_u32 {sREM}, 0\ns_cbranch_scc1 L_nomlc")
            if "g" not in skip and "r" not in skip: mlcalc(False)
            a("L_nomlc:")
            if dry: a("s_mov_b64 exec, 0\ns_branch L_tail\nL_dryret:\ns_mov_b64 exec, -1")
        if j == NR - dpos:
            for k in range(ndir):
                a(f"s_mov_b32 s3, {(NR+k)*8192}\nbuffer_load_dwordx4 v[{VD+4*k}:{VD+4*k+3}], v{vD}, {SV}, s3 offen {pol}", count=False)
        if j < 48 - 32 and j % dstep == dstep - 1: done(32 + j)
        else: a("s_waitcnt lgkmcnt(0)")
        if j < 24 and j + 1 < NR: chunk_read(32 + j + 1, vreg(j + 1))
        pv(j); stamp(60 + j)
        if 24 <= j < NR - 1: chunk_read(32 + j + 1, vreg(j + 1), fast=(j >= NR - 3))
    for k in range(ndir):
        a(f"s_waitcnt vmcnt({ndir-1-k})")
        pv(NR + k, VD + 4 * k)
    stamp(5)
    a.phase = "tail"
    a("L_tail:")
    def guard(txt):
        if not dry: a(txt, count=False); return
        lb = a.newlabel("L_gd")
        a(f"s_cbranch_execz {lb}\n{txt}\n{lb}:", count=False)
    for k in range(4): a(f"v_permlane32_swap_b32 v{ACC+k}, v{ACC+k+4}")
    for k in range(4): a(f"v_add_f32 v{ACC+k}, v{ACC+k}, v{ACC+k+4}")
    for k in range(4): a(f"v_mul_f32 v{ACC+k}, v{FW}, v{ACC+k}")
    B = KR + 64
    def gcheck(grans, t):
        for k, g in enumerate(grans):
            if k == 0: a(f"v_xor_b32 v{t}, {sTA}, v{g+1}\nv_xor_b32 v{t+1}, {sTB}, v{g+3}")
            else: a(f"v_bitop3_b32 v{t}, v{t}, {sTA}, v{g+1} bitop3:0xf6\nv_bitop3_b32 v{t+1}, v{t+1}, {sTB}, v{g+3} bitop3:0xf6")
        a(f"v_or_b32 v{t}, v{t}, v{t+1}\nv_cmp_ne_u32 vcc, 0, v{t}")
    def sum_pairs(lds, stride, n):
        for w in range(n): a(f"ds_read_b64 v[{B+2*w}:{B+2*w+1}], v{T+8} offset:{lds+stride*w}")
        a("s_waitcnt lgkmcnt(0)")
        for st in (1, 2):
            for w in range(0, 8, 2 * st):
                a(f"v_add_f32 v{B+2*w}, v{B+2*w}, v{B+2*(w+st)}\nv_add_f32 v{B+2*w+1}, v{B+2*w+1}, v{B+2*(w+st)+1}")
        a(f"v_add_f32 v{PG}, v{B}, v{B+8}\nv_add_f32 v{PG+2}, v{B+1}, v{B+9}")
    PG = B + 16
    O = B + 24
    a(f"""
    ds_write_b128 v{T+4}, v[{ACC}:{ACC+3}] offset:{L_OP}
    s_waitcnt lgkmcnt(0)
    """)
    guard("s_barrier")
    stamp(14)
    opl = f"buffer_load_dwordx4 v[{O}:{O+3}], {vA2}, {SWS}, 0 offen sc1"
    a(f"s_cmp_lg_u32 {sREM}, 0\ns_cbranch_scc1 L_remote\nds_read_b128 v[{B}:{B+3}], v{T+8} offset:{L_OP}")
    a(f"s_cmp_eq_u32 {sS}, 7\ns_cbranch_scc1 L_nopl")
    guard(opl)
    a("L_nopl:\ns_waitcnt lgkmcnt(0)")
    for qp in ("quad_perm:[1,0,3,2]", "quad_perm:[2,3,0,1]", "row_half_mirror"):
        for i in range(4): a(f"v_add_f32_dpp v{B+i}, v{B+i}, v{B+i} {qp} row_mask:0xf bank_mask:0xf")
    for i in range(4): a(f"v_min_u32 v{B+i}, -2, v{B+i}")
    if at1:
        guard(f"s_mov_b64 exec, {MOWN}\nbuffer_atomic_swap_x2 v[{B}:{B+1}], {vA2}, {SWS}, 0 offen\nbuffer_atomic_swap_x2 v[{B+2}:{B+3}], {vA2}, {SWS}, 0 offen offset:8\ns_mov_b64 exec, -1")
    else:
        guard(f"s_mov_b64 exec, {MOWN}\nbuffer_store_dwordx4 v[{B}:{B+3}], {vA2}, {SWS}, 0 offen\ns_mov_b64 exec, -1")
    stamp(8)
    a(f"s_cmp_eq_u32 {sS}, 7\ns_cbranch_scc1 L_fin\ns_waitcnt vmcnt({2 if at1 else 1})")
    own = "\n".join(f"v_cndmask_b32 v{O+i}, v{O+i}, v{B+i}, {MOWN}" for i in range(4))
    stamp(9)
    O2 = B + 4
    def h1mul(r):
        for i in range(4): a(f"v_mul_f32 v{O2+2*i}, v{F}, v{r+i}")
    a(own)
    a("L_h1:")
    sent_cond([O, O + 1, O + 2, O + 3], T)
    a("s_cbranch_vccz L_h1d")
    spin_or("L_h1d")
    a(f"s_mov_b64 exec, vcc\n{opl}\ns_mov_b64 exec, -1\ns_waitcnt vmcnt({h1p-1})\ns_branch L_h1\nL_h1d:", count=False)
    h1mul(O)
    a("L_hop1d:")
    stamp(6)
    for qp in ("quad_perm:[1,0,3,2]", "quad_perm:[2,3,0,1]", "row_half_mirror"):
        for i in range(4): a(f"v_add_f32_dpp v{O2+2*i}, v{O2+2*i}, v{O2+2*i} {qp} row_mask:0xf bank_mask:0xf")
    a(f"v_cvt_pk_bf16_f32 v{O2}, v{O2}, v{O2+2}\nv_cvt_pk_bf16_f32 v{O2+4}, v{O2+4}, v{O2+6}")
    for k in range(8): a(f"v_dot2_f32_bf16 v{ACC+k}, v{WP+k}, v{O2}, 0")
    for k in range(8): a(f"v_dot2_f32_bf16 v{ACC+k}, v{WP+8+k}, v{O2+4}, v{ACC+k}")
    red8(ACC)
    a(f"""
    ds_write_b32 v{COL}, v{ACC} offset:{L_YA}
    v_and_b32 v{T+8}, 31, {vL}
    v_lshlrev_b32 v{T+8}, 3, v{T+8}
    s_add_u32 {sT1}, {sOWN}, {YA}
    v_lshl_add_u32 v{T+9}, v{T+8}, 1, {sT1}
    v_mov_b32 v{PG+1}, {sTA}
    v_mov_b32 v{PG+3}, {sTB}
    v_lshrrev_b32 v{T+5}, 5, {vL}
    v_lshl_add_u32 v{T+8}, v{T+5}, 10, v{T+8}
    s_waitcnt lgkmcnt(0)
    """)
    guard("s_barrier")
    stamp(15)
    a(f"s_cmp_lg_u32 {sW}, 0\ns_cbranch_scc1 L_fin")
    for w in range(4): a(f"ds_read_b64 v[{B+2*w}:{B+2*w+1}], v{T+8} offset:{L_YA+256*w}")
    a(f"""
    s_waitcnt lgkmcnt(0)
    v_add_f32 v{B}, v{B}, v{B+2}
    v_add_f32 v{B+1}, v{B+1}, v{B+3}
    v_add_f32 v{B+4}, v{B+4}, v{B+6}
    v_add_f32 v{B+5}, v{B+5}, v{B+7}
    v_add_f32 v{B}, v{B}, v{B+4}
    v_add_f32 v{B+1}, v{B+1}, v{B+5}
    v_mov_b32 v{B+2}, v{B}
    v_mov_b32 v{B+3}, v{B+1}
    v_permlane32_swap_b32 v{B}, v{B+2}
    v_permlane32_swap_b32 v{B+1}, v{B+3}
    v_add_f32 v{PG}, v{B}, v{B+2}
    v_add_f32 v{PG+2}, v{B+1}, v{B+3}
    """)
    if at2:
        guard(f"s_mov_b32 exec_hi, 0\nbuffer_atomic_swap_x2 v[{PG}:{PG+1}], v{T+9}, {SWS}, 0 offen sc1\nbuffer_atomic_swap_x2 v[{PG+2}:{PG+3}], v{T+9}, {SWS}, 0 offen offset:8 sc1\ns_mov_b64 exec, -1")
    else:
        guard(f"buffer_store_dwordx4 v[{PG}:{PG+3}], v{T+9}, {SWS}, 0 offen {ypol}")
    stamp(19)
    a("s_branch L_fin")
    a(f"""
L_remote:
    s_cbranch_execz L_fin
    s_mov_b32 s4, {BOFF}
    v_mov_b32 v{PG+1}, {sTA}
    v_mov_b32 v{PG+3}, {sTB}
    s_cmp_gt_u32 {sW}, 2
    s_cbranch_scc1 L_rem1
    s_cmp_eq_u32 {sW}, 2
    s_cbranch_scc1 L_remml
    s_lshl_b32 {sT0}, {sW}, 9
    v_lshl_add_u32 v{T+8}, {vL}, 3, {sT0}
    s_add_u32 {sT1}, {sOWN}, {OP}
    v_lshl_add_u32 v{T+9}, v{T+8}, 1, {sT1}
    """)
    sum_pairs(L_OP, OPS, 8)
    a(f"""
    s_branch L_remst
L_remml:
    v_mov_b32 v{T+8}, {L_MLG}
    ds_read_b128 v[{PG}:{PG+3}], v{T+8}
    s_add_u32 {sT1}, {sOWN}, {ML}
    v_mov_b32 v{T+9}, {sT1}
    s_waitcnt lgkmcnt(0)
L_remst:
    buffer_store_dwordx4 v[{PG}:{PG+3}], v{T+9}, {SWS}, s4 offen sc1
L_rem1:
    s_cmp_eq_u32 {sS}, 7
    s_cbranch_scc1 L_fin
    v_sub_u32 v{T+8}, {vA2}, {vA1}
    v_lshl_add_u32 v{T+8}, v{T+8}, 1, {vA1}
    """, count=False)
    mlcalc(True)
    oplb = (f"buffer_load_dwordx4 v[{O}:{O+3}], v{T+8}, {SWS}, s4 offen sc1\n"
            f"buffer_load_dwordx4 v[{O+4}:{O+7}], v{T+8}, {SWS}, s4 offen offset:16 sc1")
    a(oplb + "\ns_waitcnt vmcnt(0)", count=False)
    retry(lambda: gcheck([O, O + 4], T), oplb)
    for i in range(4): a(f"v_mul_f32 v{O2+2*i}, v{F}, v{O+2*i}")
    a("s_branch L_hop1d")
    a(f"""
L_lsvc:
    s_lshl_b32 {sOWN}, s2, 13
    v_and_b32 v{T+8}, 31, {vL}
    v_lshlrev_b32 v{T+8}, 3, v{T+8}
    s_add_u32 {sT1}, {sOWN}, {YB}
    v_lshl_add_u32 v{T+9}, v{T+8}, 1, {sT1}
    v_mov_b32 v{PG+1}, {sTA}
    v_mov_b32 v{PG+3}, {sTB}
    s_barrier
    s_cmp_eq_u32 {sS}, 7
    s_cbranch_scc1 L_red
    """)
    sum_pairs(L_YB, 256, 8)
    a(f"""
    buffer_store_dwordx4 v[{PG}:{PG+3}], v{T+9}, {SWS}, 0 offen sc1
    s_branch L_fin
L_red:
    s_cmp_gt_u32 {sH}, 6
    s_cbranch_scc1 L_fin
    s_mov_b32 {sS}, {sH}
    s_lshl_b32 {sT0}, {sS}, 1
    s_add_u32 {sT0}, {sT0}, {sB}
    s_lshl_b32 {sT0}, {sT0}, 17
    s_add_u32 {sT0}, {sT0}, {YA}
    v_lshrrev_b32 v{T+5}, 5, {vL}
    v_lshlrev_b32 v{T}, 13, v{T+5}
    v_lshl_add_u32 v{T}, v{T+8}, 1, v{T}
    v_add_u32 {vA0}, {sT0}, v{T}
    v_mov_b32 v{T+2}, {L_G}
    ds_read_b32 v{T+3}, v{T+2}
    """, count=False)
    for k in range(1, 8): a(f"s_mov_b32 s{3+k}, {k*2*SLOT}")
    so = ["0"] + [f"s{3+k}" for k in range(1, 8)]
    mk = lambda r, off: "\n".join(f"buffer_load_dwordx4 v[{r+4*k}:{r+4*k+3}], {vA0}, {SWS}, {so[k]} offen offset:{off} {ypol}" for k in range(8))
    YBr, YAr = KR, KR + 32
    sets = [KR + 32, KR + 64, KR + 96, KR][:npoll]
    guard(mk(YBr, YB - YA))
    a(f"""
    v_lshrrev_b32 v{T+4}, 2, v{T+8}
    v_add_u32 v{T+4}, v{T+4}, v{T+5}
    s_mul_i32 {sT0}, {sB}, 448
    s_lshl_b32 {sT1}, {sS}, 6
    s_add_u32 {sT0}, {sT0}, {sT1}
    v_add_lshl_u32 v{T+4}, v{T+4}, {sT0}, 1
    s_waitcnt lgkmcnt(0)
    v_sub_f32 v{T+6}, 1.0, v{T+3}
    v_cvt_pk_bf16_f32 v{T+6}, 0, v{T+6}
    """)
    def tree(dst, src):
        for e in range(2):
            for k in range(0, 8, 2): a(f"v_add_f32 v{dst+4*e+k//2}, v{src+4*k+2*e}, v{src+4*k+4+2*e}")
        for e in range(2):
            a(f"v_add_f32 v{dst+4*e}, v{dst+4*e}, v{dst+4*e+1}\nv_add_f32 v{dst+4*e+2}, v{dst+4*e+2}, v{dst+4*e+3}")
        for e in range(2): a(f"v_add_f32 v{dst+4*e}, v{dst+4*e}, v{dst+4*e+2}")
        a(f"v_permlane32_swap_b32 v{dst}, v{dst+4}\nv_add_f32 v{dst}, v{dst}, v{dst+4}\nv_cvt_pk_bf16_f32 v{dst}, 0, v{dst}")
    RA_, RB_ = 8, 16
    n = len(sets)
    lt, ld = "L_pp", "L_ppd"
    if touch: a(mk(sets[0], 0), count=False)
    if rdry: a(f"s_mov_b64 exec, 0\ns_branch L_pph{len(sets)-1}\nL_rdry:\ns_mov_b64 exec, -1")
    a("s_waitcnt vmcnt(0)")
    retry(lambda: gcheck([YBr + 4 * k for k in range(8)], T), (f"s_sleep {ybo2}\n" if ybo2 else "") + mk(YBr, YB - YA))
    if ypend:
        Y = sets[0]
        a(mk(Y, 0), count=False)
        tree(RB_, YBr)
        a(f"v_mul_f32 v{RB_}, v{T+6}, v{RB_}\nv_cvt_pk_bf16_f32 v{RB_}, 0, v{RB_}")
        for k in range(8): a(f"s_mov_b64 s[{44+2*k}:{45+2*k}], -1")
        a(f"L_yp:\ns_waitcnt vmcnt(0)\ns_mov_b32 s40, 0")
        for k in range(8):
            g = Y + 4 * k; m = f"s[{44+2*k}:{45+2*k}]"
            a(f"""
            s_mov_b64 exec, {m}
            s_cbranch_execz L_yn{k}
            v_xor_b32 v{T}, {sTA}, v{g+1}
            v_bitop3_b32 v{T}, v{T}, {sTB}, v{g+3} bitop3:0xf6
            v_cmp_ne_u32 {m}, 0, v{T}
            s_mov_b64 exec, {m}
            s_cbranch_execz L_yn{k}
            buffer_load_dwordx4 v[{g}:{g+3}], {vA0}, {SWS}, {so[k]} offen {ypol}
            s_mov_b32 s40, 1
L_yn{k}:
            """, count=False)
        a("s_mov_b64 exec, -1\ns_cmp_eq_u32 s40, 0\ns_cbranch_scc1 L_ypd")
        spin_or("L_ypd")
        a("s_branch L_yp\nL_ypd:")
        tree(RA_, Y)
    else:
        for r in sets[:-1]: guard(mk(r, 0))
        tree(RB_, YBr)
        a(f"v_mul_f32 v{RB_}, v{T+6}, v{RB_}\nv_cvt_pk_bf16_f32 v{RB_}, 0, v{RB_}\n{lt}:")
        for k in range(n):
            guard(mk(sets[(k + n - 1) % n], 0))
            a(f"s_waitcnt vmcnt({(n-1)*8})")
            gcheck([sets[k] + 4 * j for j in range(8)], T)
            a(f"s_cbranch_vccz L_pph{k}")
        spin_or("L_pph0")
        if ybo: a(f"s_sleep {ybo}")
        a(f"s_branch {lt}")
        for k in range(n - 1, -1, -1):
            a(f"L_pph{k}:")
            tree(RA_, sets[k])
            if k: a(f"s_cbranch_execnz {ld}" if rdry else f"s_branch {ld}")
        a(f"{ld}:")
    stamp(16)
    a(f"""
    v_mul_f32 v{RA_}, v{T+3}, v{RA_}
    v_cvt_pk_bf16_f32 v{RA_}, 0, v{RA_}
    v_add_f32 v{RA_}, v{RA_}, v{RB_}
    v_cvt_pk_bf16_f32 v{RA_}, v{RA_}, 0
    s_cbranch_execz {"L_rdry" if rdry else "L_fin"}
    buffer_store_short v{RA_}, v{T+4}, {SOUT}, 0 offen
    s_cmp_lg_u32 {sS}, 0
    s_cbranch_scc1 L_fin
    s_lshl_b32 {sT0}, {sB}, 7
    s_add_u32 {sT0}, {sT0}, {GEN}
    v_mov_b32 v{T}, {sT0}
    v_mov_b32 v{T+10}, {sTA}
    v_mov_b32 v{T+11}, {sTB}
    s_mov_b64 exec, 1
    buffer_store_dwordx2 v[{T+10}:{T+11}], v{T}, {SWS}, 0 offen
    s_mov_b64 exec, -1
L_fin:
    """, count=False)
    if dry: a("s_cbranch_execz L_dryret")
    if stamps and dbg:
        a(f"""
        s_cmp_lt_u32 {sW}, 8
        s_cbranch_scc1 L_end
        s_waitcnt vmcnt(0)
        s_memrealtime s[90:91]
        s_waitcnt lgkmcnt(0)
        s_not_b32 s84, s84
        v_mov_b32 v8, 0
        v_mov_b32 v9, s84
        v_writelane_b32 v9, s86, 1
        v_writelane_b32 v9, s88, 2
        v_writelane_b32 v9, s90, 3
        v_lshlrev_b32 v8, 2, v0
        s_mov_b64 exec, 15
        global_atomic_umax v8, v9, s[24:25] sc1
        s_waitcnt vmcnt(0)
        s_endpgm
        """, count=False)
    elif stamps:
        a("s_waitcnt vmcnt(0)")
        stamp(7)
        a(f"""
        s_waitcnt lgkmcnt(0)
        s_lshl_b32 s3, s2, 3
        s_add_u32 s3, s3, {sW}
        s_lshl_b32 s3, s3, 6
        s_add_u32 s3, s3, {128<<20}
        v_mov_b32 v{T}, s3
        s_mov_b64 exec, 1
        """)
        for k in range(4):
            for i in range(4): a(f"v_mov_b32 v{B+4*k+i}, s{STAMP0+4*k+i}")
            a(f"global_store_dwordx4 v{T}, v[{B+4*k}:{B+4*k+3}], s[26:27] offset:{16*k}", count=False)
    a("L_end:\ns_endpgm")
    pad = "\n.fill 1024, 4, 0xbf810000\n" if cpf else ""
    return f"""{HEADER}{DOC}; @launch grid=(256,1,1) block=(576,1,1) lds={L_END}
.amdgcn_target "amdgcn-amd-amdhsa--gfx950"
.text
.globl {KLABEL}
.p2align 8
.type {KLABEL},@function
{KLABEL}:
{a.text()}{pad}
.section .rodata,"a"
.p2align 6
.amdhsa_kernel {KLABEL}
  .amdhsa_next_free_vgpr 168
  .amdhsa_next_free_sgpr 102
  .amdhsa_accum_offset 168
  .amdhsa_group_segment_fixed_size 0
  .amdhsa_kernarg_size 96
  .amdhsa_user_sgpr_count 2
  .amdhsa_user_sgpr_kernarg_segment_ptr 1
  .amdhsa_system_sgpr_workgroup_id_x 1
.end_amdhsa_kernel
"""

if __name__ == "__main__":
    ap = argparse.ArgumentParser()
    ap.add_argument("-o", default="k.s")
    ap.add_argument("--stamps", default="")
    for n, d in (("w", 32), ("ng", 10), ("ngw", 2), ("npoll", 3), ("fpos", 3), ("spin", 1000000), ("dstep", 2), ("lsl", 1), ("bar0", 1), ("nburst", 4), ("warm", 1), ("bo", 0), ("ndir", 1), ("dpos", 4), ("dry", 0), ("touch", 1), ("ybo", 0), ("h1p", 1), ("rinv", 0), ("cpf", 2), ("nd0", 4), ("at1", 0), ("at2", 0), ("dbg", 0), ("ybo2", 0), ("rdry", 0), ("lcpf", 0), ("pend", 1), ("ypend", 0)):
        ap.add_argument("--" + n, type=int, default=d)
    ap.add_argument("--pol", default="nt")
    ap.add_argument("--wpol", default="nt")
    ap.add_argument("--ypol", default="sc1")
    ap.add_argument("--fpol", default="sc1")
    ap.add_argument("--rpol", default="sc1")
    ap.add_argument("--wsched", default="")
    ap.add_argument("--nocpf", action="store_true")
    ap.add_argument("--skip", default="")
    x = ap.parse_args()
    open(x.o, "w").write(gen(x.w, x.ng, x.ngw, x.pol, x.wpol, [int(t) for t in x.stamps.split(',')] if x.stamps else None,
                             x.spin, (0 if x.nocpf else x.cpf), x.npoll, x.fpos, x.skip, x.dstep, x.lsl, x.bar0, x.nburst, x.warm, x.bo, x.ndir, x.dpos, x.dry, x.ypol, x.wsched, x.touch, x.ybo, x.h1p, x.fpol, x.rpol, x.rinv, x.nd0, x.at1, x.at2, x.dbg, x.ybo2, x.rdry, x.lcpf, x.pend, x.ypend))
```
